```python
import torch

def _softmax(x, axis=-1):
    return torch.softmax(x, dim=axis)
def _gelu(x):
    return torch.nn.functional.gelu(x, approximate="tanh")
def _silu(x):
    return torch.nn.functional.silu(x)
def _sigmoid(x):
    return torch.sigmoid(x)
def _layernorm(x, axis=-1, eps=1e-5):
    m = x.mean(dim=axis, keepdim=True)
    v = x.var(dim=axis, keepdim=True, unbiased=False)
    return (x - m) / torch.sqrt(v + eps)
def _scatter_add(tgt, idx, src, axis=0):
    return tgt.clone().index_add_(axis, idx, src)
def _segment_sum(src, seg, n):
    out = torch.zeros((n,) + src.shape[1:], dtype=src.dtype)
    return out.index_add_(0, seg, src)
def _pad(x, pw):
    flat = tuple(v for pair in reversed(pw) for v in pair)
    return torch.nn.functional.pad(x, flat)

kernel_name = 'standalone__sliding_block__prompt'

def setup_inputs():

    _w = (lambda a: (lambda t: t.to(torch.bfloat16) if t.is_floating_point() else t)(torch.as_tensor(a)))
    B, S, D = 1, 2048, 1024
    return {
        "x": _w((lambda *s: torch.randn(*s, dtype=torch.bfloat16) * 0.2)(B, S, D)),
        "wqkv": _w((lambda *s: torch.randn(*s, dtype=torch.bfloat16) * 0.2)(D, 3 * D)),
        "wo": _w((lambda *s: torch.randn(*s, dtype=torch.bfloat16) * 0.05)(D, D)),
    }

def reference(x, wqkv, wo):
    B, S, D = x.shape
    H = 32; Dh = D // H; W = 256
    qkv = (lambda x, *d: x.permute(*d))((x @ wqkv).reshape(B, S, 3, H, Dh), 2, 0, 3, 1, 4)
    q, k, v = qkv[0], qkv[1], qkv[2]
    scores = torch.einsum("bhqd,bhkd->bhqk", q, k) * (Dh ** -0.5)
    idx = torch.arange(S)
    mask = (idx[:, None] - idx[None, :] >= 0) & (idx[:, None] - idx[None, :] < W)
    scores = torch.where(mask[None, None], scores, -1e9)
    p = _softmax(scores, axis=-1)
    o = torch.einsum("bhqk,bhkd->bhqd", p, v)
    return (lambda x, *d: x.permute(*d))(o, 0, 2, 1, 3).reshape(B, S, D) @ wo
```

```python
import re

TRANS = ("v_exp_f32", "v_log_f32", "v_rcp_f32", "v_rsq_f32", "v_sqrt_f32", "v_sin_f32", "v_cos_f32", "v_rcp_iflag_f32")

def _regs(tok):
    tok = tok.strip()
    neg = tok.startswith("-")
    if neg: tok = tok[1:]
    m = re.fullmatch(r"abs\((.*)\)", tok)
    if m: tok = m.group(1)
    m = re.fullmatch(r"\|(.*)\|", tok)
    if m: tok = m.group(1)
    m = re.fullmatch(r"([vas])(\d+)", tok)
    if m: return [m.group(1) + m.group(2)]
    m = re.fullmatch(r"([vas])\[(\d+):(\d+)\]", tok)
    if m: return [m.group(1) + str(i) for i in range(int(m.group(2)), int(m.group(3)) + 1)]
    if tok in ("vcc", "vcc_lo", "vcc_hi"): return ["vcc"]
    if tok in ("exec", "exec_lo", "exec_hi"): return ["exec"]
    if tok == "m0": return ["m0"]
    if tok == "scc": return ["scc"]
    return []

class Ins:
    __slots__ = ("text", "op", "kind", "defs", "uses", "srcc", "ab", "passes", "label", "target", "wide_store", "lds_dma", "nstates")
    def __init__(self, text):
        self.text = text
        self.label = None; self.target = None
        self.defs = []; self.uses = []; self.srcc = []; self.ab = []
        self.passes = 0; self.wide_store = False; self.lds_dma = False
        self.nstates = 1
        t = text.split(";")[0].strip()
        if t.endswith(":"):
            self.kind = "label"; self.label = t[:-1]; self.op = ""; self.nstates = 0; return
        if t.startswith(".") or t == "":
            self.kind = "dir"; self.op = ""; self.nstates = 0; return
        parts = t.split(None, 1)
        op = parts[0]; self.op = op
        rest = parts[1] if len(parts) > 1 else ""
        rest = re.sub(r"\b(neg_lo|neg_hi|op_sel|op_sel_hi):\[[^\]]*\]", "", rest).strip()
        ops = [o.strip() for o in rest.split(",")] if rest else []
        mods = []
        if ops:
            last = ops[-1].split()
            ops[-1] = last[0] if last else ""
            mods = last[1:]
        base = op.replace("_e32", "").replace("_e64", "")
        if base.startswith("v_mfma"):
            self.kind = "mfma"
            self.defs = _regs(ops[0]); self.ab = _regs(ops[1]) + _regs(ops[2]); self.srcc = _regs(ops[3])
            self.uses = self.ab + self.srcc
            self.passes = 8 if "32x32" in base else 4
        elif base.startswith("v_"):
            self.kind = "trans" if base in TRANS else "valu"
            if base.startswith("v_permlane") and "swap" in base:
                self.defs = _regs(ops[0]) + _regs(ops[1]); self.uses = list(self.defs)
            elif base.startswith("v_cmp"):
                self.defs = _regs(ops[0]); self.uses = sum((_regs(o) for o in ops[1:]), [])
                if base.startswith("v_cmpx"): self.defs += ["exec"]
            elif base in ("v_add_co_u32", "v_sub_co_u32", "v_subrev_co_u32", "v_addc_co_u32", "v_subb_co_u32", "v_mad_u64_u32", "v_div_scale_f32"):
                self.defs = _regs(ops[0]) + _regs(ops[1]); self.uses = sum((_regs(o) for o in ops[2:]), [])
            elif base == "v_nop":
                pass
            else:
                self.defs = _regs(ops[0]); self.uses = sum((_regs(o) for o in ops[1:]), [])
                if base in ("v_fmac_f32", "v_pk_fmac_f16", "v_writelane_b32") or base.startswith("v_dot2c"):
                    self.uses += self.defs
                if base == "v_cndmask_b32" and len(ops) == 3: self.uses.append("vcc")
        elif base.startswith("ds_"):
            self.kind = "ds"
            if base.startswith("ds_read") or base.startswith("ds_bpermute") or base.startswith("ds_permute") or base.startswith("ds_swizzle") or "rtn" in base:
                self.defs = _regs(ops[0]); self.uses = sum((_regs(o) for o in ops[1:]), [])
            else:
                self.uses = sum((_regs(o) for o in ops), [])
        elif base.startswith("buffer_") or base.startswith("global_") or base.startswith("flat_"):
            self.kind = "vmem"
            if base in ("buffer_inv", "buffer_wbl2"):
                pass
            elif "lds" in mods or base.startswith("global_load_lds"):
                self.lds_dma = True
                self.uses = sum((_regs(o) for o in ops), []) + ["m0"]
            elif "load" in base:
                self.defs = _regs(ops[0]); self.uses = sum((_regs(o) for o in ops[1:]), [])
            elif "atomic" in base:
                self.uses = sum((_regs(o) for o in ops), [])
                if "sc0" in mods:
                    self.defs = _regs(ops[0])
            else:
                self.uses = sum((_regs(o) for o in ops), [])
                if "x3" in base or "x4" in base:
                    self.wide_store = True
                    d = ops[0] if base.startswith("buffer_") else ops[1]
                    self.ab = _regs(d)
        elif base.startswith("s_"):
            self.kind = "salu"
            if base == "s_nop":
                self.nstates = int(ops[0], 0) + 1
            elif base.startswith("s_cbranch") or base == "s_branch":
                self.kind = "branch"; self.target = ops[0]
            elif base in ("s_waitcnt", "s_barrier", "s_endpgm", "s_setprio", "s_sleep", "s_sethalt"):
                pass
            elif base.startswith("s_cmp") or base.startswith("s_bitcmp"):
                self.uses = sum((_regs(o) for o in ops), [])
            elif base.startswith("s_load") or base.startswith("s_buffer_load") or base in ("s_memtime", "s_memrealtime"):
                self.kind = "smem"
                self.defs = _regs(ops[0]); self.uses = sum((_regs(o) for o in ops[1:]), [])
            elif base.startswith("s_atomic"):
                self.kind = "smem"
                self.defs = _regs(ops[0]); self.uses = sum((_regs(o) for o in ops), [])
            else:
                self.defs = _regs(ops[0]); self.uses = sum((_regs(o) for o in ops[1:]), [])
                if "saveexec" in base: self.defs += ["exec"]
        else:
            raise ValueError("unknown instr: " + text)

def required(p, c):
    need = 0
    pv = p.kind in ("valu", "trans")
    cv = c.kind in ("valu", "trans")
    pd = set(p.defs)
    if pv:
        vd = {r for r in pd if r[0] in "va" and r != "vcc"}
        sd = {r for r in pd if r[0] == "s" or r == "vcc"}
        if c.kind == "mfma" and vd & set(c.uses): need = max(need, 2)
        if cv:
            cb = c.op
            if vd & set(c.uses):
                if cb.startswith("v_readlane") or cb.startswith("v_readfirstlane"): need = max(need, 1)
                if cb.startswith("v_permlane"): need = max(need, 2)
                if "dpp" in c.text or "row_" in c.text or "quad_perm" in c.text: need = max(need, 2)
                if p.kind == "trans" and c.kind != "trans": need = max(need, 1)
            if sd & set(c.uses):
                need = max(need, 2)
                if cb.startswith("v_readlane") or cb.startswith("v_writelane") or cb.startswith("v_div_fmas"): need = max(need, 4)
        if c.kind == "vmem" and sd & set(c.uses): need = max(need, 5)
        if p.kind == "trans" and c.kind in ("ds", "vmem") and vd & set(c.uses): need = max(need, 1)
        if "exec" in pd:
            need = max(need, 5 if cv or c.kind == "mfma" else 0)
    if p.kind == "mfma":
        n = p.passes
        big = {2: 5, 4: 8, 8: 12, 16: 20}[n]
        ovl = {2: 4, 4: 6, 8: 10, 16: 18}[n]
        war = {2: 1, 4: 3, 8: 7, 16: 15}[n]
        if c.kind == "mfma":
            if pd & set(c.ab): need = max(need, big)
            if pd & set(c.srcc):
                if not (c.srcc == p.defs and c.passes == p.passes): need = max(need, ovl)
            elif pd & set(c.defs):
                need = max(need, ovl)
        elif cv or c.kind in ("ds", "vmem"):
            if pd & (set(c.uses) | set(c.defs)): need = max(need, big)
            if cv and set(p.srcc) & set(c.defs): need = max(need, war)
            if c.kind in ("ds", "vmem") and set(p.srcc) & set(c.defs): need = max(need, war)
    if p.kind == "salu" and "m0" in pd and c.lds_dma: need = max(need, 1)
    if p.wide_store and set(p.ab) & set(c.defs):
        need = max(need, 2 if (cv or c.kind == "mfma") else 1)
    return need

class Asm:
    def __init__(self):
        self.ins = []
        self.uid = 0
    def __call__(self, text):
        for line in text.split("\n"):
            s = line.strip()
            if s == "" : continue
            if s.startswith(";"):
                i = Ins(""); i.text = "    " + s; self.ins.append(i); continue
            self.ins.append(Ins(s))
    def label(self, name): self.ins.append(Ins(name + ":"))
    def newlabel(self, p="L"):
        self.uid += 1; return "%s_%d" % (p, self.uid)

    def fix_hazards(self, window=24):
        out = []
        for c in self.ins:
            if c.kind in ("label", "dir"):
                out.append(c); continue
            need = 0; dist = 0
            for p in reversed(out):
                if p.kind in ("label", "dir"): continue
                if p.op in ("s_branch", "s_endpgm"): break
                r = required(p, c)
                if r > dist: need = max(need, r - dist)
                dist += p.nstates
                if dist >= window: break
            while need > 0:
                k = min(need, 16)
                out.append(Ins("s_nop %d" % (k - 1))); need -= k
            out.append(c)
        self.ins = out
        labels = {i.label: n for n, i in enumerate(self.ins) if i.kind == "label"}
        for n, b in enumerate(self.ins):
            if b.kind != "branch": continue
            j = labels[b.target]
            pre = []
            dist = 0
            for p in reversed(self.ins[:n + 1]):
                if p.kind in ("label", "dir"): continue
                if p is not b and p.op in ("s_branch", "s_endpgm"): break
                pre.append(p); dist += p.nstates
                if dist >= window: break
            d2 = 0
            for c in self.ins[j:]:
                if c.kind in ("label", "dir"): continue
                dist = d2
                for p in pre:
                    r = required(p, c)
                    if r > dist:
                        raise RuntimeError("hazard across branch %s -> %s: '%s' -> '%s' need %d have %d" % (b.text, b.target, p.text, c.text, r, dist))
                    dist += p.nstates
                d2 += c.nstates
                if d2 >= window or c.op in ("s_branch", "s_endpgm"): break

    def text(self):
        lines = []
        for i in self.ins:
            if i.kind == "label": lines.append(i.text)
            elif i.kind == "dir": lines.append(i.text)
            else: lines.append("    " + i.text)
        return "\n".join(lines) + "\n"

def kernel_header(name):
    return ".globl %s\n.p2align 8\n.type %s,@function\n%s:\n" % (name, name, name)

def kernel_desc(name, vgpr, sgpr, accum):
    return (".amdhsa_kernel %s\n  .amdhsa_next_free_vgpr %d\n  .amdhsa_next_free_sgpr %d\n  .amdhsa_accum_offset %d\n"
            "  .amdhsa_group_segment_fixed_size 0\n  .amdhsa_kernarg_size 48\n  .amdhsa_user_sgpr_count 2\n"
            "  .amdhsa_user_sgpr_kernarg_segment_ptr 1\n  .amdhsa_system_sgpr_workgroup_id_x 1\n.end_amdhsa_kernel\n" % (name, vgpr, sgpr, accum))
```

```python
import sys
from asmlib import *

QF_OFF = 0
KV_OFF = 4 << 20
OF_OFF = 12 << 20
WS_BYTES = 16 << 20

class Lgkm:
    def __init__(self): self.n = 0; self.done = 0
    def issue(self): self.n += 1; return self.n
    def need(self, a, idn):
        if idn <= self.done: return
        cnt = self.n - idn
        assert cnt <= 15, cnt
        a("s_waitcnt lgkmcnt(%d)" % cnt); self.done = idn
    def all(self, a):
        a("s_waitcnt lgkmcnt(0)"); self.done = self.n

def vr(b, n): return "v[%d:%d]" % (b, b + n - 1)
def ar(b, n): return "a[%d:%d]" % (b, b + n - 1)

def srd(a, d, lo, hi, nbytes):
    a("s_mov_b32 s%d, s%d" % (d, lo))
    a("s_mov_b32 s%d, s%d" % (d + 1, hi))
    a("s_mov_b32 s%d, 0x%x" % (d + 2, nbytes))
    a("s_mov_b32 s%d, 0x00020000" % (d + 3))

STAGE = 40960
def gemm1():
    a = Asm()
    a("s_cmp_ge_u32 s2, 256")
    a("s_cbranch_scc1 G1_END")
    a("s_load_dwordx4 s[4:7], s[0:1], 0")
    a("s_load_dwordx2 s[8:9], s[0:1], 40")
    a("v_lshrrev_b32 v1, 6, v0")
    a("v_readfirstlane_b32 s24, v1")
    a("v_and_b32 v0, 63, v0")
    a("s_and_b32 s27, s2, 7")
    a("s_lshr_b32 s28, s2, 3")
    a("s_and_b32 s25, s27, 1")
    a("s_lshl_b32 s25, s25, 3")
    a("s_and_b32 s29, s28, 7")
    a("s_add_u32 s25, s25, s29")
    a("s_lshr_b32 s26, s27, 1")
    a("s_lshl_b32 s26, s26, 2")
    a("s_lshr_b32 s29, s28, 3")
    a("s_add_u32 s26, s26, s29")
    a("s_waitcnt lgkmcnt(0)")
    srd(a, 12, 4, 5, 2048 * 1024 * 2)
    srd(a, 16, 6, 7, 1024 * 3072 * 2)
    srd(a, 20, 8, 9, WS_BYTES)
    a("s_cmp_ge_u32 s24, 4")
    a("s_cbranch_scc1 G1_PROD")
    ACC = 32; FR = 128
    vAb = [2, 3, 4, 5]; vBb = 6; vA = [7, 8, 9, 10]; vB = 11
    def fA(st, i): return FR + st * 20 + i * 4
    def fB(st, s): return FR + st * 20 + 8 + s * 4
    def acc(i, s): return ACC + (i * 3 + s) * 16
    a("s_lshr_b32 s30, s24, 1")
    a("s_and_b32 s31, s24, 1")
    a("v_and_b32 v12, 31, v0")
    a("v_lshrrev_b32 v13, 5, v0")
    a("v_lshrrev_b32 v14, 1, v12")
    a("v_and_b32 v14, 7, v14")
    a("v_xor_b32 v14, v14, v13")
    a("s_lshl_b32 s32, s30, 13")
    a("v_lshlrev_b32 v15, 7, v12")
    a("v_add_u32 v15, s32, v15")
    for kk in range(4):
        a("v_xor_b32 v16, %d, v14" % (kk << 1))
        a("v_lshlrev_b32 v16, 4, v16")
        a("v_add_u32 v%d, v15, v16" % vAb[kk])
    a("v_and_b32 v16, 15, v0")
    a("v_lshrrev_b32 v17, 2, v16")
    a("v_and_b32 v18, 3, v16")
    a("v_lshrrev_b32 v19, 4, v0")
    a("v_and_b32 v19, 1, v19")
    a("v_lshlrev_b32 v20, 3, v13")
    a("v_add_u32 v20, v20, v17")
    a("v_lshlrev_b32 v20, 7, v20")
    a("v_lshlrev_b32 v21, 5, v19")
    a("v_lshlrev_b32 v22, 3, v18")
    a("v_add_u32 v21, v21, v22")
    a("s_lshl_b32 s33, s31, 6")
    a("v_add_u32 v21, s33, v21")
    a("v_lshrrev_b32 v22, 1, v17")
    a("v_and_b32 v22, 1, v22")
    a("v_lshlrev_b32 v22, 6, v22")
    a("v_xor_b32 v21, v21, v22")
    a("v_add_u32 v21, v21, v20")
    a("v_add_u32 v%d, 0x4000, v21" % vBb)
    for kk in range(4): a("v_mov_b32 v%d, v%d" % (vA[kk], vAb[kk]))
    a("v_mov_b32 v%d, v%d" % (vB, vBb))
    for r in range(96): a("v_mov_b32 v%d, 0" % (ACC + r))
    a("s_mov_b32 s34, %d" % STAGE)
    a("s_mov_b32 s35, 0")
    lg = Lgkm()
    def reads(kk, st):
        ids = {}
        def rA(i):
            def f():
                a("ds_read_b128 %s, v%d offset:%d" % (vr(fA(st, i), 4), vA[kk], i * 4096)); ids["A%d" % i] = lg.issue()
            return f
        def rB(s, hf):
            def f():
                a("ds_read_b64_tr_b16 %s, v%d offset:%d" % (vr(fB(st, s) + 2 * hf, 2), vB, s * 8192 + kk * 2048 + hf * 512)); ids["B%d" % s] = lg.issue()
            return f
        return [rA(0), rB(0, 0), rB(0, 1), rA(1), rB(1, 0), rB(1, 1), rB(2, 0), rB(2, 1)], ids
    def mfma(i, s, st, ids):
        lg.need(a, max(ids["A%d" % i], ids["B%d" % s]))
        d = vr(acc(i, s), 16)
        if s < 2: a("v_mfma_f32_32x32x16_bf16 %s, %s, %s, %s" % (d, vr(fB(st, s), 4), vr(fA(st, i), 4), d))
        else:     a("v_mfma_f32_32x32x16_bf16 %s, %s, %s, %s" % (d, vr(fA(st, i), 4), vr(fB(st, s), 4), d))
    order = [(0, 0), (1, 0), (0, 1), (1, 1), (0, 2), (1, 2)]
    a("s_barrier")
    rl, ids = reads(0, 0)
    for f in rl: f()
    a.label("G1_LOOP")
    base_n = lg.n
    for kk in range(4):
        st = kk & 1
        nrl, nids = reads((kk + 1) & 3, st ^ 1)
        if kk < 3:
            sched = [[0, 1], [2, 3], [4, 5], [6, 7], [], []]
        else:
            sched = [[], ["bar", 0, 1, 2], [3, 4, 5], [6, 7], [], []]
        for n, (i, s) in enumerate(order):
            mfma(i, s, st, ids)
            if kk == 3 and n == 0:
                for q in range(4): a("v_add_u32 v%d, s34, v%d" % (vA[q], vAb[q]))
                a("v_add_u32 v%d, s34, v%d" % (vB, vBb))
            for x in sched[n]:
                if x == "bar":
                    lg.all(a); a("s_barrier")
                else: nrl[x]()
            if kk == 3 and n == 4:
                a("s_add_u32 s34, s34, %d" % STAGE)
                a("s_cmp_eq_u32 s34, %d" % (3 * STAGE))
                a("s_cselect_b32 s34, 0, s34")
                a("s_add_u32 s35, s35, 1")
                a("s_cmp_lt_u32 s35, 16")
        ids = nids
    assert lg.n - lg.done == 8
    a("s_cbranch_scc1 G1_LOOP")
    a("s_waitcnt lgkmcnt(0)")
    a("s_lshl_b32 s36, s26, 1")
    a("s_add_u32 s36, s36, s31")
    a("s_lshl_b32 s36, s36, 6")
    a("s_lshl_b32 s37, s25, 2")
    a("s_lshl_b32 s38, s30, 1")
    a("s_add_u32 s37, s37, s38")
    a("s_add_u32 s36, s36, s37")
    a("s_lshl_b32 s38, s36, 11")
    a("s_lshl_b32 s39, s36, 12")
    a("s_add_u32 s39, s39, 0x%x" % KV_OFF)
    a("s_add_u32 s40, s39, 4096")
    a("v_lshlrev_b32 v12, 4, v0")
    a("s_nop 7")
    T = FR
    n = 0
    for i in range(2):
        for s in range(3):
            t = T + (n % 4) * 8; n += 1
            for jx in range(8):
                a("v_cvt_pk_bf16_f32 v%d, v%d, v%d" % (t + jx, acc(i, s) + 2 * jx, acc(i, s) + 2 * jx + 1))
            for hf in range(2):
                if s == 0: so, off = "s38", i * 2048 + hf * 1024
                else: so, off = ("s39", "s40")[i], (s - 1) * 2048 + hf * 1024
                a("buffer_store_dwordx4 %s, v12, s[20:23], %s offen offset:%d" % (vr(t + hf * 4, 4), so, off))
    a("s_endpgm")
    a.label("G1_PROD")
    a("s_sub_u32 s30, s24, 4")
    a("v_lshrrev_b32 v4, 3, v0")
    a("v_and_b32 v5, 7, v0")
    a("v_lshrrev_b32 v6, 4, v0")
    a("s_and_b32 s31, s30, 1")
    a("s_lshl_b32 s31, s31, 2")
    a("v_or_b32 v7, s31, v6")
    a("v_xor_b32 v7, v7, v5")
    a("v_lshlrev_b32 v7, 4, v7")
    a("v_lshlrev_b32 v2, 11, v4")
    a("v_add_u32 v2, v2, v7")
    a("s_lshl_b32 s32, s25, 7")
    a("s_lshl_b32 s33, s30, 3")
    a("s_add_u32 s32, s32, s33")
    a("s_lshl_b32 s32, s32, 11")
    a("v_add_u32 v2, s32, v2")
    a("v_and_b32 v7, 1, v6")
    a("v_lshlrev_b32 v7, 2, v7")
    a("v_xor_b32 v7, v7, v5")
    a("v_lshlrev_b32 v7, 4, v7")
    a("v_mul_u32_u24 v3, 0x1800, v4")
    a("v_add_u32 v3, v3, v7")
    a("s_mul_i32 s32, s30, %d" % (8 * 6144))
    a("s_lshl_b32 s33, s26, 7")
    a("s_add_u32 s32, s32, s33")
    a("v_add_u32 v3, s32, v3")
    a("s_lshl_b32 s34, s30, 10")
    a("s_mov_b32 s35, s34")
    a("s_add_u32 s41, s34, %d" % (3 * STAGE))
    a("s_mov_b32 s36, 0")
    a("s_mov_b32 s37, 0")
    def issue_stage():
        for i in range(4):
            a("s_add_u32 m0, s35, %d" % (i * 4096))
            a("s_add_u32 s38, s36, %d" % (i * 65536))
            a("buffer_load_dwordx4 v2, s[12:15], s38 offen lds")
        for s in range(3):
            for gg in range(2):
                a("s_add_u32 m0, s35, %d" % (16384 + s * 8192 + gg * 4096))
                a("s_add_u32 s38, s37, %d" % (gg * 196608 + s * 2048))
                a("buffer_load_dwordx4 v3, s[16:19], s38 offen lds")
        a("s_add_u32 s36, s36, 128")
        a("s_add_u32 s37, s37, 393216")
        a("s_add_u32 s35, s35, %d" % STAGE)
        a("s_cmp_eq_u32 s35, s41")
        a("s_cselect_b32 s35, s34, s35")
    for _ in range(3): issue_stage()
    a("s_waitcnt vmcnt(20)")
    a("s_barrier")
    a("s_mov_b32 s40, 0")
    a.label("G1_PLOOP")
    a("s_waitcnt vmcnt(10)")
    a("s_barrier")
    issue_stage()
    a("s_add_u32 s40, s40, 1")
    a("s_cmp_lt_u32 s40, 13")
    a("s_cbranch_scc1 G1_PLOOP")
    a("s_waitcnt vmcnt(10)")
    a("s_barrier")
    a("s_waitcnt vmcnt(0)")
    a("s_barrier")
    a("s_barrier")
    a.label("G1_END")
    a("s_endpgm")
    a.fix_hazards()
    return a.text()

import struct
def f32bits(x): return struct.unpack("<I", struct.pack("<f", x))[0]
CSC = (32 ** -0.5) * 1.4426950408889634
NEG = f32bits(-1.0e30)

def attn():
    a = Asm()
    a("s_cmp_ge_u32 s2, 256")
    a("s_cbranch_scc1 AT_END")
    a("s_load_dwordx2 s[8:9], s[0:1], 40")
    a("v_lshrrev_b32 v1, 6, v0")
    a("v_readfirstlane_b32 s24, v1")
    a("v_and_b32 v0, 63, v0")
    a("s_and_b32 s27, s2, 7")
    a("s_lshr_b32 s28, s2, 3")
    a("s_lshr_b32 s25, s27, 1")
    a("s_lshl_b32 s25, s25, 3")
    a("s_and_b32 s29, s28, 7")
    a("s_add_u32 s25, s25, s29")
    a("s_and_b32 s26, s27, 1")
    a("s_lshl_b32 s26, s26, 2")
    a("s_lshr_b32 s29, s28, 3")
    a("s_add_u32 s26, s26, s29")
    a("v_lshlrev_b32 v1, 4, v0")
    a("s_lshl_b32 s30, s25, 6")
    a("s_lshl_b32 s31, s26, 3")
    a("s_add_u32 s30, s30, s31")
    a("s_add_u32 s32, s30, s24")
    a("s_lshl_b32 s32, s32, 11")
    a("s_lshl_b32 s33, s30, 12")
    a("s_add_u32 s33, s33, 0x%x" % (KV_OFF - 8 * 4096))
    a("s_lshl_b32 s34, s24, 13")
    a("s_add_u32 s33, s33, s34")
    a("s_waitcnt lgkmcnt(0)")
    srd(a, 20, 8, 9, WS_BYTES)
    Q = 8; KF = 16; O = 40; S = 64; ML = 208; MH = 224
    a("buffer_load_dwordx4 %s, v1, s[20:23], s32 offen" % vr(Q, 4))
    a("buffer_load_dwordx4 %s, v1, s[20:23], s32 offen offset:1024" % vr(Q + 4, 4))
    for g in range(2):
        a("s_add_u32 m0, s34, %d" % (g * 4096))
        a("s_add_u32 s35, s33, %d" % (g * 4096))
        for c in range(4):
            a("buffer_load_dwordx4 v1, s[20:23], s35 offen offset:%d lds" % (c * 1024))
    a("v_and_b32 v2, 31, v0")
    a("v_lshrrev_b32 v3, 5, v0")
    a("v_lshlrev_b32 v3, 2, v3")
    a("v_sub_u32 v4, v2, v3")
    a("v_mov_b32 v5, 0x%x" % NEG)
    for r in range(16):
        kl = 8 * (r >> 2) + (r & 3)
        a("v_cmp_le_i32 vcc, %d, v4" % kl)
        a("v_cndmask_b32 v%d, v5, 0, vcc" % (MH + r)) if False else None
        a("v_cndmask_b32_e64 v%d, v5, 0, vcc" % (MH + r))
        a("v_cndmask_b32_e64 v%d, 0, v5, vcc" % (ML + r))
    for r in range(16): a("v_mov_b32 v%d, 0" % (O + r))
    a("v_add_u32 v6, s34, v1")
    a("s_lshl_b32 s36, s24, 12")
    a("v_add_u32 v6, s36, v1")
    a("s_waitcnt vmcnt(0)")
    a("s_barrier")
    lg = Lgkm()
    kid = {}
    def rdK(i):
        st = KF + (i % 3) * 8
        for hf in range(2):
            a("ds_read_b128 %s, v6 offset:%d" % (vr(st + hf * 4, 4), i * 4096 + hf * 1024)); kid[(i, hf)] = lg.issue()
    rdK(0); rdK(1)
    MX = [56, 57, 58, 59]
    def maxtile(i):
        for q in range(8):
            m = MX[q % 4]
            s0 = S + i * 16 + 2 * q
            if i == 0 and q < 4: a("v_max_f32 v%d, v%d, v%d" % (m, s0, s0 + 1))
            else: a("v_max3_f32 v%d, v%d, v%d, v%d" % (m, m, s0, s0 + 1))
    for i in range(9):
        st = KF + (i % 3) * 8
        d = vr(S + i * 16, 16)
        c0 = vr(ML, 16) if i == 0 else (vr(MH, 16) if i == 8 else "0")
        lg.need(a, kid[(i, 0)])
        a("v_mfma_f32_32x32x16_bf16 %s, %s, %s, %s" % (d, vr(st, 4), vr(Q, 4), c0))
        lg.need(a, kid[(i, 1)])
        a("v_mfma_f32_32x32x16_bf16 %s, %s, %s, %s" % (d, vr(st + 4, 4), vr(Q + 4, 4), d))
        if i + 2 < 9: rdK(i + 2)
    a("s_nop 15")
    a("s_cmp_lg_u32 s26, 0")
    a("s_cbranch_scc1 AT_NOFIX")
    for i in range(8):
        a("s_cmp_ge_u32 s24, %d" % (8 - i))
        a("s_cbranch_scc1 AT_NOFIX")
        for r in range(16): a("v_mov_b32 v%d, v5" % (S + i * 16 + r))
    a.label("AT_NOFIX")
    vid = {}
    def rdV(i):
        st = KF + (i % 3) * 8
        for hf in range(2):
            a("ds_read_b128 %s, v6 offset:%d" % (vr(st + hf * 4, 4), i * 4096 + 2048 + hf * 1024)); vid[(i, hf)] = lg.issue()
    rdV(0); rdV(1)
    for i in range(9): maxtile(i)
    a("v_max3_f32 v56, v56, v57, v58")
    a("v_max_f32 v56, v56, v59")
    a("v_mov_b32 v57, v56")
    a("v_permlane32_swap_b32 v56, v57")
    a("v_max_f32 v56, v56, v57")
    a("s_mov_b32 s40, 0x%x" % f32bits(CSC))
    a("v_mul_f32 v56, s40, v56")
    SUM = [60, 61, 62, 63]
    for q in SUM: a("v_mov_b32 v%d, 0" % q)
    for i in range(9):
        b = S + i * 16
        for r in range(16): a("v_fma_f32 v%d, v%d, s40, -v56" % (b + r, b + r))
        for r in range(16): a("v_exp_f32 v%d, v%d" % (b + r, b + r))
        for r in range(16): a("v_add_f32 v%d, v%d, v%d" % (SUM[r % 4], SUM[r % 4], b + r))
        for jx in range(8): a("v_cvt_pk_bf16_f32 v%d, v%d, v%d" % (b + jx, b + 2 * jx, b + 2 * jx + 1))
        st = KF + (i % 3) * 8
        lg.need(a, vid[(i, 0)])
        a("v_mfma_f32_32x32x16_bf16 %s, %s, %s, %s" % (vr(O, 16), vr(st, 4), vr(b, 4), vr(O, 16)))
        lg.need(a, vid[(i, 1)])
        a("v_mfma_f32_32x32x16_bf16 %s, %s, %s, %s" % (vr(O, 16), vr(st + 4, 4), vr(b + 4, 4), vr(O, 16)))
        if i + 2 < 9: rdV(i + 2)
    a("v_add_f32 v60, v60, v61")
    a("v_add_f32 v62, v62, v63")
    a("v_add_f32 v60, v60, v62")
    a("v_mov_b32 v61, v60")
    a("v_permlane32_swap_b32 v60, v61")
    a("v_add_f32 v60, v60, v61")
    a("v_rcp_f32 v60, v60")
    a("s_add_u32 s41, s31, s24")
    a("s_lshl_b32 s41, s41, 5")
    a("s_add_u32 s41, s41, s25")
    a("s_lshl_b32 s41, s41, 11")
    a("s_add_u32 s41, s41, 0x%x" % OF_OFF)
    for r in range(16): a("v_mul_f32 v%d, v60, v%d" % (O + r, O + r))
    for jx in range(8): a("v_cvt_pk_bf16_f32 v%d, v%d, v%d" % (S + jx, O + 2 * jx, O + 2 * jx + 1))
    a("buffer_store_dwordx4 %s, v1, s[20:23], s41 offen" % vr(S, 4))
    a("buffer_store_dwordx4 %s, v1, s[20:23], s41 offen offset:1024" % vr(S + 4, 4))
    a.label("AT_END")
    a("s_endpgm")
    a.fix_hazards()
    return a.text()

def gemm2():
    a = Asm()
    a("s_cmp_ge_u32 s2, 256")
    a("s_cbranch_scc1 G2_END")
    a("s_load_dwordx4 s[4:7], s[0:1], 16")
    a("s_load_dwordx2 s[8:9], s[0:1], 40")
    a("v_lshrrev_b32 v1, 6, v0")
    a("v_readfirstlane_b32 s24, v1")
    a("v_and_b32 v0, 63, v0")
    a("s_and_b32 s27, s2, 7")
    a("s_lshr_b32 s28, s2, 3")
    a("s_and_b32 s25, s27, 3")
    a("s_lshl_b32 s25, s25, 2")
    a("s_and_b32 s29, s28, 3")
    a("s_add_u32 s25, s25, s29")
    a("s_lshr_b32 s26, s27, 2")
    a("s_lshl_b32 s26, s26, 3")
    a("s_lshr_b32 s29, s28, 2")
    a("s_add_u32 s26, s26, s29")
    a("v_lshlrev_b32 v1, 4, v0")
    a("v_lshrrev_b32 v4, 3, v0")
    a("v_and_b32 v5, 7, v0")
    a("v_lshrrev_b32 v6, 4, v0")
    a("v_and_b32 v6, 1, v6")
    a("v_lshlrev_b32 v6, 2, v6")
    a("v_xor_b32 v6, v6, v5")
    a("v_lshlrev_b32 v6, 4, v6")
    a("v_lshlrev_b32 v2, 11, v4")
    a("v_add_u32 v2, v2, v6")
    a("s_lshl_b32 s30, s26, 7")
    a("s_lshl_b32 s31, s24, 15")
    a("s_add_u32 s30, s30, s31")
    a("v_add_u32 v2, s30, v2")
    a("s_lshl_b32 s32, s25, 2")
    a("s_add_u32 s32, s32, s24")
    a("s_lshl_b32 s33, s32, 16")
    a("s_add_u32 s33, s33, 0x%x" % OF_OFF)
    a("s_lshl_b32 s34, s24, 11")
    a("s_waitcnt lgkmcnt(0)")
    srd(a, 12, 4, 5, 1024 * 1024 * 2)
    srd(a, 16, 6, 7, 2048 * 1024 * 2)
    srd(a, 20, 8, 9, WS_BYTES)
    def issue(kb):
        for q in range(2):
            a("s_add_u32 m0, s34, %d" % (kb * 8192 + q * 1024))
            a("s_mov_b32 s35, %d" % (kb * 64 * 2048 + q * 8 * 2048))
            a("buffer_load_dwordx4 v2, s[12:15], s35 offen lds")
        a("s_add_u32 s36, s33, %d" % (kb * 4096))
        for q in range(4):
            a("buffer_load_dwordx4 %s, v1, s[20:23], s36 offen offset:%d" % (ar((kb * 4 + q) * 4, 4), q * 1024))
    PRE = 10
    for kb in range(PRE): issue(kb)
    a("v_and_b32 v16, 15, v0")
    a("v_lshrrev_b32 v17, 2, v16")
    a("v_and_b32 v18, 3, v16")
    a("v_lshrrev_b32 v19, 4, v0")
    a("v_and_b32 v19, 1, v19")
    a("v_lshrrev_b32 v13, 5, v0")
    a("v_lshlrev_b32 v20, 2, v13")
    a("v_add_u32 v20, v20, v17")
    a("v_lshlrev_b32 v20, 7, v20")
    a("v_lshlrev_b32 v21, 5, v19")
    a("v_lshlrev_b32 v22, 3, v18")
    a("v_add_u32 v21, v21, v22")
    a("v_lshrrev_b32 v22, 1, v17")
    a("v_and_b32 v22, 1, v22")
    a("v_lshlrev_b32 v22, 6, v22")
    a("v_xor_b32 v21, v21, v22")
    a("v_add_u32 v8, v21, v20")
    a("v_xor_b32 v9, 64, v8")
    a("v_add_u32 v10, 0x10000, v8")
    a("v_add_u32 v11, 0x10000, v9")
    ACC = 24; FR = 56
    for r in range(32): a("v_mov_b32 v%d, 0" % (ACC + r))
    lg = Lgkm()
    def reads(ks):
        st = ks & 1
        ids = {}
        fl = []
        for nt in range(2):
            for hf in range(2):
                def f(nt=nt, hf=hf):
                    va = (8, 9)[nt] if ks < 32 else (10, 11)[nt]
                    a("ds_read_b64_tr_b16 %s, v%d offset:%d" % (vr(FR + st * 8 + nt * 4 + hf * 2, 2), va, (ks & 31) * 2048 + hf * 1024))
                    ids[nt] = lg.issue()
                fl.append(f)
        return fl, ids
    def waitblk(kb):
        issued = min(16, PRE + kb)
        a("s_waitcnt vmcnt(%d)" % ((issued - 1 - kb) * 6))
        a("s_barrier")
    waitblk(0)
    issue(PRE)
    rl, ids = reads(0)
    for f in rl: f()
    for ks in range(64):
        st = ks & 1
        nxt = ks + 1 < 64
        if nxt: nrl, nids = reads(ks + 1)
        for nt in range(2):
            lg.need(a, ids[nt])
            d = vr(ACC + nt * 16, 16)
            a("v_mfma_f32_32x32x16_bf16 %s, %s, %s, %s" % (d, vr(FR + st * 8 + nt * 4, 4), ar(ks * 4, 4), d))
            if nt == 0 and nxt:
                if (ks + 1) % 4 == 0:
                    kb = (ks + 1) // 4
                    waitblk(kb)
                    if kb + PRE < 16: issue(kb + PRE)
                for f in nrl: f()
        if nxt: ids = nids
    a("v_and_b32 v12, 31, v0")
    a("v_lshlrev_b32 v12, 11, v12")
    a("v_lshlrev_b32 v13, 4, v13")
    a("v_add_u32 v12, v12, v13")
    a("s_lshl_b32 s36, s32, 16")
    a("s_lshl_b32 s37, s26, 7")
    a("s_add_u32 s36, s36, s37")
    a("s_nop 7")
    for nt in range(2):
        t = FR + nt * 8
        for jx in range(8):
            a("v_cvt_pk_bf16_f32 v%d, v%d, v%d" % (t + jx, ACC + nt * 16 + 2 * jx, ACC + nt * 16 + 2 * jx + 1))
        for q in range(2):
            a("v_permlane32_swap_b32 v%d, v%d" % (t + 4 * q, t + 4 * q + 2))
            a("v_permlane32_swap_b32 v%d, v%d" % (t + 4 * q + 1, t + 4 * q + 3))
            a("buffer_store_dwordx4 %s, v12, s[16:19], s36 offen offset:%d" % (vr(t + 4 * q, 4), nt * 64 + q * 32))
    a.label("G2_END")
    a("s_endpgm")
    a.fix_hazards()
    return a.text()

def main():
    hdr = open("standalone__sliding_block__prompt.s.ref").read().split("; Override")[0]
    out = hdr
    out += "; @launch kernel=gemm1_kernel grid=(256,1,1) block=(512,1,1) lds=%d\n" % (3 * STAGE)
    out += "; @launch kernel=attn_kernel grid=(256,1,1) block=(512,1,1) lds=65536\n"
    out += "; @launch kernel=gemm2_kernel grid=(256,1,1) block=(256,1,1) lds=131072\n"
    out += '.amdgcn_target "amdgcn-amd-amdhsa--gfx950"\n.text\n'
    out += kernel_header("gemm1_kernel") + gemm1()
    out += kernel_header("attn_kernel") + attn()
    out += kernel_header("gemm2_kernel") + gemm2()
    out += '.section .rodata,"a"\n.p2align 6\n' + kernel_desc("gemm1_kernel", 168, 48, 168)
    out += ".p2align 6\n" + kernel_desc("attn_kernel", 240, 48, 240)
    out += ".p2align 6\n" + kernel_desc("gemm2_kernel", 72 + 256, 48, 72)
    open(sys.argv[1] if len(sys.argv) > 1 else "standalone__sliding_block__prompt.s", "w").write(out)

main()
```

```python
import sys, os, struct
from asmlib import *

DIAG = int(os.environ.get("DIAG", "0"))
KG_OFF = 0
VG_OFF = 4 << 20
OG_OFF = 8 << 20
FL_OFF = 12 << 20
C2_OFF = FL_OFF + 65536
WS_BYTES = 64 << 20
DIAG_OFF = 32 << 20
STAGE = 40960
SPIN_MAX = 200000

def f32bits(x): return struct.unpack("<I", struct.pack("<f", x))[0]
CSC = (32 ** -0.5) * 1.4426950408889634
NEG = f32bits(-1.0e30)

class Lgkm:
    def __init__(self): self.n = 0; self.done = 0
    def issue(self): self.n += 1; return self.n
    def need(self, a, idn):
        if idn <= self.done: return
        cnt = min(self.n - idn, 15)
        a("s_waitcnt lgkmcnt(%d)" % cnt); self.done = self.n - cnt
    def all(self, a):
        a("s_waitcnt lgkmcnt(0)"); self.done = self.n

def vr(b, n): return "v[%d:%d]" % (b, b + n - 1)
def srd(a, d, lo, hi, nbytes):
    a("s_mov_b32 s%d, s%d" % (d, lo)); a("s_mov_b32 s%d, s%d" % (d + 1, hi))
    a("s_mov_b32 s%d, 0x%x" % (d + 2, nbytes)); a("s_mov_b32 s%d, 0x00020000" % (d + 3))

SB = 64
NSLOT = 16
def stamp(a, slot):
    if not DIAG: return
    a("s_memrealtime s[%d:%d]" % (SB + 2 * slot, SB + 2 * slot + 1))
    a("s_waitcnt lgkmcnt(0)")
def stamp_flush(a):
    if not DIAG: return
    t = 62
    a("s_lshl_b32 s%d, s2, 3" % t); a("s_add_u32 s%d, s%d, s24" % (t, t)); a("s_lshl_b32 s%d, s%d, 7" % (t, t))
    a("s_add_u32 s%d, s%d, 0x%x" % (t, t, DIAG_OFF))
    a("v_mov_b32 v4, 0")
    for sl in range(NSLOT):
        a("v_mov_b32 v2, s%d" % (SB + 2 * sl)); a("v_mov_b32 v3, s%d" % (SB + 2 * sl + 1))
        a("buffer_store_dwordx2 v[2:3], v4, s[20:23], s%d offen offset:%d" % (t, sl * 8))
        a("s_nop 1")


def poll(a, soff, cmp_op, val, name, srdn=20, vt=2, vz=3, st=29, sc=30):
    a("v_mov_b32 v%d, 0" % vz)
    a("s_mov_b32 s%d, %d" % (sc, SPIN_MAX))
    a.label(name)
    a("buffer_load_dword v%d, v%d, s[%d:%d], %s offen sc1" % (vt, vz, srdn, srdn + 3, soff))
    a("s_waitcnt vmcnt(0)")
    a("v_readfirstlane_b32 s%d, v%d" % (st, vt))
    a("s_cmp_%s_u32 s%d, %s" % (cmp_op, st, val))
    a("s_cbranch_scc1 %s_ok" % name)
    a("s_sub_u32 s%d, s%d, 1" % (sc, sc))
    a("s_cmp_lg_u32 s%d, 0" % sc)
    a("s_cbranch_scc1 %s" % name)
    a.label(name + "_ok")

KVH = [49152, 0]
QL = 98304
WOE = 98304
WOO = 32768
RED = 0

def build():
    a = Asm()
    a("s_cmp_ge_u32 s2, 256")
    a("s_cbranch_scc1 L_END")
    if DIAG:
        for sl in range(NSLOT): a("s_mov_b64 s[%d:%d], 0" % (SB + 2 * sl, SB + 2 * sl + 1))
    stamp(a, 0)
    a("s_load_dwordx8 s[4:11], s[0:1], 0")
    a("s_load_dwordx4 s[40:43], s[0:1], 32")
    a("v_lshrrev_b32 v1, 6, v0")
    a("v_readfirstlane_b32 s24, v1")
    a("v_and_b32 v0, 63, v0")
    a("s_and_b32 s27, s2, 7")
    a("s_lshr_b32 s28, s2, 3")
    a("s_and_b32 s25, s27, 1"); a("s_lshl_b32 s25, s25, 3"); a("s_and_b32 s29, s28, 7"); a("s_add_u32 s25, s25, s29")
    a("s_lshr_b32 s26, s27, 1"); a("s_lshl_b32 s26, s26, 2"); a("s_lshr_b32 s29, s28, 3"); a("s_add_u32 s26, s26, s29")
    a("s_and_b32 s56, s27, 3"); a("s_lshl_b32 s56, s56, 2"); a("s_and_b32 s29, s28, 3"); a("s_add_u32 s56, s56, s29")
    a("s_lshr_b32 s57, s27, 2"); a("s_lshl_b32 s57, s57, 3"); a("s_lshr_b32 s29, s28, 2"); a("s_add_u32 s57, s57, s29")
    a("v_lshlrev_b32 v1, 4, v0")
    a("s_waitcnt lgkmcnt(0)")
    srd(a, 12, 4, 5, 2048 * 1024 * 2)
    srd(a, 16, 6, 7, 1024 * 3072 * 2)
    srd(a, 20, 42, 43, WS_BYTES)
    srd(a, 44, 8, 9, 1024 * 1024 * 2)
    srd(a, 48, 10, 11, 2048 * 1024 * 2)
    srd(a, 52, 40, 41, 256)
    a("s_cmp_ge_u32 s24, 4")
    a("s_cbranch_scc1 L_PROD")
    ACC = 64; FR = 160
    vXb = [4, 5]; vWb = [6, 7]; vX = [8, 9]; vW = [10, 11]
    def fX(st, t): return FR + st * 40 + t * 4
    def fW(st, c): return FR + st * 40 + 16 + c * 4
    def acc(t, c): return ACC + (t * 6 + c) * 4
    a("s_lshr_b32 s30, s24, 1")
    a("s_and_b32 s31, s24, 1")
    a("s_cmp_lg_u32 s24, 0")
    a("s_cbranch_scc1 L_NOINIT")
    a("s_mov_b64 exec, 1")
    for r in range(4): a("v_mov_b32 v%d, 0" % (12 + r))
    a("s_lshl_b32 s32, s25, 4"); a("s_add_u32 s32, s32, s26"); a("s_lshl_b32 s32, s32, 7"); a("s_add_u32 s32, s32, 0x%x" % FL_OFF)
    a("buffer_store_dwordx4 v[12:15], v12, s[20:23], s32 offen sc1")
    a("s_cmp_lg_u32 s26, 0")
    a("s_cbranch_scc1 L_NOC2")
    a("s_lshl_b32 s32, s25, 7"); a("s_add_u32 s32, s32, 0x%x" % C2_OFF)
    a("buffer_store_dword v12, v12, s[20:23], s32 offen sc1")
    a("buffer_store_dword v12, v12, s[20:23], s32 offen offset:2048 sc1")
    a.label("L_NOC2")
    a("s_and_b32 s32, s2, 31"); a("s_lshl_b32 s32, 1, s32")
    a("v_mov_b32 v16, s32")
    a("s_lshr_b32 s33, s2, 5"); a("s_lshl_b32 s33, s33, 2")
    a("s_waitcnt vmcnt(0)")
    a("buffer_atomic_or v16, v12, s[52:55], s33 offen sc1")
    a("s_mov_b64 exec, -1")
    a.label("L_NOINIT")
    a("v_and_b32 v12, 15, v0")
    a("v_lshrrev_b32 v13, 4, v0")
    a("v_lshrrev_b32 v14, 1, v12")
    a("v_xor_b32 v14, v14, v13")
    a("s_lshl_b32 s32, s30, 13")
    a("v_lshlrev_b32 v15, 7, v12")
    a("v_add_u32 v15, s32, v15")
    for kq in range(2):
        a("v_xor_b32 v16, %d, v14" % (kq << 2))
        a("v_lshlrev_b32 v16, 4, v16")
        a("v_add_u32 v%d, v15, v16" % vXb[kq])
    a("v_lshrrev_b32 v17, 2, v12")
    a("v_and_b32 v18, 3, v12")
    a("v_lshlrev_b32 v20, 3, v13")
    a("v_add_u32 v20, v20, v17")
    a("v_lshlrev_b32 v20, 7, v20")
    a("v_lshrrev_b32 v21, 1, v17")
    a("v_and_b32 v22, 1, v13")
    a("v_lshlrev_b32 v22, 1, v22")
    a("v_or_b32 v21, v21, v22")
    a("s_lshl_b32 s33, s31, 1")
    a("v_xor_b32 v21, s33, v21")
    a("v_lshlrev_b32 v21, 5, v21")
    a("v_lshlrev_b32 v22, 3, v18")
    a("v_add3_u32 v21, v21, v22, v20")
    a("v_add_u32 v%d, 0x4000, v21" % vWb[0])
    a("v_xor_b32 v%d, 32, v%d" % (vWb[1], vWb[0]))
    for q in range(2):
        a("v_mov_b32 v%d, v%d" % (vX[q], vXb[q])); a("v_mov_b32 v%d, v%d" % (vW[q], vWb[q]))
    for r in range(96): a("v_mov_b32 v%d, 0" % (ACC + r))
    a("s_mov_b32 s34, %d" % STAGE)
    a("s_mov_b32 s35, 0")
    lg = Lgkm()
    def reads(kq, st):
        ids = {}
        def rX(t):
            def f():
                a("ds_read_b128 %s, v%d offset:%d" % (vr(fX(st, t), 4), vX[kq], t * 2048)); ids["X%d" % t] = lg.issue()
            return f
        def rW(c, hf):
            def f():
                a("ds_read_b64_tr_b16 %s, v%d offset:%d" % (vr(fW(st, c) + 2 * hf, 2), vW[c & 1], (c >> 1) * 8192 + kq * 4096 + hf * 512)); ids["W%d" % c] = lg.issue()
            return f
        l = [rX(0), rW(0, 0), rW(0, 1), rX(1), rX(2), rX(3)]
        for c in range(1, 6): l += [rW(c, 0), rW(c, 1)]
        return l, ids
    def mfma(t, c, st, ids):
        lg.need(a, max(ids["X%d" % t], ids["W%d" % c]))
        d = vr(acc(t, c), 4)
        if c < 4: a("v_mfma_f32_16x16x32_bf16 %s, %s, %s, %s" % (d, vr(fW(st, c), 4), vr(fX(st, t), 4), d))
        else:     a("v_mfma_f32_16x16x32_bf16 %s, %s, %s, %s" % (d, vr(fX(st, t), 4), vr(fW(st, c), 4), d))
    order = [(t, c) for c in range(6) for t in range(4)]
    a("s_barrier")
    stamp(a, 1)
    rl, ids = reads(0, 0)
    for f in rl: f()
    a.label("L_G1LOOP")
    for kq in range(2):
        st = kq
        nrl, nids = reads(kq ^ 1, st ^ 1)
        start = 0 if kq == 0 else 4
        for n, (t, c) in enumerate(order):
            mfma(t, c, st, ids)
            if kq == 1 and n < 2:
                a("v_add_u32 v%d, s34, v%d" % (vX[n], vXb[n])); a("v_add_u32 v%d, s34, v%d" % (vW[n], vWb[n]))
            if kq == 1 and n == 3:
                lg.all(a); a("s_barrier")
            if start <= n < start + 16: nrl[n - start]()
            if kq == 1 and n == 21:
                a("s_add_u32 s34, s34, %d" % STAGE)
                a("s_cmp_eq_u32 s34, %d" % (3 * STAGE))
                a("s_cselect_b32 s34, 0, s34")
            if kq == 1 and n == 22:
                a("s_add_u32 s35, s35, 1")
                a("s_cmp_lt_u32 s35, 16")
        ids = nids
    assert lg.n - lg.done == 16, (lg.n, lg.done)
    a("s_cbranch_scc1 L_G1LOOP")
    a("s_waitcnt lgkmcnt(0)")
    stamp(a, 2)
    a("s_lshl_b32 s36, s26, 1"); a("s_add_u32 s36, s36, s31"); a("s_lshl_b32 s36, s36, 7")
    a("s_lshl_b32 s37, s25, 3"); a("s_lshl_b32 s38, s30, 2"); a("s_add_u32 s37, s37, s38")
    a("s_add_u32 s36, s36, s37"); a("s_lshl_b32 s36, s36, 10")
    a("s_add_u32 s37, s36, 0x%x" % VG_OFF)
    PK = FR
    def pk(t, s): return PK + t * 12 + s * 4
    for s in (1, 2, 0):
        for t in range(4):
            for nt in range(2):
                c = s * 2 + nt
                for hf in range(2):
                    a("v_cvt_pk_bf16_f32 v%d, v%d, v%d" % (pk(t, s) + nt * 2 + hf, acc(t, c) + 2 * hf, acc(t, c) + 2 * hf + 1))
            if s: a("buffer_store_dwordx4 %s, v1, s[20:23], %s offen offset:%d sc1" % (vr(pk(t, s), 4), ("s36", "s37")[s - 1], t * 1024))
    a("s_barrier")
    a("s_cmp_eq_u32 s31, 0")
    a("s_cselect_b32 s38, %d, %d" % (KVH[0], KVH[1]))
    a("s_lshl_b32 s39, s30, 12")
    a("s_add_u32 s38, s38, s39")
    a("v_add_u32 v12, s38, v1")
    a("v_lshlrev_b32 v13, 3, v0")
    a("v_add_u32 v13, s38, v13")
    a("s_lshl_b32 s38, s31, 13")
    a("s_add_u32 s38, s38, s39")
    a("s_add_u32 s38, s38, %d" % QL)
    a("v_add_u32 v14, s38, v1")
    for t in range(4):
        a("ds_write_b128 v12, %s offset:%d" % (vr(pk(t, 1), 4), (16 + t) * 1024))
        a("ds_write_b64 v13, %s offset:%d" % (vr(pk(t, 2), 2), 24576 + (16 + t) * 1024))
        a("ds_write_b64 v13, %s offset:%d" % (vr(pk(t, 2) + 2, 2), 24576 + (16 + t) * 1024 + 512))
        a("ds_write_b128 v14, %s offset:%d" % (vr(pk(t, 0), 4), t * 1024))
    a("s_lshl_b32 s32, s25, 4"); a("s_add_u32 s32, s32, s26"); a("s_lshl_b32 s32, s32, 7"); a("s_add_u32 s32, s32, 0x%x" % FL_OFF)
    a("s_lshl_b32 s33, s24, 2"); a("s_add_u32 s32, s32, s33")
    a("v_mov_b32 v15, 1"); a("v_mov_b32 v16, 0")
    a("s_waitcnt vmcnt(0)")
    a("s_mov_b64 exec, 1")
    a("buffer_store_dword v15, v16, s[20:23], s32 offen sc1")
    a("s_mov_b64 exec, -1")
    stamp(a, 3)
    a("s_branch L_ATT")
    a.label("L_PROD")
    a("s_sub_u32 s30, s24, 4")
    a("v_lshrrev_b32 v4, 3, v0")
    a("v_and_b32 v5, 7, v0")
    a("v_lshrrev_b32 v6, 4, v0")
    a("s_and_b32 s31, s30, 1")
    a("s_lshl_b32 s32, s31, 2")
    a("v_or_b32 v7, s32, v6")
    a("v_xor_b32 v7, v7, v5")
    a("v_lshlrev_b32 v7, 4, v7")
    a("v_lshlrev_b32 v2, 11, v4")
    a("v_add_u32 v2, v2, v7")
    a("s_lshl_b32 s32, s25, 7"); a("s_lshl_b32 s33, s30, 3"); a("s_add_u32 s32, s32, s33"); a("s_lshl_b32 s32, s32, 11")
    a("v_add_u32 v2, s32, v2")
    a("v_and_b32 v7, 1, v6")
    a("s_lshl_b32 s32, s31, 1")
    a("v_or_b32 v7, s32, v7")
    a("v_lshlrev_b32 v7, 1, v7")
    a("v_xor_b32 v7, v7, v5")
    a("v_lshlrev_b32 v7, 4, v7")
    a("v_mul_u32_u24 v3, 0x1800, v4")
    a("v_add_u32 v3, v3, v7")
    a("s_mul_i32 s32, s30, %d" % (8 * 6144)); a("s_lshl_b32 s33, s26, 7"); a("s_add_u32 s32, s32, s33")
    a("v_add_u32 v3, s32, v3")
    a("s_lshl_b32 s34, s30, 10")
    a("s_mov_b32 s35, s34")
    a("s_add_u32 s58, s34, %d" % (3 * STAGE))
    a("s_mov_b32 s59, %s" % os.environ.get("ROT", "s25"))
    a("s_lshl_b32 s36, s59, 7")
    a("s_mul_i32 s37, s59, 393216")
    def issue_stage():
        for i in range(4):
            a("s_add_u32 m0, s35, %d" % (i * 4096))
            a("s_add_u32 s38, s36, %d" % (i * 65536))
            a("buffer_load_dwordx4 v2, s[12:15], s38 offen lds")
        for s in range(3):
            for gg in range(2):
                a("s_add_u32 m0, s35, %d" % (16384 + s * 8192 + gg * 4096))
                a("s_add_u32 s38, s37, %d" % (gg * 196608 + s * 2048))
                a("buffer_load_dwordx4 v3, s[16:19], s38 offen lds")
        a("s_add_u32 s59, s59, 1"); a("s_and_b32 s59, s59, 15")
        a("s_lshl_b32 s36, s59, 7"); a("s_mul_i32 s37, s59, 393216")
        a("s_add_u32 s35, s35, %d" % STAGE)
        a("s_cmp_eq_u32 s35, s58")
        a("s_cselect_b32 s35, s34, s35")
    for _ in range(3): issue_stage()
    a("s_waitcnt vmcnt(20)")
    a("s_barrier")
    a("s_mov_b32 s60, 0")
    a.label("L_PLOOP")
    a("s_waitcnt vmcnt(10)")
    a("s_barrier")
    issue_stage()
    a("s_add_u32 s60, s60, 1")
    a("s_cmp_lt_u32 s60, 13")
    a("s_cbranch_scc1 L_PLOOP")
    a("s_waitcnt vmcnt(10)")
    a("s_barrier")
    a("s_waitcnt vmcnt(0)")
    a("s_barrier")
    a("v_and_b32 v4, 7, v0"); a("v_lshlrev_b32 v4, 2, v4")
    a("s_mov_b32 s30, %d" % SPIN_MAX)
    a.label("L_INITCHK")
    a("buffer_load_dword v5, v4, s[52:55], 0 offen sc1")
    a("s_waitcnt vmcnt(0)")
    a("v_cmp_ne_u32 vcc, -1, v5")
    a("s_cmp_eq_u64 vcc, 0")
    a("s_cbranch_scc1 L_INITOK")
    a("s_sub_u32 s30, s30, 1"); a("s_cmp_lg_u32 s30, 0")
    a("s_cbranch_scc1 L_INITCHK")
    a.label("L_INITOK")
    a("s_barrier")
    a("s_barrier")
    stamp(a, 2)
    a("s_sub_u32 s39, s24, 4")
    a("s_lshr_b32 s58, s39, 1")
    a("s_and_b32 s59, s39, 1")
    HB = 64
    for d in (2, 1):
        skip = "L_HSKIP%d" % d
        a("s_cmp_lt_u32 s25, %d" % d)
        a("s_cbranch_scc1 %s" % skip)
        a("s_sub_u32 s60, s25, %d" % d)
        a("s_lshl_b32 s32, s60, 4"); a("s_add_u32 s32, s32, s26"); a("s_lshl_b32 s32, s32, 7"); a("s_add_u32 s32, s32, 0x%x" % FL_OFF)
        a("s_lshl_b32 s33, s39, 2"); a("s_add_u32 s32, s32, s33")
        poll(a, "s32", "eq", "1", "L_HP%d" % d)
        a("s_lshl_b32 s36, s26, 1"); a("s_add_u32 s36, s36, s59"); a("s_lshl_b32 s36, s36, 7")
        a("s_lshl_b32 s37, s60, 3"); a("s_lshl_b32 s38, s58, 2"); a("s_add_u32 s37, s37, s38")
        a("s_add_u32 s36, s36, s37"); a("s_lshl_b32 s36, s36, 10")
        a("s_add_u32 s37, s36, 0x%x" % VG_OFF)
        hb = HB + (d - 1) * 32
        for t in range(4):
            a("buffer_load_dwordx4 %s, v1, s[20:23], s36 offen offset:%d sc1" % (vr(hb + t * 8, 4), t * 1024))
            a("buffer_load_dwordx4 %s, v1, s[20:23], s37 offen offset:%d sc1" % (vr(hb + t * 8 + 4, 4), t * 1024))
        a.label(skip)
    stamp(a, 3)
    a("s_cmp_eq_u32 s59, 0")
    a("s_cselect_b32 s38, %d, %d" % (KVH[0], KVH[1]))
    a("s_lshl_b32 s33, s58, 12")
    a("s_add_u32 s38, s38, s33")
    a("v_add_u32 v12, s38, v1")
    a("v_lshlrev_b32 v13, 3, v0")
    a("v_add_u32 v13, s38, v13")
    a("s_waitcnt vmcnt(0)")
    for d in (2, 1):
        skip = "L_HW%d" % d
        a("s_cmp_lt_u32 s25, %d" % d)
        a("s_cbranch_scc1 %s" % skip)
        hb = HB + (d - 1) * 32
        tb = (2 - d) * 8
        for t in range(4):
            a("ds_write_b128 v12, %s offset:%d" % (vr(hb + t * 8, 4), (tb + t) * 1024))
            a("ds_write_b64 v13, %s offset:%d" % (vr(hb + t * 8 + 4, 2), 24576 + (tb + t) * 1024))
            a("ds_write_b64 v13, %s offset:%d" % (vr(hb + t * 8 + 6, 2), 24576 + (tb + t) * 1024 + 512))
        a.label(skip)
    a.label("L_ATT")
    a("v_lshrrev_b32 v4, 3, v0"); a("v_and_b32 v5, 7, v0"); a("v_lshrrev_b32 v6, 4, v0")
    a("v_lshlrev_b32 v6, 1, v6"); a("v_xor_b32 v6, v6, v5"); a("v_lshlrev_b32 v6, 4, v6")
    a("v_lshlrev_b32 v10, 11, v4"); a("v_add_u32 v10, v10, v6")
    a("s_lshl_b32 s30, s57, 7")
    a("v_add_u32 v10, s30, v10")
    def wo_dma(par, first, count):
        base = (WOE, WOO)[par]
        for i in range(count):
            c0 = first * 4 + 8 * i
            a("s_add_u32 m0, s61, %d" % (base + c0 * 1024))
            a("s_add_u32 s33, s60, %d" % (((c0 >> 2) * 64 + 32 * par) * 2048))
            a("buffer_load_dwordx4 v10, s[44:47], s33 offen lds")
    a("s_lshl_b32 s61, s24, 10")
    a("s_lshr_b32 s60, s24, 2"); a("s_lshl_b32 s60, s60, 17")
    a("s_and_b32 s33, s24, 3"); a("s_lshl_b32 s33, s33, 14")
    a("s_add_u32 s60, s60, s33")
    wo_dma(0, 4, 6)
    QF = 16; ML = 24; MH = 28; ONE = 32; O = 36; L = 44; CC = 48; MC = 50; MX = 52; KF = 56; VF = 72; S = 96
    a("v_and_b32 v2, 15, v0")
    a("v_lshrrev_b32 v3, 4, v0"); a("v_lshlrev_b32 v3, 2, v3")
    a("v_sub_u32 v4, v2, v3")
    a("v_mov_b32 v5, 0x%x" % NEG)
    for r in range(4):
        a("v_cmp_le_i32 vcc, %d, v4" % r)
        a("v_cndmask_b32_e64 v%d, v5, 0, vcc" % (MH + r))
        a("v_cndmask_b32_e64 v%d, 0, v5, vcc" % (ML + r))
    for r in range(4): a("v_mov_b32 v%d, 0x3f803f80" % (ONE + r))
    a("v_mov_b32 v%d, 0x%x" % (CC, f32bits(CSC))); a("v_mov_b32 v%d, 0x%x" % (CC + 1, f32bits(CSC)))
    a("s_lshl_b32 s36, s24, 10")
    a("v_add_u32 v6, s36, v1")
    a("v_lshlrev_b32 v7, 3, v0"); a("v_add_u32 v7, s36, v7")
    a("v_add_u32 v6, %d, v6" % KVH[0]); a("v_add_u32 v7, %d, v7" % (KVH[0] + 24576))
    a("v_add_u32 v8, %d, v6" % (QL - KVH[0]))
    a("s_lshl_b32 s37, s25, 3"); a("s_add_u32 s37, s37, s24"); a("s_lshl_b32 s37, s37, 5")
    a("s_lshl_b32 s38, s26, 1"); a("s_add_u32 s37, s37, s38"); a("s_lshl_b32 s37, s37, 10")
    a("s_add_u32 s37, s37, 0x%x" % OG_OFF)
    a("s_lshl_b32 s38, s25, 3"); a("s_add_u32 s38, s38, s24")
    a("s_sub_i32 s38, 16, s38"); a("s_max_i32 s38, s38, 0")
    a("s_lshl_b32 s39, s25, 7"); a("s_add_u32 s39, s39, 0x%x" % C2_OFF)
    a("s_mov_b32 s58, 0")
    a("s_waitcnt lgkmcnt(0)")
    a("s_barrier")
    stamp(a, 4)
    a("ds_read_b128 %s, v8" % vr(QF, 4))
    a("ds_read_b128 %s, v8 offset:8192" % vr(QF + 4, 4))
    a.label("L_ROUND")
    lg = Lgkm(); lg.n = 2
    kid = {}
    def rdK(i):
        a("ds_read_b128 %s, v6 offset:%d" % (vr(KF + (i % 4) * 4, 4), i * 1024)); kid[i] = lg.issue()
    for i in range(3): rdK(i)
    for r in range(8): a("v_mov_b32 v%d, 0" % (O + r))
    for r in range(4): a("v_mov_b32 v%d, 0" % (L + r))
    for i in range(17):
        c0 = vr(ML, 4) if i == 0 else (vr(MH, 4) if i == 16 else "0")
        lg.need(a, kid[i])
        a("v_mfma_f32_16x16x32_bf16 %s, %s, %s, %s" % (vr(S + 4 * i, 4), vr(KF + (i % 4) * 4, 4), vr(QF, 4), c0))
        if i + 3 < 17: rdK(i + 3)
    vid = {}
    def rdV(p):
        st = VF + (p % 3) * 8
        for dt in range(2):
            for h in range(2):
                if 2 * p + h < 17:
                    a("ds_read_b64 %s, v7 offset:%d" % (vr(st + dt * 4 + h * 2, 2), (2 * p + h) * 1024 + dt * 512)); vid[(p, dt)] = lg.issue()
    rdV(0); rdV(1)
    a("s_cmp_eq_u32 s58, 0")
    a("s_cbranch_scc1 L_NOPUB0")
    a("s_waitcnt vmcnt(0)")
    a("s_barrier")
    a("s_cmp_lg_u32 s24, 0")
    a("s_cbranch_scc1 L_NOSIG0")
    a("s_mov_b64 exec, 1")
    a("v_mov_b32 v2, 1"); a("v_mov_b32 v3, 0")
    a("buffer_atomic_add v2, v3, s[20:23], s39 offen sc1")
    a("s_mov_b64 exec, -1")
    a.label("L_NOSIG0")
    wo_dma(0, 0, 2)
    wo_dma(1, 4, 6)
    a.label("L_NOPUB0")
    a("s_nop 7")
    a("s_cmp_eq_u32 s38, 0")
    a("s_cbranch_scc1 L_NOFIX")
    for i in range(16):
        for r in range(4): a("v_mov_b32 v%d, v5" % (S + 4 * i + r))
        if i < 15:
            a("s_cmp_eq_u32 s38, %d" % (i + 1))
            a("s_cbranch_scc1 L_NOFIX")
    a.label("L_NOFIX")
    for q in range(34):
        m = MX + (q % 2)
        if q < 2: a("v_max_f32 v%d, v%d, v%d" % (m, S + 2 * q, S + 2 * q + 1))
        else: a("v_max3_f32 v%d, v%d, v%d, v%d" % (m, m, S + 2 * q, S + 2 * q + 1))
    a("v_max_f32 v%d, v%d, v%d" % (MX, MX, MX + 1))
    a("v_mov_b32 v%d, v%d" % (MX + 1, MX))
    a("v_permlane32_swap_b32 v%d, v%d" % (MX, MX + 1))
    a("v_max_f32 v%d, v%d, v%d" % (MX, MX, MX + 1))
    a("v_mov_b32 v%d, v%d" % (MX + 1, MX))
    a("v_permlane16_swap_b32 v%d, v%d" % (MX, MX + 1))
    a("v_max_f32 v%d, v%d, v%d" % (MX, MX, MX + 1))
    a("v_mul_f32 v%d, v%d, v%d" % (MC, MX, CC))
    a("v_sub_f32 v%d, 0, v%d" % (MC, MC))
    a("v_mov_b32 v%d, v%d" % (MC + 1, MC))
    for p in range(9):
        b = S + 8 * p
        nv = 8 if p < 8 else 4
        for r in range(0, nv, 2):
            a("v_pk_fma_f32 %s, %s, %s, %s" % (vr(b + r, 2), vr(b + r, 2), vr(CC, 2), vr(MC, 2)))
        for r in range(nv): a("v_exp_f32 v%d, v%d" % (b + r, b + r))
        for r in range(nv // 2): a("v_cvt_pk_bf16_f32 v%d, v%d, v%d" % (b + r, b + 2 * r, b + 2 * r + 1))
        st = VF + (p % 3) * 8
        for dt in range(2):
            lg.need(a, vid[(p, dt)])
            if p < 8: a("v_mfma_f32_16x16x32_bf16 %s, %s, %s, %s" % (vr(O + 4 * dt, 4), vr(st + 4 * dt, 4), vr(b, 4), vr(O + 4 * dt, 4)))
            else:     a("v_mfma_f32_16x16x16_bf16 %s, %s, %s, %s" % (vr(O + 4 * dt, 4), vr(st + 4 * dt, 2), vr(b, 2), vr(O + 4 * dt, 4)))
        if p < 8: a("v_mfma_f32_16x16x32_bf16 %s, %s, %s, %s" % (vr(L, 4), vr(ONE, 4), vr(b, 4), vr(L, 4)))
        else:     a("v_mfma_f32_16x16x16_bf16 %s, %s, %s, %s" % (vr(L, 4), vr(ONE, 2), vr(b, 2), vr(L, 4)))
        if p + 2 < 9: rdV(p + 2)
    a("v_rcp_f32 v%d, v%d" % (MX, L))
    for r in range(8): a("v_mul_f32 v%d, v%d, v%d" % (O + r, O + r, MX))
    for r in range(4): a("v_cvt_pk_bf16_f32 v%d, v%d, v%d" % (S + r, O + 2 * r, O + 2 * r + 1))
    a("buffer_store_dwordx4 %s, v1, s[20:23], s37 offen sc1" % vr(S, 4))
    a("s_add_u32 s37, s37, 1024")
    a("v_subrev_u32 v6, %d, v6" % (KVH[0] - KVH[1])); a("v_subrev_u32 v7, %d, v7" % (KVH[0] - KVH[1]))
    for r in range(4): a("v_mov_b32 v%d, v%d" % (QF + r, QF + 4 + r))
    a("s_add_u32 s58, s58, 1")
    a("s_cmp_lt_u32 s58, 2")
    a("s_cbranch_scc1 L_ROUND")
    stamp(a, 5)
    a("s_waitcnt vmcnt(0)")
    a("s_barrier")
    a("s_cmp_lg_u32 s24, 0")
    a("s_cbranch_scc1 L_NOSIG1")
    a("s_mov_b64 exec, 1")
    a("v_mov_b32 v2, 1"); a("v_mov_b32 v3, 0")
    a("buffer_atomic_add v2, v3, s[20:23], s39 offen offset:2048 sc1")
    a("s_mov_b64 exec, -1")
    a.label("L_NOSIG1")
    wo_dma(1, 0, 2)
    stamp(a, 6)
    A2 = 16; F2 = 48; OF = 96
    a("v_and_b32 v12, 15, v0"); a("v_lshrrev_b32 v13, 4, v0")
    a("v_lshrrev_b32 v17, 2, v12"); a("v_and_b32 v18, 3, v12")
    a("v_lshlrev_b32 v19, 2, v13"); a("v_add_u32 v19, v19, v17")
    a("v_lshrrev_b32 v20, 1, v19"); a("v_and_b32 v20, 3, v20")
    a("v_lshlrev_b32 v19, 7, v19"); a("v_lshlrev_b32 v20, 5, v20"); a("v_lshlrev_b32 v18, 3, v18")
    a("v_add3_u32 v19, v19, v20, v18")
    a("s_lshr_b32 s30, s24, 2"); a("s_lshl_b32 s31, s30, 15")
    a("v_add_u32 v19, s31, v19")
    AE = [4, 5, 6, 7]; AO = [8, 9, 11, 14]
    for nt in range(4):
        a("v_xor_b32 v20, %d, v19" % (nt * 32))
        a("v_add_u32 v%d, %d, v20" % (AE[nt], WOE)); a("v_add_u32 v%d, %d, v20" % (AO[nt], WOO))
    for r in range(32): a("v_mov_b32 v%d, 0" % (A2 + r))
    a("s_lshl_b32 s32, s56, 3"); a("s_and_b32 s33, s24, 3"); a("s_lshl_b32 s33, s33, 1"); a("s_add_u32 s32, s32, s33")
    a("s_lshl_b32 s36, s32, 15")
    a("s_lshl_b32 s33, s30, 14")
    a("s_add_u32 s36, s36, s33"); a("s_add_u32 s36, s36, 0x%x" % OG_OFF)
    a("s_lshl_b32 s39, s56, 7"); a("s_add_u32 s39, s39, 0x%x" % C2_OFF)
    a("s_add_u32 s38, s39, 2048")
    def oloads(par):
        for s in range(8):
            for t in range(2):
                off = t * 32768 + (2 * s + par) * 1024
                a("s_add_u32 s33, s36, %d" % (off & ~4095))
                a("buffer_load_dwordx4 %s, v1, s[20:23], s33 offen offset:%d sc1" % (vr(OF + par * 64 + s * 8 + t * 4, 4), off & 4095))
    poll(a, "s39", "ge", "16", "L_PC0", st=34, sc=35)
    stamp(a, 7)
    oloads(0)
    lg = Lgkm()
    def wreads(par, s):
        st = s & 1
        ids = {}
        fl = []
        for nt in range(4):
            for hf in range(2):
                def f(nt=nt, hf=hf):
                    a("ds_read_b64_tr_b16 %s, v%d offset:%d" % (vr(F2 + st * 16 + nt * 4 + hf * 2, 2), (AE, AO)[par][nt], s * 4096 + hf * 2048))
                    ids[nt] = lg.issue()
                fl.append(f)
        return fl, ids
    for par in range(2):
        if par == 1:
            stamp(a, 9)
            a("s_waitcnt vmcnt(16)")
            a("s_barrier")
        rl, ids = wreads(par, 0)
        for f in rl: f()
        for s in range(8):
            st = s & 1
            if s + 1 < 8: nrl, nids = wreads(par, s + 1)
            if par == 0:
                if s < 4: a("s_waitcnt vmcnt(%d)" % (14 - 2 * s))
                elif s == 4:
                    poll(a, "s38", "ge", "16", "L_PC1", st=34, sc=35)
                    stamp(a, 8)
                    oloads(1)
            else:
                a("s_waitcnt vmcnt(%d)" % (14 - 2 * s))
            n = 0
            for nt in range(4):
                lg.need(a, ids[nt])
                for t in range(2):
                    d = vr(A2 + (t * 4 + nt) * 4, 4)
                    a("v_mfma_f32_16x16x32_bf16 %s, %s, %s, %s" % (d, vr(F2 + st * 16 + nt * 4, 4), vr(OF + par * 64 + s * 8 + t * 4, 4), d))
                    if s + 1 < 8: nrl[n]()
                    n += 1
            if s + 1 < 8: ids = nids
    stamp(a, 10)
    a("s_and_b32 s33, s24, 3"); a("s_lshl_b32 s33, s33, 13")
    a("v_add_u32 v2, s33, v1")
    a("s_nop 7")
    a("s_cmp_eq_u32 s30, 0")
    a("s_cbranch_scc1 L_RED0")
    for q in range(8): a("ds_write_b128 v2, %s offset:%d" % (vr(A2 + q * 4, 4), RED + q * 1024))
    a("s_waitcnt lgkmcnt(0)")
    a("s_barrier")
    if DIAG:
        a("s_branch L_FIN")
    else:
        a("s_endpgm")
    a.label("L_RED0")
    a("s_barrier")
    for q in range(8): a("ds_read_b128 %s, v2 offset:%d" % (vr(OF + q * 4, 4), RED + q * 1024))
    a("v_lshlrev_b32 v12, 11, v12")
    a("v_and_b32 v15, 1, v13"); a("v_lshlrev_b32 v15, 5, v15")
    a("v_lshrrev_b32 v13, 1, v13"); a("v_lshlrev_b32 v13, 4, v13")
    a("v_add3_u32 v12, v12, v15, v13")
    a("s_lshl_b32 s32, s32, 15")
    a("s_lshl_b32 s33, s57, 7"); a("s_add_u32 s32, s32, s33")
    a("s_add_u32 s33, s32, 32768")
    for q in range(8):
        a("s_waitcnt lgkmcnt(%d)" % (7 - q))
        for r in range(0, 4, 2):
            a("v_pk_add_f32 %s, %s, %s" % (vr(A2 + q * 4 + r, 2), vr(A2 + q * 4 + r, 2), vr(OF + q * 4 + r, 2)))
    for t in range(2):
        for pr in range(2):
            b = F2 + (t * 2 + pr) * 4
            for h in range(2):
                nt = pr * 2 + h
                s0 = A2 + (t * 4 + nt) * 4
                a("v_cvt_pk_bf16_f32 v%d, v%d, v%d" % (b + 2 * h, s0, s0 + 1))
                a("v_cvt_pk_bf16_f32 v%d, v%d, v%d" % (b + 2 * h + 1, s0 + 2, s0 + 3))
            a("v_permlane16_swap_b32 v%d, v%d" % (b, b + 2))
            a("v_permlane16_swap_b32 v%d, v%d" % (b + 1, b + 3))
            a("buffer_store_dwordx4 %s, v12, s[48:51], %s offen offset:%d" % (vr(b, 4), ("s32", "s33")[t], pr * 64))
    if DIAG:
        a.label("L_FIN")
        a("s_waitcnt vmcnt(0)")
        stamp(a, 11)
        stamp_flush(a)
    a.label("L_END")
    a("s_endpgm")
    a.fix_hazards()
    return a.text()

def main():
    nm = "standalone__sliding_block__prompt_kernel"
    hdr = open("standalone__sliding_block__prompt.s.ref").read().split("; Override")[0]
    out = hdr
    out += "; @launch grid=(256,1,1) block=(512,1,1) lds=163840\n"
    out += '.amdgcn_target "amdgcn-amd-amdhsa--gfx950"\n.text\n'
    out += kernel_header(nm) + build()
    out += '.section .rodata,"a"\n.p2align 6\n' + kernel_desc(nm, 240, 100, 240)
    open(sys.argv[1] if len(sys.argv) > 1 else "standalone__sliding_block__prompt.s", "w").write(out)
main()
```

```python
import sys, os, struct
from asmlib import *

DIAG = int(os.environ.get("DIAG", "0"))
KG_OFF = 0
VG_OFF = 4 << 20
OG_OFF = 8 << 20
FL_OFF = 12 << 20
C2_OFF = FL_OFF + 65536
WS_BYTES = 64 << 20
DIAG_OFF = 32 << 20
STAGE = 40960
SPIN_MAX = 200000

def f32bits(x): return struct.unpack("<I", struct.pack("<f", x))[0]
CSC = (32 ** -0.5) * 1.4426950408889634
NEG = f32bits(-1.0e30)

class Lgkm:
    def __init__(self): self.n = 0; self.done = 0
    def issue(self): self.n += 1; return self.n
    def need(self, a, idn):
        if idn <= self.done: return
        cnt = min(self.n - idn, 15)
        a("s_waitcnt lgkmcnt(%d)" % cnt); self.done = self.n - cnt
    def all(self, a):
        a("s_waitcnt lgkmcnt(0)"); self.done = self.n

def vr(b, n): return "v[%d:%d]" % (b, b + n - 1)
def srd(a, d, lo, hi, nbytes):
    a("s_mov_b32 s%d, s%d" % (d, lo)); a("s_mov_b32 s%d, s%d" % (d + 1, hi))
    a("s_mov_b32 s%d, 0x%x" % (d + 2, nbytes)); a("s_mov_b32 s%d, 0x00020000" % (d + 3))

SB = 64
NSLOT = 16
def stamp(a, slot):
    if not DIAG: return
    a("s_memrealtime s[%d:%d]" % (SB + 2 * slot, SB + 2 * slot + 1))
    a("s_waitcnt lgkmcnt(0)")
def stamp_flush(a):
    if not DIAG: return
    if DIAG == 2:
        a("s_mov_b64 exec, 1")
        a("v_mov_b32 v4, 0")
        a("s_not_b32 s62, s%d" % SB)
        a("v_mov_b32 v2, s62")
        a("buffer_atomic_umax v2, v4, s[52:55], 0 offen offset:32 sc1")
        for n, sl in enumerate([0, 1, 2, 4, 6, 8, 11]):
            a("v_mov_b32 v3, s%d" % (SB + 2 * sl))
            a("buffer_atomic_umax v3, v4, s[52:55], 0 offen offset:%d sc1" % (36 + 4 * n))
            a("s_nop 1")
        a("s_mov_b64 exec, -1")
        return
    t = 62
    a("s_lshl_b32 s%d, s2, 3" % t); a("s_add_u32 s%d, s%d, s24" % (t, t)); a("s_lshl_b32 s%d, s%d, 7" % (t, t))
    a("s_add_u32 s%d, s%d, 0x%x" % (t, t, DIAG_OFF))
    a("v_mov_b32 v4, 0")
    for sl in range(NSLOT):
        a("v_mov_b32 v2, s%d" % (SB + 2 * sl)); a("v_mov_b32 v3, s%d" % (SB + 2 * sl + 1))
        a("buffer_store_dwordx2 v[2:3], v4, s[20:23], s%d offen offset:%d" % (t, sl * 8))
        a("s_nop 1")


def poll(a, soff, cmp_op, val, name, srdn=20, vt=2, vz=3, st=29, sc=30):
    a("v_mov_b32 v%d, 0" % vz)
    a("s_mov_b32 s%d, %d" % (sc, SPIN_MAX))
    a.label(name)
    a("buffer_load_dword v%d, v%d, s[%d:%d], %s offen sc1" % (vt, vz, srdn, srdn + 3, soff))
    a("s_waitcnt vmcnt(0)")
    a("v_readfirstlane_b32 s%d, v%d" % (st, vt))
    a("s_cmp_%s_u32 s%d, %s" % (cmp_op, st, val))
    a("s_cbranch_scc1 %s_ok" % name)
    a("s_sub_u32 s%d, s%d, 1" % (sc, sc))
    a("s_cmp_lg_u32 s%d, 0" % sc)
    a("s_cbranch_scc1 %s" % name)
    a.label(name + "_ok")

KVH = [49152, 0]
QL = 98304
WOE = 98304
WOO = 32768
RED = 0

def build():
    a = Asm()
    a("s_cmp_ge_u32 s2, 256")
    a("s_cbranch_scc1 L_END")
    if DIAG:
        for sl in range(NSLOT): a("s_mov_b64 s[%d:%d], 0" % (SB + 2 * sl, SB + 2 * sl + 1))
    stamp(a, 0)
    a("s_load_dwordx8 s[4:11], s[0:1], 0")
    a("s_load_dwordx4 s[40:43], s[0:1], 32")
    a("v_lshrrev_b32 v1, 6, v0")
    a("v_readfirstlane_b32 s24, v1")
    a("v_and_b32 v0, 63, v0")
    a("s_and_b32 s27, s2, 7")
    a("s_lshr_b32 s28, s2, 3")
    a("s_and_b32 s25, s27, 1"); a("s_lshl_b32 s25, s25, 3"); a("s_and_b32 s29, s28, 7"); a("s_add_u32 s25, s25, s29")
    a("s_lshr_b32 s26, s27, 1"); a("s_lshl_b32 s26, s26, 2"); a("s_lshr_b32 s29, s28, 3"); a("s_add_u32 s26, s26, s29")
    a("s_and_b32 s56, s27, 3"); a("s_lshl_b32 s56, s56, 2"); a("s_and_b32 s29, s28, 3"); a("s_add_u32 s56, s56, s29")
    a("s_lshr_b32 s57, s27, 2"); a("s_lshl_b32 s57, s57, 3"); a("s_lshr_b32 s29, s28, 2"); a("s_add_u32 s57, s57, s29")
    a("v_lshlrev_b32 v1, 4, v0")
    a("s_waitcnt lgkmcnt(0)")
    srd(a, 12, 4, 5, 2048 * 1024 * 2)
    srd(a, 16, 6, 7, 1024 * 3072 * 2)
    srd(a, 20, 42, 43, WS_BYTES)
    srd(a, 44, 8, 9, 1024 * 1024 * 2)
    srd(a, 48, 10, 11, 2048 * 1024 * 2)
    srd(a, 52, 40, 41, 256)
    a("s_cmp_ge_u32 s24, 4")
    a("s_cbranch_scc1 L_PROD")
    ACC = 64; FR = 160
    vXb = [4, 5]; vWb = [6, 7]; vX = [8, 9]; vW = [10, 11]
    def fX(st, t): return FR + st * 40 + t * 4
    def fW(st, c): return FR + st * 40 + 16 + c * 4
    def acc(t, c): return ACC + (t * 6 + c) * 4
    a("s_lshr_b32 s30, s24, 1")
    a("s_and_b32 s31, s24, 1")
    a("s_cmp_lg_u32 s24, 0")
    a("s_cbranch_scc1 L_NOINIT")
    a("s_mov_b64 exec, 1")
    for r in range(4): a("v_mov_b32 v%d, 0" % (12 + r))
    a("s_lshl_b32 s32, s25, 4"); a("s_add_u32 s32, s32, s26"); a("s_lshl_b32 s32, s32, 7"); a("s_add_u32 s32, s32, 0x%x" % FL_OFF)
    a("buffer_store_dwordx4 v[12:15], v12, s[20:23], s32 offen sc1")
    a("s_cmp_lg_u32 s26, 0")
    a("s_cbranch_scc1 L_NOC2")
    a("s_lshl_b32 s32, s25, 7"); a("s_add_u32 s32, s32, 0x%x" % C2_OFF)
    a("buffer_store_dword v12, v12, s[20:23], s32 offen sc1")
    a("buffer_store_dword v12, v12, s[20:23], s32 offen offset:2048 sc1")
    a.label("L_NOC2")
    a("s_and_b32 s32, s2, 31"); a("s_lshl_b32 s32, 1, s32")
    a("v_mov_b32 v16, s32")
    a("s_lshr_b32 s33, s2, 5"); a("s_lshl_b32 s33, s33, 2")
    a("s_waitcnt vmcnt(0)")
    a("buffer_atomic_or v16, v12, s[52:55], s33 offen sc1")
    a("s_mov_b64 exec, -1")
    a.label("L_NOINIT")
    a("v_and_b32 v12, 15, v0")
    a("v_lshrrev_b32 v13, 4, v0")
    a("v_lshrrev_b32 v14, 1, v12")
    a("v_xor_b32 v14, v14, v13")
    a("s_lshl_b32 s32, s30, 13")
    a("v_lshlrev_b32 v15, 7, v12")
    a("v_add_u32 v15, s32, v15")
    for kq in range(2):
        a("v_xor_b32 v16, %d, v14" % (kq << 2))
        a("v_lshlrev_b32 v16, 4, v16")
        a("v_add_u32 v%d, v15, v16" % vXb[kq])
    a("v_lshrrev_b32 v17, 2, v12")
    a("v_and_b32 v18, 3, v12")
    a("v_lshlrev_b32 v20, 3, v13")
    a("v_add_u32 v20, v20, v17")
    a("v_lshlrev_b32 v20, 7, v20")
    a("v_lshrrev_b32 v21, 1, v17")
    a("v_and_b32 v22, 1, v13")
    a("v_lshlrev_b32 v22, 1, v22")
    a("v_or_b32 v21, v21, v22")
    a("s_lshl_b32 s33, s31, 1")
    a("v_xor_b32 v21, s33, v21")
    a("v_lshlrev_b32 v21, 5, v21")
    a("v_lshlrev_b32 v22, 3, v18")
    a("v_add3_u32 v21, v21, v22, v20")
    a("v_add_u32 v%d, 0x4000, v21" % vWb[0])
    a("v_xor_b32 v%d, 32, v%d" % (vWb[1], vWb[0]))
    for q in range(2):
        a("v_mov_b32 v%d, v%d" % (vX[q], vXb[q])); a("v_mov_b32 v%d, v%d" % (vW[q], vWb[q]))
    for r in range(96): a("v_mov_b32 v%d, 0" % (ACC + r))
    a("s_mov_b32 s34, %d" % STAGE)
    a("s_mov_b32 s35, 0")
    lg = Lgkm()
    def reads(kq, st):
        ids = {}
        def rX(t):
            def f():
                a("ds_read_b128 %s, v%d offset:%d" % (vr(fX(st, t), 4), vX[kq], t * 2048)); ids["X%d" % t] = lg.issue()
            return f
        def rW(c, hf):
            def f():
                a("ds_read_b64_tr_b16 %s, v%d offset:%d" % (vr(fW(st, c) + 2 * hf, 2), vW[c & 1], (c >> 1) * 8192 + kq * 4096 + hf * 512)); ids["W%d" % c] = lg.issue()
            return f
        l = [rX(0), rW(0, 0), rW(0, 1), rX(1), rX(2), rX(3)]
        for c in range(1, 6): l += [rW(c, 0), rW(c, 1)]
        return l, ids
    def mfma(t, c, st, ids):
        lg.need(a, max(ids["X%d" % t], ids["W%d" % c]))
        d = vr(acc(t, c), 4)
        if c < 4: a("v_mfma_f32_16x16x32_bf16 %s, %s, %s, %s" % (d, vr(fW(st, c), 4), vr(fX(st, t), 4), d))
        else:     a("v_mfma_f32_16x16x32_bf16 %s, %s, %s, %s" % (d, vr(fX(st, t), 4), vr(fW(st, c), 4), d))
    order = [(t, c) for c in range(6) for t in range(4)]
    a("s_barrier")
    stamp(a, 1)
    rl, ids = reads(0, 0)
    for f in rl: f()
    a.label("L_G1LOOP")
    for kq in range(2):
        st = kq
        nrl, nids = reads(kq ^ 1, st ^ 1)
        start = 0 if kq == 0 else 4
        for n, (t, c) in enumerate(order):
            mfma(t, c, st, ids)
            if kq == 1 and n < 2:
                a("v_add_u32 v%d, s34, v%d" % (vX[n], vXb[n])); a("v_add_u32 v%d, s34, v%d" % (vW[n], vWb[n]))
            if kq == 1 and n == 3:
                lg.all(a); a("s_barrier")
            if start <= n < start + 16: nrl[n - start]()
            if kq == 1 and n == 21:
                a("s_add_u32 s34, s34, %d" % STAGE)
                a("s_cmp_eq_u32 s34, %d" % (3 * STAGE))
                a("s_cselect_b32 s34, 0, s34")
            if kq == 1 and n == 22:
                a("s_add_u32 s35, s35, 1")
                a("s_cmp_lt_u32 s35, 16")
        ids = nids
    assert lg.n - lg.done == 16, (lg.n, lg.done)
    a("s_cbranch_scc1 L_G1LOOP")
    a("s_waitcnt lgkmcnt(0)")
    stamp(a, 2)
    a("s_lshl_b32 s36, s26, 1"); a("s_add_u32 s36, s36, s31"); a("s_lshl_b32 s36, s36, 7")
    a("s_lshl_b32 s37, s25, 3"); a("s_lshl_b32 s38, s30, 2"); a("s_add_u32 s37, s37, s38")
    a("s_add_u32 s36, s36, s37"); a("s_lshl_b32 s36, s36, 10")
    a("s_add_u32 s37, s36, 0x%x" % VG_OFF)
    PK = FR
    def pk(t, s): return PK + t * 12 + s * 4
    for s in (1, 2, 0):
        for t in range(4):
            for nt in range(2):
                c = s * 2 + nt
                for hf in range(2):
                    a("v_cvt_pk_bf16_f32 v%d, v%d, v%d" % (pk(t, s) + nt * 2 + hf, acc(t, c) + 2 * hf, acc(t, c) + 2 * hf + 1))
            if s: a("buffer_store_dwordx4 %s, v1, s[20:23], %s offen offset:%d sc1" % (vr(pk(t, s), 4), ("s36", "s37")[s - 1], t * 1024))
    a("s_barrier")
    a("s_cmp_eq_u32 s31, 0")
    a("s_cselect_b32 s38, %d, %d" % (KVH[0], KVH[1]))
    a("s_lshl_b32 s39, s30, 12")
    a("s_add_u32 s38, s38, s39")
    a("v_add_u32 v12, s38, v1")
    a("v_lshlrev_b32 v13, 3, v0")
    a("v_add_u32 v13, s38, v13")
    a("s_lshl_b32 s38, s31, 13")
    a("s_add_u32 s38, s38, s39")
    a("s_add_u32 s38, s38, %d" % QL)
    a("v_add_u32 v14, s38, v1")
    for t in range(4):
        a("ds_write_b128 v12, %s offset:%d" % (vr(pk(t, 1), 4), (16 + t) * 1024))
        a("ds_write_b64 v13, %s offset:%d" % (vr(pk(t, 2), 2), 24576 + (16 + t) * 1024))
        a("ds_write_b64 v13, %s offset:%d" % (vr(pk(t, 2) + 2, 2), 24576 + (16 + t) * 1024 + 512))
        a("ds_write_b128 v14, %s offset:%d" % (vr(pk(t, 0), 4), t * 1024))
    a("s_lshl_b32 s32, s25, 4"); a("s_add_u32 s32, s32, s26"); a("s_lshl_b32 s32, s32, 7"); a("s_add_u32 s32, s32, 0x%x" % FL_OFF)
    a("s_lshl_b32 s33, s24, 2"); a("s_add_u32 s32, s32, s33")
    a("v_mov_b32 v15, 1"); a("v_mov_b32 v16, 0")
    a("s_waitcnt vmcnt(0)")
    a("s_mov_b64 exec, 1")
    a("buffer_store_dword v15, v16, s[20:23], s32 offen sc1")
    a("s_mov_b64 exec, -1")
    stamp(a, 3)
    a("s_branch L_ATT")
    a.label("L_PROD")
    a("s_sub_u32 s30, s24, 4")
    a("v_lshrrev_b32 v4, 3, v0")
    a("v_and_b32 v5, 7, v0")
    a("v_lshrrev_b32 v6, 4, v0")
    a("s_and_b32 s31, s30, 1")
    a("s_lshl_b32 s32, s31, 2")
    a("v_or_b32 v7, s32, v6")
    a("v_xor_b32 v7, v7, v5")
    a("v_lshlrev_b32 v7, 4, v7")
    a("v_lshlrev_b32 v2, 11, v4")
    a("v_add_u32 v2, v2, v7")
    a("s_lshl_b32 s32, s25, 7"); a("s_lshl_b32 s33, s30, 3"); a("s_add_u32 s32, s32, s33"); a("s_lshl_b32 s32, s32, 11")
    a("v_add_u32 v2, s32, v2")
    a("v_and_b32 v7, 1, v6")
    a("s_lshl_b32 s32, s31, 1")
    a("v_or_b32 v7, s32, v7")
    a("v_lshlrev_b32 v7, 1, v7")
    a("v_xor_b32 v7, v7, v5")
    a("v_lshlrev_b32 v7, 4, v7")
    a("v_mul_u32_u24 v3, 0x1800, v4")
    a("v_add_u32 v3, v3, v7")
    a("s_mul_i32 s32, s30, %d" % (8 * 6144)); a("s_lshl_b32 s33, s26, 7"); a("s_add_u32 s32, s32, s33")
    a("v_add_u32 v3, s32, v3")
    a("s_lshl_b32 s34, s30, 10")
    a("s_mov_b32 s35, s34")
    a("s_add_u32 s58, s34, %d" % (3 * STAGE))
    a("s_mov_b32 s59, %s" % os.environ.get("ROT", "s25"))
    a("s_lshl_b32 s36, s59, 7")
    a("s_mul_i32 s37, s59, 393216")
    def issue_stage():
        for i in range(4):
            a("s_add_u32 m0, s35, %d" % (i * 4096))
            a("s_add_u32 s38, s36, %d" % (i * 65536))
            a("buffer_load_dwordx4 v2, s[12:15], s38 offen lds")
        for s in range(3):
            for gg in range(2):
                a("s_add_u32 m0, s35, %d" % (16384 + s * 8192 + gg * 4096))
                a("s_add_u32 s38, s37, %d" % (gg * 196608 + s * 2048))
                a("buffer_load_dwordx4 v3, s[16:19], s38 offen lds")
        a("s_add_u32 s59, s59, 1"); a("s_and_b32 s59, s59, 15")
        a("s_lshl_b32 s36, s59, 7"); a("s_mul_i32 s37, s59, 393216")
        a("s_add_u32 s35, s35, %d" % STAGE)
        a("s_cmp_eq_u32 s35, s58")
        a("s_cselect_b32 s35, s34, s35")
    for _ in range(3): issue_stage()
    a("s_waitcnt vmcnt(20)")
    a("s_barrier")
    a("s_mov_b32 s60, 0")
    a.label("L_PLOOP")
    a("s_waitcnt vmcnt(10)")
    a("s_barrier")
    issue_stage()
    a("s_add_u32 s60, s60, 1")
    a("s_cmp_lt_u32 s60, 13")
    a("s_cbranch_scc1 L_PLOOP")
    a("s_waitcnt vmcnt(10)")
    a("s_barrier")
    a("s_waitcnt vmcnt(0)")
    a("s_barrier")
    a("v_and_b32 v4, 7, v0"); a("v_lshlrev_b32 v4, 2, v4")
    a("s_mov_b32 s30, %d" % SPIN_MAX)
    a.label("L_INITCHK")
    a("buffer_load_dword v5, v4, s[52:55], 0 offen sc1")
    a("s_waitcnt vmcnt(0)")
    a("v_cmp_ne_u32 vcc, -1, v5")
    a("s_cmp_eq_u64 vcc, 0")
    a("s_cbranch_scc1 L_INITOK")
    a("s_sub_u32 s30, s30, 1"); a("s_cmp_lg_u32 s30, 0")
    a("s_cbranch_scc1 L_INITCHK")
    a.label("L_INITOK")
    a("s_barrier")
    a("s_barrier")
    stamp(a, 2)
    a("s_sub_u32 s39, s24, 4")
    a("s_lshr_b32 s58, s39, 1")
    a("s_and_b32 s59, s39, 1")
    HB = 64
    for d in (2, 1):
        skip = "L_HSKIP%d" % d
        a("s_cmp_lt_u32 s25, %d" % d)
        a("s_cbranch_scc1 %s" % skip)
        a("s_sub_u32 s60, s25, %d" % d)
        a("s_lshl_b32 s32, s60, 4"); a("s_add_u32 s32, s32, s26"); a("s_lshl_b32 s32, s32, 7"); a("s_add_u32 s32, s32, 0x%x" % FL_OFF)
        a("s_lshl_b32 s33, s39, 2"); a("s_add_u32 s32, s32, s33")
        poll(a, "s32", "eq", "1", "L_HP%d" % d)
        a("s_lshl_b32 s36, s26, 1"); a("s_add_u32 s36, s36, s59"); a("s_lshl_b32 s36, s36, 7")
        a("s_lshl_b32 s37, s60, 3"); a("s_lshl_b32 s38, s58, 2"); a("s_add_u32 s37, s37, s38")
        a("s_add_u32 s36, s36, s37"); a("s_lshl_b32 s36, s36, 10")
        a("s_add_u32 s37, s36, 0x%x" % VG_OFF)
        hb = HB + (d - 1) * 32
        for t in range(4):
            a("buffer_load_dwordx4 %s, v1, s[20:23], s36 offen offset:%d sc1" % (vr(hb + t * 8, 4), t * 1024))
            a("buffer_load_dwordx4 %s, v1, s[20:23], s37 offen offset:%d sc1" % (vr(hb + t * 8 + 4, 4), t * 1024))
        a.label(skip)
    stamp(a, 3)
    a("s_cmp_eq_u32 s59, 0")
    a("s_cselect_b32 s38, %d, %d" % (KVH[0], KVH[1]))
    a("s_lshl_b32 s33, s58, 12")
    a("s_add_u32 s38, s38, s33")
    a("v_add_u32 v12, s38, v1")
    a("v_lshlrev_b32 v13, 3, v0")
    a("v_add_u32 v13, s38, v13")
    a("s_waitcnt vmcnt(0)")
    for d in (2, 1):
        skip = "L_HW%d" % d
        a("s_cmp_lt_u32 s25, %d" % d)
        a("s_cbranch_scc1 %s" % skip)
        hb = HB + (d - 1) * 32
        tb = (2 - d) * 8
        for t in range(4):
            a("ds_write_b128 v12, %s offset:%d" % (vr(hb + t * 8, 4), (tb + t) * 1024))
            a("ds_write_b64 v13, %s offset:%d" % (vr(hb + t * 8 + 4, 2), 24576 + (tb + t) * 1024))
            a("ds_write_b64 v13, %s offset:%d" % (vr(hb + t * 8 + 6, 2), 24576 + (tb + t) * 1024 + 512))
        a.label(skip)
    a.label("L_ATT")
    a("v_lshrrev_b32 v4, 3, v0"); a("v_and_b32 v5, 7, v0"); a("v_lshrrev_b32 v6, 4, v0")
    a("v_lshlrev_b32 v6, 1, v6"); a("v_xor_b32 v6, v6, v5"); a("v_lshlrev_b32 v6, 4, v6")
    a("v_lshlrev_b32 v10, 11, v4"); a("v_add_u32 v10, v10, v6")
    a("s_lshl_b32 s30, s57, 7")
    a("v_add_u32 v10, s30, v10")
    def wo_dma(par, first, count):
        base = (WOE, WOO)[par]
        for i in range(count):
            c0 = first * 4 + 8 * i
            a("s_add_u32 m0, s61, %d" % (base + c0 * 1024))
            a("s_add_u32 s33, s60, %d" % (((c0 >> 2) * 64 + 32 * par) * 2048))
            a("buffer_load_dwordx4 v10, s[44:47], s33 offen lds")
    a("s_lshl_b32 s61, s24, 10")
    a("s_lshr_b32 s60, s24, 2"); a("s_lshl_b32 s60, s60, 17")
    a("s_and_b32 s33, s24, 3"); a("s_lshl_b32 s33, s33, 14")
    a("s_add_u32 s60, s60, s33")
    wo_dma(0, 4, 6)
    QF = 16; ML = 24; MH = 28; ONE = 32; O = 36; L = 44; CC = 48; MC = 50; MX = 52; KF = 56; VF = 72; S = 96
    a("v_and_b32 v2, 15, v0")
    a("v_lshrrev_b32 v3, 4, v0"); a("v_lshlrev_b32 v3, 2, v3")
    a("v_sub_u32 v4, v2, v3")
    a("v_mov_b32 v5, 0x%x" % NEG)
    for r in range(4):
        a("v_cmp_le_i32 vcc, %d, v4" % r)
        a("v_cndmask_b32_e64 v%d, v5, 0, vcc" % (MH + r))
        a("v_cndmask_b32_e64 v%d, 0, v5, vcc" % (ML + r))
    for r in range(4): a("v_mov_b32 v%d, 0x3f803f80" % (ONE + r))
    a("v_mov_b32 v%d, 0x%x" % (CC, f32bits(CSC))); a("v_mov_b32 v%d, 0x%x" % (CC + 1, f32bits(CSC)))
    a("s_lshl_b32 s36, s24, 10")
    a("v_add_u32 v6, s36, v1")
    a("v_lshlrev_b32 v7, 3, v0"); a("v_add_u32 v7, s36, v7")
    a("v_add_u32 v6, %d, v6" % KVH[0]); a("v_add_u32 v7, %d, v7" % (KVH[0] + 24576))
    a("v_add_u32 v8, %d, v6" % (QL - KVH[0]))
    a("s_lshl_b32 s37, s25, 3"); a("s_add_u32 s37, s37, s24"); a("s_lshl_b32 s37, s37, 5")
    a("s_lshl_b32 s38, s26, 1"); a("s_add_u32 s37, s37, s38"); a("s_lshl_b32 s37, s37, 10")
    a("s_add_u32 s37, s37, 0x%x" % OG_OFF)
    a("s_lshl_b32 s38, s25, 3"); a("s_add_u32 s38, s38, s24")
    a("s_sub_i32 s38, 16, s38"); a("s_max_i32 s38, s38, 0")
    a("s_lshl_b32 s39, s25, 7"); a("s_add_u32 s39, s39, 0x%x" % C2_OFF)
    a("s_mov_b32 s58, 0")
    a("s_waitcnt lgkmcnt(0)")
    a("s_barrier")
    stamp(a, 4)
    a("ds_read_b128 %s, v8" % vr(QF, 4))
    a("ds_read_b128 %s, v8 offset:8192" % vr(QF + 4, 4))
    a.label("L_ROUND")
    lg = Lgkm(); lg.n = 2
    kid = {}
    def rdK(i):
        a("ds_read_b128 %s, v6 offset:%d" % (vr(KF + (i % 4) * 4, 4), i * 1024)); kid[i] = lg.issue()
    for i in range(3): rdK(i)
    for r in range(8): a("v_mov_b32 v%d, 0" % (O + r))
    for r in range(4): a("v_mov_b32 v%d, 0" % (L + r))
    for i in range(17):
        c0 = vr(ML, 4) if i == 0 else (vr(MH, 4) if i == 16 else "0")
        lg.need(a, kid[i])
        a("v_mfma_f32_16x16x32_bf16 %s, %s, %s, %s" % (vr(S + 4 * i, 4), vr(KF + (i % 4) * 4, 4), vr(QF, 4), c0))
        if i + 3 < 17: rdK(i + 3)
    vid = {}
    def rdV(p):
        st = VF + (p % 3) * 8
        for dt in range(2):
            for h in range(2):
                if 2 * p + h < 17:
                    a("ds_read_b64 %s, v7 offset:%d" % (vr(st + dt * 4 + h * 2, 2), (2 * p + h) * 1024 + dt * 512)); vid[(p, dt)] = lg.issue()
    rdV(0); rdV(1)
    a("s_cmp_eq_u32 s58, 0")
    a("s_cbranch_scc1 L_NOPUB0")
    a("s_waitcnt vmcnt(0)")
    a("s_barrier")
    a("s_cmp_lg_u32 s24, 0")
    a("s_cbranch_scc1 L_NOSIG0")
    a("s_mov_b64 exec, 1")
    a("v_mov_b32 v2, 1"); a("v_mov_b32 v3, 0")
    a("buffer_atomic_add v2, v3, s[20:23], s39 offen sc1")
    a("s_mov_b64 exec, -1")
    a.label("L_NOSIG0")
    wo_dma(0, 0, 2)
    wo_dma(1, 4, 6)
    a.label("L_NOPUB0")
    a("s_nop 7")
    a("s_cmp_eq_u32 s38, 0")
    a("s_cbranch_scc1 L_NOFIX")
    for i in range(16):
        for r in range(4): a("v_mov_b32 v%d, v5" % (S + 4 * i + r))
        if i < 15:
            a("s_cmp_eq_u32 s38, %d" % (i + 1))
            a("s_cbranch_scc1 L_NOFIX")
    a.label("L_NOFIX")
    for q in range(34):
        m = MX + (q % 2)
        if q < 2: a("v_max_f32 v%d, v%d, v%d" % (m, S + 2 * q, S + 2 * q + 1))
        else: a("v_max3_f32 v%d, v%d, v%d, v%d" % (m, m, S + 2 * q, S + 2 * q + 1))
    a("v_max_f32 v%d, v%d, v%d" % (MX, MX, MX + 1))
    a("v_mov_b32 v%d, v%d" % (MX + 1, MX))
    a("v_permlane32_swap_b32 v%d, v%d" % (MX, MX + 1))
    a("v_max_f32 v%d, v%d, v%d" % (MX, MX, MX + 1))
    a("v_mov_b32 v%d, v%d" % (MX + 1, MX))
    a("v_permlane16_swap_b32 v%d, v%d" % (MX, MX + 1))
    a("v_max_f32 v%d, v%d, v%d" % (MX, MX, MX + 1))
    a("v_mul_f32 v%d, v%d, v%d" % (MC, MX, CC))
    a("v_sub_f32 v%d, 0, v%d" % (MC, MC))
    a("v_mov_b32 v%d, v%d" % (MC + 1, MC))
    for p in range(9):
        b = S + 8 * p
        nv = 8 if p < 8 else 4
        for r in range(0, nv, 2):
            a("v_pk_fma_f32 %s, %s, %s, %s" % (vr(b + r, 2), vr(b + r, 2), vr(CC, 2), vr(MC, 2)))
        for r in range(nv): a("v_exp_f32 v%d, v%d" % (b + r, b + r))
        for r in range(nv // 2): a("v_cvt_pk_bf16_f32 v%d, v%d, v%d" % (b + r, b + 2 * r, b + 2 * r + 1))
        st = VF + (p % 3) * 8
        for dt in range(2):
            lg.need(a, vid[(p, dt)])
            if p < 8: a("v_mfma_f32_16x16x32_bf16 %s, %s, %s, %s" % (vr(O + 4 * dt, 4), vr(st + 4 * dt, 4), vr(b, 4), vr(O + 4 * dt, 4)))
            else:     a("v_mfma_f32_16x16x16_bf16 %s, %s, %s, %s" % (vr(O + 4 * dt, 4), vr(st + 4 * dt, 2), vr(b, 2), vr(O + 4 * dt, 4)))
        if p < 8: a("v_mfma_f32_16x16x32_bf16 %s, %s, %s, %s" % (vr(L, 4), vr(ONE, 4), vr(b, 4), vr(L, 4)))
        else:     a("v_mfma_f32_16x16x16_bf16 %s, %s, %s, %s" % (vr(L, 4), vr(ONE, 2), vr(b, 2), vr(L, 4)))
        if p + 2 < 9: rdV(p + 2)
    a("v_rcp_f32 v%d, v%d" % (MX, L))
    for r in range(8): a("v_mul_f32 v%d, v%d, v%d" % (O + r, O + r, MX))
    for r in range(4): a("v_cvt_pk_bf16_f32 v%d, v%d, v%d" % (S + r, O + 2 * r, O + 2 * r + 1))
    a("buffer_store_dwordx4 %s, v1, s[20:23], s37 offen sc1" % vr(S, 4))
    a("s_add_u32 s37, s37, 1024")
    a("v_subrev_u32 v6, %d, v6" % (KVH[0] - KVH[1])); a("v_subrev_u32 v7, %d, v7" % (KVH[0] - KVH[1]))
    for r in range(4): a("v_mov_b32 v%d, v%d" % (QF + r, QF + 4 + r))
    a("s_add_u32 s58, s58, 1")
    a("s_cmp_lt_u32 s58, 2")
    a("s_cbranch_scc1 L_ROUND")
    stamp(a, 5)
    a("s_waitcnt vmcnt(0)")
    a("s_barrier")
    a("s_cmp_lg_u32 s24, 0")
    a("s_cbranch_scc1 L_NOSIG1")
    a("s_mov_b64 exec, 1")
    a("v_mov_b32 v2, 1"); a("v_mov_b32 v3, 0")
    a("buffer_atomic_add v2, v3, s[20:23], s39 offen offset:2048 sc1")
    a("s_mov_b64 exec, -1")
    a.label("L_NOSIG1")
    wo_dma(1, 0, 2)
    stamp(a, 6)
    A2 = 16; F2 = 48; OF = 96
    a("v_and_b32 v12, 15, v0"); a("v_lshrrev_b32 v13, 4, v0")
    a("v_lshrrev_b32 v17, 2, v12"); a("v_and_b32 v18, 3, v12")
    a("v_lshlrev_b32 v19, 2, v13"); a("v_add_u32 v19, v19, v17")
    a("v_lshrrev_b32 v20, 1, v19"); a("v_and_b32 v20, 3, v20")
    a("v_lshlrev_b32 v19, 7, v19"); a("v_lshlrev_b32 v20, 5, v20"); a("v_lshlrev_b32 v18, 3, v18")
    a("v_add3_u32 v19, v19, v20, v18")
    a("s_lshr_b32 s30, s24, 2"); a("s_lshl_b32 s31, s30, 15")
    a("v_add_u32 v19, s31, v19")
    AE = [4, 5, 6, 7]; AO = [8, 9, 11, 14]
    for nt in range(4):
        a("v_xor_b32 v20, %d, v19" % (nt * 32))
        a("v_add_u32 v%d, %d, v20" % (AE[nt], WOE)); a("v_add_u32 v%d, %d, v20" % (AO[nt], WOO))
    for r in range(32): a("v_mov_b32 v%d, 0" % (A2 + r))
    a("s_lshl_b32 s32, s56, 3"); a("s_and_b32 s33, s24, 3"); a("s_lshl_b32 s33, s33, 1"); a("s_add_u32 s32, s32, s33")
    a("s_lshl_b32 s36, s32, 15")
    a("s_lshl_b32 s33, s30, 14")
    a("s_add_u32 s36, s36, s33"); a("s_add_u32 s36, s36, 0x%x" % OG_OFF)
    a("s_lshl_b32 s39, s56, 7"); a("s_add_u32 s39, s39, 0x%x" % C2_OFF)
    a("s_add_u32 s38, s39, 2048")
    def oloads(par):
        for s in range(8):
            for t in range(2):
                off = t * 32768 + (2 * s + par) * 1024
                a("s_add_u32 s33, s36, %d" % (off & ~4095))
                a("buffer_load_dwordx4 %s, v1, s[20:23], s33 offen offset:%d sc1" % (vr(OF + par * 64 + s * 8 + t * 4, 4), off & 4095))
    poll(a, "s39", "ge", "16", "L_PC0", st=34, sc=35)
    stamp(a, 7)
    oloads(0)
    lg = Lgkm()
    def wreads(par, s):
        st = s & 1
        ids = {}
        fl = []
        for nt in range(4):
            for hf in range(2):
                def f(nt=nt, hf=hf):
                    a("ds_read_b64_tr_b16 %s, v%d offset:%d" % (vr(F2 + st * 16 + nt * 4 + hf * 2, 2), (AE, AO)[par][nt], s * 4096 + hf * 2048))
                    ids[nt] = lg.issue()
                fl.append(f)
        return fl, ids
    for par in range(2):
        if par == 1:
            stamp(a, 9)
            a("s_waitcnt vmcnt(16)")
            a("s_barrier")
        rl, ids = wreads(par, 0)
        for f in rl: f()
        for s in range(8):
            st = s & 1
            if s + 1 < 8: nrl, nids = wreads(par, s + 1)
            if par == 0:
                if s < 4: a("s_waitcnt vmcnt(%d)" % (14 - 2 * s))
                elif s == 4:
                    poll(a, "s38", "ge", "16", "L_PC1", st=34, sc=35)
                    stamp(a, 8)
                    oloads(1)
            else:
                a("s_waitcnt vmcnt(%d)" % (14 - 2 * s))
            n = 0
            for nt in range(4):
                lg.need(a, ids[nt])
                for t in range(2):
                    d = vr(A2 + (t * 4 + nt) * 4, 4)
                    a("v_mfma_f32_16x16x32_bf16 %s, %s, %s, %s" % (d, vr(F2 + st * 16 + nt * 4, 4), vr(OF + par * 64 + s * 8 + t * 4, 4), d))
                    if s + 1 < 8: nrl[n]()
                    n += 1
            if s + 1 < 8: ids = nids
    stamp(a, 10)
    a("s_and_b32 s33, s24, 3"); a("s_lshl_b32 s33, s33, 13")
    a("v_add_u32 v2, s33, v1")
    a("s_nop 7")
    a("s_cmp_eq_u32 s30, 0")
    a("s_cbranch_scc1 L_RED0")
    for q in range(8): a("ds_write_b128 v2, %s offset:%d" % (vr(A2 + q * 4, 4), RED + q * 1024))
    a("s_waitcnt lgkmcnt(0)")
    a("s_barrier")
    if DIAG:
        a("s_branch L_FIN")
    else:
        a("s_endpgm")
    a.label("L_RED0")
    a("s_barrier")
    for q in range(8): a("ds_read_b128 %s, v2 offset:%d" % (vr(OF + q * 4, 4), RED + q * 1024))
    a("v_lshlrev_b32 v12, 11, v12")
    a("v_and_b32 v15, 1, v13"); a("v_lshlrev_b32 v15, 5, v15")
    a("v_lshrrev_b32 v13, 1, v13"); a("v_lshlrev_b32 v13, 4, v13")
    a("v_add3_u32 v12, v12, v15, v13")
    a("s_lshl_b32 s32, s32, 15")
    a("s_lshl_b32 s33, s57, 7"); a("s_add_u32 s32, s32, s33")
    a("s_add_u32 s33, s32, 32768")
    for q in range(8):
        a("s_waitcnt lgkmcnt(%d)" % (7 - q))
        for r in range(0, 4, 2):
            a("v_pk_add_f32 %s, %s, %s" % (vr(A2 + q * 4 + r, 2), vr(A2 + q * 4 + r, 2), vr(OF + q * 4 + r, 2)))
    for t in range(2):
        for pr in range(2):
            b = F2 + (t * 2 + pr) * 4
            for h in range(2):
                nt = pr * 2 + h
                s0 = A2 + (t * 4 + nt) * 4
                a("v_cvt_pk_bf16_f32 v%d, v%d, v%d" % (b + 2 * h, s0, s0 + 1))
                a("v_cvt_pk_bf16_f32 v%d, v%d, v%d" % (b + 2 * h + 1, s0 + 2, s0 + 3))
            a("v_permlane16_swap_b32 v%d, v%d" % (b, b + 2))
            a("v_permlane16_swap_b32 v%d, v%d" % (b + 1, b + 3))
            a("buffer_store_dwordx4 %s, v12, s[48:51], %s offen offset:%d" % (vr(b, 4), ("s32", "s33")[t], pr * 64))
    if DIAG:
        a.label("L_FIN")
        a("s_waitcnt vmcnt(0)")
        stamp(a, 11)
        stamp_flush(a)
    a.label("L_END")
    a("s_endpgm")
    a.fix_hazards()
    return a.text()

def main():
    nm = "standalone__sliding_block__prompt_kernel"
    hdr = open("standalone__sliding_block__prompt.s.ref").read().split("; Override")[0]
    out = hdr
    out += "; @launch grid=(256,1,1) block=(512,1,1) lds=163840\n"
    out += '.amdgcn_target "amdgcn-amd-amdhsa--gfx950"\n.text\n'
    out += kernel_header(nm) + build()
    out += '.section .rodata,"a"\n.p2align 6\n' + kernel_desc(nm, 240, 100, 240)
    open(sys.argv[1] if len(sys.argv) > 1 else "standalone__sliding_block__prompt.s", "w").write(out)
main()
```

```python
import sys, os, struct
from asmlib import *

DIAG = int(os.environ.get("DIAG", "0"))
KG_OFF = 0
VG_OFF = 4 << 20
OG_OFF = 8 << 20
FL_OFF = 12 << 20
C2_OFF = FL_OFF + 65536
WS_BYTES = 64 << 20
DIAG_OFF = 32 << 20
SPIN_MAX = 200000
CPF = int(os.environ.get("CPF", "1"))
NM = "standalone__sliding_block__prompt_kernel"

def f32bits(x): return struct.unpack("<I", struct.pack("<f", x))[0]
CSC = (32 ** -0.5) * 1.4426950408889634
NEG = f32bits(-1.0e30)

class Cnt:
    def __init__(self, name, mx): self.n = 0; self.done = 0; self.name = name; self.mx = mx
    def issue(self): self.n += 1; return self.n
    def need(self, a, idn):
        if idn <= self.done: return
        cnt = min(self.n - idn, self.mx)
        a("s_waitcnt %s(%d)" % (self.name, cnt)); self.done = self.n - cnt
    def all(self, a):
        a("s_waitcnt %s(0)" % self.name); self.done = self.n
def Lgkm(): return Cnt("lgkmcnt", 15)
def Vm(): return Cnt("vmcnt", 63)

def vr(b, n): return "v[%d:%d]" % (b, b + n - 1)
def srd(a, d, lo, hi, nbytes):
    a("s_mov_b32 s%d, s%d" % (d, lo)); a("s_mov_b32 s%d, s%d" % (d + 1, hi))
    a("s_mov_b32 s%d, 0x%x" % (d + 2, nbytes)); a("s_mov_b32 s%d, 0x00020000" % (d + 3))

SB = 64
NSLOT = 16
def stamp(a, slot):
    if not DIAG: return
    a("s_memrealtime s[%d:%d]" % (SB + 2 * slot, SB + 2 * slot + 1))
    a("s_waitcnt lgkmcnt(0)")
def stamp_flush(a):
    if not DIAG: return
    t = 62
    a("s_lshl_b32 s%d, s2, 3" % t); a("s_add_u32 s%d, s%d, s24" % (t, t)); a("s_lshl_b32 s%d, s%d, 7" % (t, t))
    a("s_add_u32 s%d, s%d, 0x%x" % (t, t, DIAG_OFF))
    a("v_mov_b32 v4, 0")
    for sl in range(NSLOT):
        a("v_mov_b32 v2, s%d" % (SB + 2 * sl)); a("v_mov_b32 v3, s%d" % (SB + 2 * sl + 1))
        a("buffer_store_dwordx2 v[2:3], v4, s[20:23], s%d offen offset:%d" % (t, sl * 8))
        a("s_nop 1")

def poll(a, soff, cmp_op, val, name, srdn=20, vt=2, vz=3, st=34, sc=35):
    a("v_mov_b32 v%d, 0" % vz)
    a("s_mov_b32 s%d, %d" % (sc, SPIN_MAX))
    a.label(name)
    a("buffer_load_dword v%d, v%d, s[%d:%d], %s offen sc1" % (vt, vz, srdn, srdn + 3, soff))
    a("s_waitcnt vmcnt(0)")
    a("v_readfirstlane_b32 s%d, v%d" % (st, vt))
    a("s_cmp_%s_u32 s%d, %s" % (cmp_op, st, val))
    a("s_cbranch_scc1 %s_ok" % name)
    a("s_sub_u32 s%d, s%d, 1" % (sc, sc))
    a("s_cmp_lg_u32 s%d, 0" % sc)
    a("s_cbranch_scc1 %s" % name)
    a.label(name + "_ok")

WR = 0
XR = 65536
R4 = 131072
KVH = [65536, 114688]
QL = 0
WOE = 0
WOO = 65536
RED = 131072
QF = 16

def build():
    a = Asm()
    a("s_cmp_ge_u32 s2, 256")
    a("s_cbranch_scc1 L_END")
    a("s_load_dwordx8 s[4:11], s[0:1], 0")
    a("s_load_dwordx4 s[40:43], s[0:1], 32")
    if DIAG:
        for sl in range(1, NSLOT): a("s_mov_b64 s[%d:%d], 0" % (SB + 2 * sl, SB + 2 * sl + 1))
        a("s_memrealtime s[%d:%d]" % (SB, SB + 1))
    a("v_lshrrev_b32 v1, 6, v0")
    a("v_readfirstlane_b32 s24, v1")
    a("v_and_b32 v0, 63, v0")
    a("s_and_b32 s27, s2, 7")
    a("s_lshr_b32 s28, s2, 3")
    a("s_and_b32 s25, s27, 1"); a("s_lshl_b32 s25, s25, 3"); a("s_and_b32 s29, s28, 7"); a("s_add_u32 s25, s25, s29")
    a("s_lshr_b32 s26, s27, 1"); a("s_lshl_b32 s26, s26, 2"); a("s_lshr_b32 s29, s28, 3"); a("s_add_u32 s26, s26, s29")
    a("v_lshlrev_b32 v1, 4, v0")
    a("s_cmp_lt_u32 s24, 4")
    a("s_cbranch_scc1 L_KV")
    a("s_sub_u32 s30, s24, 4")
    a("v_lshrrev_b32 v4, 3, v0")
    a("v_and_b32 v5, 7, v0")
    a("v_lshrrev_b32 v6, 4, v0")
    a("s_and_b32 s31, s30, 1")
    a("s_lshl_b32 s32, s31, 2")
    a("v_or_b32 v7, s32, v6")
    a("v_xor_b32 v7, v7, v5")
    a("v_lshlrev_b32 v7, 4, v7")
    a("v_lshlrev_b32 v2, 11, v4")
    a("v_add_u32 v2, v2, v7")
    a("s_lshl_b32 s32, s25, 7"); a("s_lshl_b32 s33, s30, 3"); a("s_add_u32 s32, s32, s33"); a("s_lshl_b32 s32, s32, 11")
    a("v_add_u32 v2, s32, v2")
    a("v_and_b32 v7, 1, v6")
    a("s_lshl_b32 s32, s31, 1")
    a("v_or_b32 v7, s32, v7")
    a("v_lshlrev_b32 v7, 1, v7")
    a("v_xor_b32 v7, v7, v5")
    a("v_lshlrev_b32 v7, 4, v7")
    a("v_mul_u32_u24 v3, 0x1800, v4")
    a("v_add_u32 v3, v3, v7")
    a("s_mul_i32 s32, s30, %d" % (8 * 6144)); a("s_lshl_b32 s33, s26, 7"); a("s_add_u32 s32, s32, s33")
    a("v_add_u32 v3, s32, v3")
    a("s_lshl_b32 s34, s30, 10")
    if os.environ.get("ROTMJ"):
        a("s_add_u32 s59, s25, s26")
    else:
        a("s_lshr_b32 s59, s28, 3"); a("s_lshl_b32 s59, s59, 2"); a("s_and_b32 s60, s28, 7"); a("s_lshl_b32 s60, s60, 1")
        a("s_add_u32 s59, s59, s60"); a("s_lshr_b32 s60, s27, 1"); a("s_add_u32 s59, s59, s60"); a("s_and_b32 s60, s27, 1"); a("s_add_u32 s59, s59, s60")
    a("s_waitcnt lgkmcnt(0)")
    srd(a, 12, 4, 5, 2048 * 1024 * 2)
    srd(a, 16, 6, 7, 1024 * 3072 * 2)
    vm = Vm()
    landed = {}
    def kbregs(b):
        a("s_add_u32 s35, s59, %d" % b); a("s_and_b32 s35, s35, 15")
        a("s_lshl_b32 s36, s35, 7"); a("s_mul_i32 s37, s35, 393216")
    def issue_stage(b):
        sl = b & 3
        kbregs(b)
        for i in range(4):
            a("s_add_u32 m0, s34, %d" % (XR + sl * 16384 + i * 4096))
            a("s_add_u32 s38, s36, %d" % (i * 65536))
            a("buffer_load_dwordx4 v2, s[12:15], s38 offen lds"); vm.issue()
        for s in range(2):
            for gg in range(2):
                a("s_add_u32 m0, s34, %d" % (WR + sl * 16384 + s * 8192 + gg * 4096))
                a("s_add_u32 s38, s37, %d" % (gg * 196608 + (s + 1) * 2048))
                a("buffer_load_dwordx4 v3, s[16:19], s38 offen lds"); landed[("S", b)] = vm.issue()
    def issue_wq(b, ldsoff, regs=True):
        if regs: kbregs(b)
        for gg in range(2):
            a("s_add_u32 m0, s34, %d" % (ldsoff + gg * 4096))
            if gg: a("s_add_u32 s38, s37, 196608")
            a("buffer_load_dwordx4 v3, s[16:19], %s offen lds" % ("s37", "s38")[gg]); landed[("Q", b)] = vm.issue()
    stamp(a, 12)
    issue_stage(0); issue_wq(0, R4, False)
    issue_stage(1); issue_wq(1, R4 + 8192, False)
    srd(a, 20, 42, 43, WS_BYTES)
    srd(a, 44, 8, 9, 1024 * 1024 * 2)
    srd(a, 48, 10, 11, 2048 * 1024 * 2)
    srd(a, 52, 40, 41, 256)
    CAP = 64; QA = 192; WF = 32; XF = 224
    vX = [8, 9]; vW = [10, 11, 12, 13]
    a("v_and_b32 v14, 15, v0"); a("v_lshrrev_b32 v15, 4, v0")
    a("v_lshrrev_b32 v16, 1, v14"); a("v_xor_b32 v16, v16, v15")
    a("s_lshl_b32 s32, s30, 12")
    a("v_lshlrev_b32 v17, 7, v14"); a("v_add_u32 v17, s32, v17"); a("v_add_u32 v17, 0x%x, v17" % XR)
    for kq in range(2):
        a("v_xor_b32 v18, %d, v16" % (kq << 2)); a("v_lshlrev_b32 v18, 4, v18"); a("v_add_u32 v%d, v17, v18" % vX[kq])
    a("v_lshrrev_b32 v17, 2, v14"); a("v_and_b32 v18, 3, v14")
    a("v_lshlrev_b32 v19, 3, v15"); a("v_add_u32 v19, v19, v17"); a("v_lshlrev_b32 v19, 7, v19")
    a("v_lshrrev_b32 v20, 1, v17"); a("v_and_b32 v21, 1, v15"); a("v_lshlrev_b32 v21, 1, v21"); a("v_or_b32 v20, v20, v21")
    a("v_lshlrev_b32 v20, 5, v20"); a("v_lshlrev_b32 v18, 3, v18")
    a("v_add3_u32 v19, v19, v20, v18")
    for c in range(4): a("v_xor_b32 v%d, %d, v19" % (vW[c], c * 32))
    vWR = [24, 25, 26, 27]
    for c in range(4): a("v_add_u32 v%d, 0x%x, v%d" % (vWR[c], R4, vW[c]))
    for r in range(32): a("v_mov_b32 v%d, 0" % (QA + r))
    lg = Lgkm()
    def qsteps(blocks):
        steps = []
        for (xs, wv, wo) in blocks:
            for kq in range(2): steps.append((xs, wv, wo, kq))
        return steps
    state = {"st": 0}
    def q_reads(step, st):
        xs, wv, wo, kq = step
        ids = {}; fl = []
        if xs[0] == "lds":
            for t in range(2):
                def f(t=t):
                    a("ds_read_b128 %s, v%d offset:%d" % (vr(XF + st * 8 + t * 4, 4), vX[kq], xs[1] * 16384 + t * 2048)); ids["X"] = lg.issue()
                fl.append(f)
        for c in range(4):
            for hf in range(2):
                def f(c=c, hf=hf):
                    a("ds_read_b64_tr_b16 %s, v%d offset:%d" % (vr(WF + st * 16 + c * 4 + hf * 2, 2), wv[c], wo + kq * 4096 + hf * 512)); ids[c] = lg.issue()
                fl.append(f)
        return fl, ids
    def q_run(steps, hooks=None):
        hooks = hooks or {}
        st = 0
        if 0 in hooks: hooks[0]()
        rl, ids = q_reads(steps[0], st)
        for f in rl: f()
        for n, step in enumerate(steps):
            xs, wv, wo, kq = step
            nxt = n + 1 < len(steps)
            nrl = []
            k = 0
            for c in range(4):
                for t in range(2):
                    lg.need(a, ids[c])
                    if xs[0] == "lds": xr = XF + st * 8 + t * 4
                    else: xr = xs[1] + kq * 8 + t * 4
                    d = vr(QA + (t * 4 + c) * 4, 4)
                    a("v_mfma_f32_16x16x32_bf16 %s, %s, %s, %s" % (d, vr(WF + st * 16 + c * 4, 4), vr(xr, 4), d))
                    if k == 0 and nxt:
                        if n + 1 in hooks: hooks[n + 1]()
                        nrl, nids = q_reads(steps[n + 1], st ^ 1)
                    take = 2 if len(nrl) > (7 - k) else 1
                    for _ in range(take):
                        if nrl: nrl.pop(0)()
                    k += 1
            if nxt:
                while nrl: nrl.pop(0)()
                ids = nids; st ^= 1
    def capture(b):
        base = CAP + (b - 4) * 16
        for kq in range(2):
            for t in range(2):
                a("ds_read_b128 %s, v%d offset:%d" % (vr(base + kq * 8 + t * 4, 4), vX[kq], (b & 3) * 16384 + t * 2048)); lg.issue()
    vm.need(a, landed[("Q", 0)])
    stamp(a, 1)
    a("s_barrier")
    for b in range(16):
        if b == 0:
            issue_stage(2); issue_wq(2, R4 + 2 * 8192, False)
            issue_stage(3); issue_wq(3, R4 + 3 * 8192, False)
        elif b + 3 < 16:
            issue_stage(b + 3)
        if 5 <= b <= 8: issue_wq(12 + b - 5, R4 + (b - 5) * 8192)
        if b >= 13:
            q0 = 4 + 2 * (b - 13)
            issue_wq(q0, WR + (b - 13) * 16384); issue_wq(q0 + 1, WR + (b - 13) * 16384 + 8192)
        if b < 4:
            q_run(qsteps([(("lds", b), vWR, b * 8192)]))
        elif b < 12:
            capture(b)
        lg.all(a)
        if b + 1 < 16:
            vm.need(a, landed[("Q", b + 1)] if b + 1 < 4 else landed[("S", b + 1)])
        a("s_barrier")
    stamp(a, 2)
    issue_wq(10, WR + 3 * 16384); issue_wq(11, WR + 3 * 16384 + 8192)
    blocks = [(("lds", s), vWR, s * 8192) for s in range(4)] + [(("reg", CAP + q * 16), vW, WR + q * 8192) for q in range(8)]
    def hookP1():
        lg.all(a); stamp(a, 13); vm.all(a); a("s_barrier"); stamp(a, 15)
    def hookP2():
        lg.all(a); a("s_barrier")
    q_run(qsteps(blocks), {8: hookP1, 12: hookP2})
    stamp(a, 3)
    a("s_lshl_b32 s32, s30, 10")
    a("v_add_u32 v14, s32, v1")
    a("s_nop 4")
    for h in range(2):
        for t in range(2):
            dst = (WF + h * 4) if t == 0 else (QF + h * 4)
            for nt in range(2):
                s0 = QA + (t * 4 + 2 * h + nt) * 4
                a("v_cvt_pk_bf16_f32 v%d, v%d, v%d" % (dst + nt * 2, s0, s0 + 1))
                a("v_cvt_pk_bf16_f32 v%d, v%d, v%d" % (dst + nt * 2 + 1, s0 + 2, s0 + 3))
        a("ds_write_b128 v14, %s offset:%d" % (vr(WF + h * 4, 4), QL + h * 4096))
    a("s_branch L_ATT")
    a.label("L_KV")
    ACC = 64; FR = 128; PK = 192
    vXb = [4, 5]; vWb = [6, 7]; vX = [8, 9]; vW2 = [10, 11]
    def fX(st, t): return FR + st * 32 + t * 4
    def fW(st, c): return FR + st * 32 + 16 + c * 4
    def acc(t, c): return ACC + (t * 4 + c) * 4
    a("s_lshr_b32 s30, s24, 1")
    a("s_and_b32 s31, s24, 1")
    a("s_waitcnt lgkmcnt(0)")
    srd(a, 20, 42, 43, WS_BYTES)
    srd(a, 44, 8, 9, 1024 * 1024 * 2)
    srd(a, 48, 10, 11, 2048 * 1024 * 2)
    srd(a, 52, 40, 41, 256)
    if CPF:
        a("s_getpc_b64 s[96:97]")
        a.label("L_PC")
        a("s_sub_u32 s96, s96, L_PC-%s" % NM)
        a("s_subb_u32 s97, s97, 0")
        a("v_lshlrev_b32 v12, 7, v0")
        a("s_lshl_b32 s32, s24, 13")
        a("v_add_u32 v12, s32, v12")
        a("v_min_u32 v12, L_END-%s, v12" % NM)
        a("global_load_dword v30, v12, s[96:97]")
    a("s_cmp_lg_u32 s24, 0")
    a("s_cbranch_scc1 L_NOINIT")
    a("s_mov_b64 exec, 1")
    for r in range(4): a("v_mov_b32 v%d, 0" % (12 + r))
    a("s_lshl_b32 s32, s25, 4"); a("s_add_u32 s32, s32, s26"); a("s_lshl_b32 s32, s32, 7"); a("s_add_u32 s32, s32, 0x%x" % FL_OFF)
    a("buffer_store_dwordx4 v[12:15], v12, s[20:23], s32 offen sc1")
    a("s_cmp_lg_u32 s26, 0")
    a("s_cbranch_scc1 L_NOC2")
    a("s_lshl_b32 s32, s25, 7"); a("s_add_u32 s32, s32, 0x%x" % C2_OFF)
    a("buffer_store_dword v12, v12, s[20:23], s32 offen sc1")
    a("buffer_store_dword v12, v12, s[20:23], s32 offen offset:2048 sc1")
    a.label("L_NOC2")
    a("s_and_b32 s32, s2, 31"); a("s_lshl_b32 s32, 1, s32")
    a("v_mov_b32 v16, s32")
    a("s_lshr_b32 s33, s2, 5"); a("s_lshl_b32 s33, s33, 2")
    a("s_waitcnt vmcnt(0)")
    a("buffer_atomic_or v16, v12, s[52:55], s33 offen sc1")
    a("s_mov_b64 exec, -1")
    a.label("L_NOINIT")
    a("v_and_b32 v12, 15, v0"); a("v_lshrrev_b32 v13, 4, v0")
    a("v_lshrrev_b32 v14, 1, v12"); a("v_xor_b32 v14, v14, v13")
    a("s_lshl_b32 s32, s30, 13")
    a("v_lshlrev_b32 v15, 7, v12"); a("v_add_u32 v15, s32, v15"); a("v_add_u32 v15, 0x%x, v15" % XR)
    for kq in range(2):
        a("v_xor_b32 v16, %d, v14" % (kq << 2)); a("v_lshlrev_b32 v16, 4, v16"); a("v_add_u32 v%d, v15, v16" % vXb[kq])
    a("v_lshrrev_b32 v17, 2, v12"); a("v_and_b32 v18, 3, v12")
    a("v_lshlrev_b32 v20, 3, v13"); a("v_add_u32 v20, v20, v17"); a("v_lshlrev_b32 v20, 7, v20")
    a("v_lshrrev_b32 v21, 1, v17"); a("v_and_b32 v22, 1, v13"); a("v_lshlrev_b32 v22, 1, v22"); a("v_or_b32 v21, v21, v22")
    a("s_lshl_b32 s33, s31, 1")
    a("v_xor_b32 v21, s33, v21"); a("v_lshlrev_b32 v21, 5, v21"); a("v_lshlrev_b32 v22, 3, v18")
    a("v_add3_u32 v%d, v21, v22, v20" % vWb[0])
    a("v_xor_b32 v%d, 32, v%d" % (vWb[1], vWb[0]))
    for q in range(2):
        a("v_mov_b32 v%d, v%d" % (vX[q], vXb[q])); a("v_mov_b32 v%d, v%d" % (vW2[q], vWb[q]))
    for r in range(64): a("v_mov_b32 v%d, 0" % (ACC + r))
    a("s_mov_b32 s34, 16384")
    a("s_mov_b32 s35, 0")
    lg = Lgkm()
    def reads(kq, st):
        ids = {}
        def rX(t):
            def f():
                a("ds_read_b128 %s, v%d offset:%d" % (vr(fX(st, t), 4), vX[kq], t * 2048)); ids["X%d" % t] = lg.issue()
            return f
        def rW(c, hf):
            def f():
                a("ds_read_b64_tr_b16 %s, v%d offset:%d" % (vr(fW(st, c) + 2 * hf, 2), vW2[c & 1], (c >> 1) * 8192 + kq * 4096 + hf * 512)); ids["W%d" % c] = lg.issue()
            return f
        l = [rX(0), rW(0, 0), rW(0, 1), rX(1), rX(2), rX(3)]
        for c in range(1, 4): l += [rW(c, 0), rW(c, 1)]
        return l, ids
    def mfma(t, c, st, ids):
        lg.need(a, max(ids["X%d" % t], ids["W%d" % c]))
        d = vr(acc(t, c), 4)
        if c < 2: a("v_mfma_f32_16x16x32_bf16 %s, %s, %s, %s" % (d, vr(fW(st, c), 4), vr(fX(st, t), 4), d))
        else:     a("v_mfma_f32_16x16x32_bf16 %s, %s, %s, %s" % (d, vr(fX(st, t), 4), vr(fW(st, c), 4), d))
    order = [(t, c) for c in range(4) for t in range(4)]
    a("s_barrier")
    stamp(a, 1)
    rl, ids = reads(0, 0)
    for f in rl: f()
    a.label("L_G1LOOP")
    for kq in range(2):
        st = kq
        nrl, nids = reads(kq ^ 1, st ^ 1)
        start = 0 if kq == 0 else 3
        for n, (t, c) in enumerate(order):
            mfma(t, c, st, ids)
            if kq == 1 and n < 2:
                a("v_add_u32 v%d, s34, v%d" % (vX[n], vXb[n])); a("v_add_u32 v%d, s34, v%d" % (vW2[n], vWb[n]))
            if kq == 1 and n == 2:
                lg.all(a); a("s_barrier")
            if start <= n < start + 12: nrl[n - start]()
            if kq == 0 and n == 13:
                a("s_add_u32 s35, s35, 1")
            if kq == 1 and n == 14:
                a("s_add_u32 s34, s34, 16384")
                a("s_and_b32 s34, s34, 0xffff")
                a("s_cmp_lt_u32 s35, 16")
        ids = nids
    assert lg.n - lg.done == 12, (lg.n, lg.done)
    a("s_cbranch_scc1 L_G1LOOP")
    a("s_waitcnt lgkmcnt(0)")
    stamp(a, 2)
    a("s_lshl_b32 s36, s26, 1"); a("s_add_u32 s36, s36, s31"); a("s_lshl_b32 s36, s36, 7")
    a("s_lshl_b32 s37, s25, 3"); a("s_lshl_b32 s38, s30, 2"); a("s_add_u32 s37, s37, s38")
    a("s_add_u32 s36, s36, s37"); a("s_lshl_b32 s36, s36, 10")
    a("s_add_u32 s37, s36, 0x%x" % VG_OFF)
    def pk(t, s): return PK + t * 8 + s * 4
    for s in range(2):
        for t in range(4):
            for nt in range(2):
                c = s * 2 + nt
                for hf in range(2):
                    a("v_cvt_pk_bf16_f32 v%d, v%d, v%d" % (pk(t, s) + nt * 2 + hf, acc(t, c) + 2 * hf, acc(t, c) + 2 * hf + 1))
            a("buffer_store_dwordx4 %s, v1, s[20:23], %s offen offset:%d sc1" % (vr(pk(t, s), 4), ("s36", "s37")[s], t * 1024))
    a("s_mul_i32 s38, s31, %d" % (KVH[1] - KVH[0]))
    a("s_add_u32 s38, s38, %d" % KVH[0])
    a("s_lshl_b32 s39, s30, 12")
    a("s_add_u32 s38, s38, s39")
    a("v_add_u32 v12, s38, v1")
    a("v_lshlrev_b32 v13, 3, v0"); a("v_add_u32 v13, s38, v13")
    a("s_lshl_b32 s32, s25, 4"); a("s_add_u32 s32, s32, s26"); a("s_lshl_b32 s32, s32, 7"); a("s_add_u32 s32, s32, 0x%x" % FL_OFF)
    a("s_lshl_b32 s33, s24, 2"); a("s_add_u32 s32, s32, s33")
    a("s_barrier")
    for t in range(4):
        a("ds_write_b128 v12, %s offset:%d" % (vr(pk(t, 0), 4), (16 + t) * 1024))
        a("ds_write_b64 v13, %s offset:%d" % (vr(pk(t, 1), 2), 24576 + (16 + t) * 1024))
        a("ds_write_b64 v13, %s offset:%d" % (vr(pk(t, 1) + 2, 2), 24576 + (16 + t) * 1024 + 512))
    a("s_barrier")
    a("v_mov_b32 v15, 1"); a("v_mov_b32 v16, 0")
    a("s_waitcnt vmcnt(0)")
    a("s_mov_b64 exec, 1")
    a("buffer_store_dword v15, v16, s[20:23], s32 offen sc1")
    a("s_mov_b64 exec, -1")
    stamp(a, 3)
    a("v_and_b32 v17, 1, v0"); a("v_add_u32 v17, 1, v17")
    a("v_cmp_ge_u32 vcc, s25, v17")
    a("v_cndmask_b32_e64 v17, 0, v17, vcc")
    a("v_lshlrev_b32 v17, 11, v17")
    a("v_sub_u32 v17, s32, v17")
    a("v_and_b32 v18, 7, v0"); a("v_lshlrev_b32 v18, 2, v18")
    a("s_mov_b32 s35, %d" % SPIN_MAX)
    a.label("L_HPOLL")
    a("buffer_load_dword v19, v18, s[52:55], 0 offen sc1")
    a("buffer_load_dword v20, v17, s[20:23], 0 offen sc1")
    a("s_waitcnt vmcnt(0)")
    a("v_cmp_ne_u32 vcc, -1, v19")
    a("v_cmp_ne_u32 s[58:59], 1, v20")
    a("s_or_b64 s[58:59], s[58:59], vcc")
    a("s_cmp_eq_u64 s[58:59], 0")
    a("s_cbranch_scc1 L_HOK")
    a("s_sub_u32 s35, s35, 1"); a("s_cmp_lg_u32 s35, 0")
    a("s_cbranch_scc1 L_HPOLL")
    a.label("L_HOK")
    stamp(a, 13)
    HB = 64
    for d in (1, 2):
        skip = "L_HSKIP%d" % d
        a("s_cmp_lt_u32 s25, %d" % d)
        a("s_cbranch_scc1 %s" % skip)
        a("s_sub_u32 s38, s36, %d" % (d * 8192)); a("s_sub_u32 s39, s37, %d" % (d * 8192))
        hb = HB + (d - 1) * 32
        for t in range(4):
            a("buffer_load_dwordx4 %s, v1, s[20:23], s38 offen offset:%d sc1" % (vr(hb + t * 8, 4), t * 1024))
            a("buffer_load_dwordx4 %s, v1, s[20:23], s39 offen offset:%d sc1" % (vr(hb + t * 8 + 4, 4), t * 1024))
        a.label(skip)
    a("s_waitcnt vmcnt(0)")
    for d in (1, 2):
        skip = "L_HW%d" % d
        a("s_cmp_lt_u32 s25, %d" % d)
        a("s_cbranch_scc1 %s" % skip)
        hb = HB + (d - 1) * 32
        tb = (2 - d) * 8
        for t in range(4):
            a("ds_write_b128 v12, %s offset:%d" % (vr(hb + t * 8, 4), (tb + t) * 1024))
            a("ds_write_b64 v13, %s offset:%d" % (vr(hb + t * 8 + 4, 2), 24576 + (tb + t) * 1024))
            a("ds_write_b64 v13, %s offset:%d" % (vr(hb + t * 8 + 6, 2), 24576 + (tb + t) * 1024 + 512))
        a.label(skip)
    a.label("L_ATT")
    a("s_and_b32 s56, s27, 3"); a("s_lshl_b32 s56, s56, 2"); a("s_and_b32 s29, s28, 3"); a("s_add_u32 s56, s56, s29")
    a("s_lshr_b32 s57, s27, 2"); a("s_lshl_b32 s57, s57, 3"); a("s_lshr_b32 s29, s28, 2"); a("s_add_u32 s57, s57, s29")
    a("v_lshrrev_b32 v4, 3, v0"); a("v_and_b32 v5, 7, v0"); a("v_lshrrev_b32 v6, 4, v0")
    a("v_lshlrev_b32 v6, 1, v6"); a("v_xor_b32 v6, v6, v5"); a("v_lshlrev_b32 v6, 4, v6")
    a("v_lshlrev_b32 v10, 11, v4"); a("v_add_u32 v10, v10, v6")
    a("s_lshl_b32 s30, s57, 7")
    a("v_add_u32 v10, s30, v10")
    def wo_dma(par, first, count):
        base = (WOE, WOO)[par]
        for i in range(count):
            c0 = first * 4 + 8 * i
            a("s_add_u32 m0, s61, %d" % (base + c0 * 1024))
            a("s_add_u32 s33, s60, %d" % (((c0 >> 2) * 64 + 32 * par) * 2048))
            a("buffer_load_dwordx4 v10, s[44:47], s33 offen lds")
    a("s_lshl_b32 s61, s24, 10")
    a("s_lshr_b32 s60, s24, 2"); a("s_lshl_b32 s60, s60, 17")
    a("s_and_b32 s33, s24, 3"); a("s_lshl_b32 s33, s33, 14")
    a("s_add_u32 s60, s60, s33")
    ML = 24; MH = 28; ONE = 32; O = 36; L = 44; CC = 48; MC = 50; MX = 52; KF = 56; VF = 72; S = 96
    a("s_waitcnt lgkmcnt(0)")
    a("v_and_b32 v2, 15, v0")
    a("v_lshrrev_b32 v3, 4, v0"); a("v_lshlrev_b32 v3, 2, v3")
    a("v_sub_u32 v4, v2, v3")
    a("v_mov_b32 v5, 0x%x" % NEG)
    for r in range(4):
        a("v_cmp_le_i32 vcc, %d, v4" % r)
        a("v_cndmask_b32_e64 v%d, v5, 0, vcc" % (MH + r))
        a("v_cndmask_b32_e64 v%d, 0, v5, vcc" % (ML + r))
    for r in range(4): a("v_mov_b32 v%d, 0x3f803f80" % (ONE + r))
    a("v_mov_b32 v%d, 0x%x" % (CC, f32bits(CSC))); a("v_mov_b32 v%d, 0x%x" % (CC + 1, f32bits(CSC)))
    a("s_and_b32 s31, s24, 3"); a("s_lshl_b32 s31, s31, 1"); a("s_lshr_b32 s32, s24, 2"); a("s_add_u32 s31, s31, s32")
    a("s_lshl_b32 s36, s31, 10")
    a("v_add_u32 v6, s36, v1")
    a("v_lshlrev_b32 v7, 3, v0"); a("v_add_u32 v7, s36, v7")
    a("v_add_u32 v6, 0x%x, v6" % KVH[0]); a("v_add_u32 v7, 0x%x, v7" % (KVH[0] + 24576))
    a("v_add_u32 v8, s61, v1")
    a("s_lshl_b32 s37, s25, 3"); a("s_add_u32 s37, s37, s31"); a("s_lshl_b32 s37, s37, 5")
    a("s_lshl_b32 s38, s26, 1"); a("s_add_u32 s37, s37, s38"); a("s_lshl_b32 s37, s37, 10")
    a("s_add_u32 s37, s37, 0x%x" % OG_OFF)
    a("s_lshl_b32 s38, s25, 3"); a("s_add_u32 s38, s38, s31")
    a("s_sub_i32 s38, 16, s38"); a("s_max_i32 s38, s38, 0")
    a("s_lshl_b32 s39, s25, 7"); a("s_add_u32 s39, s39, 0x%x" % C2_OFF)
    a("s_mov_b32 s58, 0")
    a("s_barrier")
    stamp(a, 4)
    a("s_cmp_ge_u32 s24, 4")
    a("s_cbranch_scc1 L_NOQRD")
    a("ds_read_b128 %s, v8 offset:%d" % (vr(QF, 4), QL))
    a("ds_read_b128 %s, v8 offset:%d" % (vr(QF + 4, 4), QL + 4096))
    a.label("L_NOQRD")
    wo_dma(0, 2, 7)
    a.label("L_ROUND")
    lg = Lgkm(); lg.n = 2
    kid = {}
    def rdK(i):
        a("ds_read_b128 %s, v6 offset:%d" % (vr(KF + (i % 4) * 4, 4), i * 1024)); kid[i] = lg.issue()
    for i in range(3): rdK(i)
    for r in range(8): a("v_mov_b32 v%d, 0" % (O + r))
    for r in range(4): a("v_mov_b32 v%d, 0" % (L + r))
    for i in range(17):
        c0 = vr(ML, 4) if i == 0 else (vr(MH, 4) if i == 16 else "0")
        lg.need(a, kid[i])
        a("v_mfma_f32_16x16x32_bf16 %s, %s, %s, %s" % (vr(S + 4 * i, 4), vr(KF + (i % 4) * 4, 4), vr(QF, 4), c0))
        if i + 3 < 17: rdK(i + 3)
    vid = {}
    def rdV(p):
        st = VF + (p % 3) * 8
        for dt in range(2):
            for h in range(2):
                if 2 * p + h < 17:
                    a("ds_read_b64 %s, v7 offset:%d" % (vr(st + dt * 4 + h * 2, 2), (2 * p + h) * 1024 + dt * 512)); vid[(p, dt)] = lg.issue()
    rdV(0); rdV(1)
    a("s_cmp_eq_u32 s58, 0")
    a("s_cbranch_scc1 L_NOPUB0")
    a("s_waitcnt vmcnt(0)")
    a("s_barrier")
    a("s_cmp_lg_u32 s24, 0")
    a("s_cbranch_scc1 L_NOSIG0")
    a("s_mov_b64 exec, 1")
    a("v_mov_b32 v2, 1"); a("v_mov_b32 v3, 0")
    a("buffer_atomic_add v2, v3, s[20:23], s39 offen sc1")
    a("s_mov_b64 exec, -1")
    a.label("L_NOSIG0")
    wo_dma(0, 0, 1)
    wo_dma(1, 0, 6)
    a.label("L_NOPUB0")
    a("s_nop 7")
    a("s_cmp_eq_u32 s38, 0")
    a("s_cbranch_scc1 L_NOFIX")
    for i in range(16):
        for r in range(4): a("v_mov_b32 v%d, v5" % (S + 4 * i + r))
        if i < 15:
            a("s_cmp_eq_u32 s38, %d" % (i + 1))
            a("s_cbranch_scc1 L_NOFIX")
    a.label("L_NOFIX")
    for q in range(34):
        m = MX + (q % 2)
        if q < 2: a("v_max_f32 v%d, v%d, v%d" % (m, S + 2 * q, S + 2 * q + 1))
        else: a("v_max3_f32 v%d, v%d, v%d, v%d" % (m, m, S + 2 * q, S + 2 * q + 1))
    a("v_max_f32 v%d, v%d, v%d" % (MX, MX, MX + 1))
    a("v_mov_b32 v%d, v%d" % (MX + 1, MX))
    a("v_permlane32_swap_b32 v%d, v%d" % (MX, MX + 1))
    a("v_max_f32 v%d, v%d, v%d" % (MX, MX, MX + 1))
    a("v_mov_b32 v%d, v%d" % (MX + 1, MX))
    a("v_permlane16_swap_b32 v%d, v%d" % (MX, MX + 1))
    a("v_max_f32 v%d, v%d, v%d" % (MX, MX, MX + 1))
    a("v_mul_f32 v%d, v%d, v%d" % (MC, MX, CC))
    a("v_sub_f32 v%d, 0, v%d" % (MC, MC))
    a("v_mov_b32 v%d, v%d" % (MC + 1, MC))
    for p in range(9):
        b = S + 8 * p
        nv = 8 if p < 8 else 4
        for r in range(0, nv, 2):
            a("v_pk_fma_f32 %s, %s, %s, %s" % (vr(b + r, 2), vr(b + r, 2), vr(CC, 2), vr(MC, 2)))
        for r in range(nv): a("v_exp_f32 v%d, v%d" % (b + r, b + r))
        for r in range(nv // 2): a("v_cvt_pk_bf16_f32 v%d, v%d, v%d" % (b + r, b + 2 * r, b + 2 * r + 1))
        st = VF + (p % 3) * 8
        for dt in range(2):
            lg.need(a, vid[(p, dt)])
            if p < 8: a("v_mfma_f32_16x16x32_bf16 %s, %s, %s, %s" % (vr(O + 4 * dt, 4), vr(st + 4 * dt, 4), vr(b, 4), vr(O + 4 * dt, 4)))
            else:     a("v_mfma_f32_16x16x16_bf16 %s, %s, %s, %s" % (vr(O + 4 * dt, 4), vr(st + 4 * dt, 2), vr(b, 2), vr(O + 4 * dt, 4)))
        if p < 8: a("v_mfma_f32_16x16x32_bf16 %s, %s, %s, %s" % (vr(L, 4), vr(ONE, 4), vr(b, 4), vr(L, 4)))
        else:     a("v_mfma_f32_16x16x16_bf16 %s, %s, %s, %s" % (vr(L, 4), vr(ONE, 2), vr(b, 2), vr(L, 4)))
        if p + 2 < 9: rdV(p + 2)
    a("v_rcp_f32 v%d, v%d" % (MX, L))
    for r in range(8): a("v_mul_f32 v%d, v%d, v%d" % (O + r, O + r, MX))
    for r in range(4): a("v_cvt_pk_bf16_f32 v%d, v%d, v%d" % (S + r, O + 2 * r, O + 2 * r + 1))
    a("buffer_store_dwordx4 %s, v1, s[20:23], s37 offen sc1" % vr(S, 4))
    a("s_add_u32 s37, s37, 1024")
    a("v_add_u32 v6, %d, v6" % (KVH[1] - KVH[0])); a("v_add_u32 v7, %d, v7" % (KVH[1] - KVH[0]))
    for r in range(4): a("v_mov_b32 v%d, v%d" % (QF + r, QF + 4 + r))
    if DIAG:
        a("s_cmp_lg_u32 s58, 0")
        a("s_cbranch_scc1 L_NOST14")
        stamp(a, 14)
        a.label("L_NOST14")
    a("s_add_u32 s58, s58, 1")
    a("s_cmp_lt_u32 s58, 2")
    a("s_cbranch_scc1 L_ROUND")
    stamp(a, 5)
    a("s_waitcnt vmcnt(0)")
    a("s_barrier")
    a("s_cmp_lg_u32 s24, 0")
    a("s_cbranch_scc1 L_NOSIG1")
    a("s_mov_b64 exec, 1")
    a("v_mov_b32 v2, 1"); a("v_mov_b32 v3, 0")
    a("buffer_atomic_add v2, v3, s[20:23], s39 offen offset:2048 sc1")
    a("s_mov_b64 exec, -1")
    a.label("L_NOSIG1")
    wo_dma(1, 12, 2)
    stamp(a, 6)
    A2 = 16; F2 = 48; OF = 96
    a("v_and_b32 v12, 15, v0"); a("v_lshrrev_b32 v13, 4, v0")
    a("v_lshrrev_b32 v17, 2, v12"); a("v_and_b32 v18, 3, v12")
    a("v_lshlrev_b32 v19, 2, v13"); a("v_add_u32 v19, v19, v17")
    a("v_lshrrev_b32 v20, 1, v19"); a("v_and_b32 v20, 3, v20")
    a("v_lshlrev_b32 v19, 7, v19"); a("v_lshlrev_b32 v20, 5, v20"); a("v_lshlrev_b32 v18, 3, v18")
    a("v_add3_u32 v19, v19, v20, v18")
    a("s_lshr_b32 s30, s24, 2"); a("s_lshl_b32 s31, s30, 15")
    a("v_add_u32 v19, s31, v19")
    AE = [4, 5, 6, 7]; AO = [8, 9, 11, 14]
    for nt in range(4):
        a("v_xor_b32 v20, %d, v19" % (nt * 32))
        a("v_add_u32 v%d, %d, v20" % (AE[nt], WOE)); a("v_add_u32 v%d, 0x%x, v20" % (AO[nt], WOO))
    for r in range(32): a("v_mov_b32 v%d, 0" % (A2 + r))
    a("s_lshl_b32 s32, s56, 3"); a("s_and_b32 s33, s24, 3"); a("s_lshl_b32 s33, s33, 1"); a("s_add_u32 s32, s32, s33")
    a("s_lshl_b32 s36, s32, 15")
    a("s_lshl_b32 s33, s30, 14")
    a("s_add_u32 s36, s36, s33"); a("s_add_u32 s36, s36, 0x%x" % OG_OFF)
    a("s_lshl_b32 s39, s56, 7"); a("s_add_u32 s39, s39, 0x%x" % C2_OFF)
    a("s_add_u32 s38, s39, 2048")
    def oloads(par):
        for s in range(8):
            for t in range(2):
                off = t * 32768 + (2 * s + par) * 1024
                a("s_add_u32 s33, s36, %d" % (off & ~4095))
                a("buffer_load_dwordx4 %s, v1, s[20:23], s33 offen offset:%d sc1" % (vr(OF + par * 64 + s * 8 + t * 4, 4), off & 4095))
    poll(a, "s39", "ge", "16", "L_PC0")
    stamp(a, 7)
    oloads(0)
    lg = Lgkm()
    def wreads(par, s):
        st = s & 1
        ids = {}
        fl = []
        for nt in range(4):
            for hf in range(2):
                def f(nt=nt, hf=hf):
                    a("ds_read_b64_tr_b16 %s, v%d offset:%d" % (vr(F2 + st * 16 + nt * 4 + hf * 2, 2), (AE, AO)[par][nt], s * 4096 + hf * 2048))
                    ids[nt] = lg.issue()
                fl.append(f)
        return fl, ids
    for par in range(2):
        if par == 1:
            stamp(a, 9)
            a("s_barrier")
        rl, ids = wreads(par, 0)
        for f in rl: f()
        for s in range(8):
            st = s & 1
            if s + 1 < 8: nrl, nids = wreads(par, s + 1)
            if par == 0:
                if s < 4: a("s_waitcnt vmcnt(%d)" % (14 - 2 * s))
                elif s == 4:
                    poll(a, "s38", "ge", "16", "L_PC1")
                    stamp(a, 8)
                    oloads(1)
            else:
                a("s_waitcnt vmcnt(%d)" % (14 - 2 * s))
            n = 0
            for nt in range(4):
                lg.need(a, ids[nt])
                for t in range(2):
                    d = vr(A2 + (t * 4 + nt) * 4, 4)
                    a("v_mfma_f32_16x16x32_bf16 %s, %s, %s, %s" % (d, vr(F2 + st * 16 + nt * 4, 4), vr(OF + par * 64 + s * 8 + t * 4, 4), d))
                    if s + 1 < 8: nrl[n]()
                    n += 1
            if s + 1 < 8: ids = nids
    stamp(a, 10)
    a("s_and_b32 s33, s24, 3"); a("s_lshl_b32 s33, s33, 13"); a("s_add_u32 s33, s33, 0x%x" % RED)
    a("v_add_u32 v2, s33, v1")
    a("s_nop 7")
    a("s_cmp_eq_u32 s30, 0")
    a("s_cbranch_scc1 L_RED0")
    for q in range(8): a("ds_write_b128 v2, %s offset:%d" % (vr(A2 + q * 4, 4), q * 1024))
    a("s_waitcnt lgkmcnt(0)")
    a("s_barrier")
    if DIAG:
        a("s_branch L_FIN")
    else:
        a("s_endpgm")
    a.label("L_RED0")
    a("s_barrier")
    for q in range(8): a("ds_read_b128 %s, v2 offset:%d" % (vr(OF + q * 4, 4), q * 1024))
    a("v_lshlrev_b32 v12, 11, v12")
    a("v_and_b32 v15, 1, v13"); a("v_lshlrev_b32 v15, 5, v15")
    a("v_lshrrev_b32 v13, 1, v13"); a("v_lshlrev_b32 v13, 4, v13")
    a("v_add3_u32 v12, v12, v15, v13")
    a("s_lshl_b32 s32, s32, 15")
    a("s_lshl_b32 s33, s57, 7"); a("s_add_u32 s32, s32, s33")
    a("s_add_u32 s33, s32, 32768")
    for q in range(8):
        a("s_waitcnt lgkmcnt(%d)" % (7 - q))
        for r in range(0, 4, 2):
            a("v_pk_add_f32 %s, %s, %s" % (vr(A2 + q * 4 + r, 2), vr(A2 + q * 4 + r, 2), vr(OF + q * 4 + r, 2)))
    for t in range(2):
        for pr in range(2):
            b = F2 + (t * 2 + pr) * 4
            for h in range(2):
                nt = pr * 2 + h
                s0 = A2 + (t * 4 + nt) * 4
                a("v_cvt_pk_bf16_f32 v%d, v%d, v%d" % (b + 2 * h, s0, s0 + 1))
                a("v_cvt_pk_bf16_f32 v%d, v%d, v%d" % (b + 2 * h + 1, s0 + 2, s0 + 3))
            a("v_permlane16_swap_b32 v%d, v%d" % (b, b + 2))
            a("v_permlane16_swap_b32 v%d, v%d" % (b + 1, b + 3))
            a("buffer_store_dwordx4 %s, v12, s[48:51], %s offen offset:%d" % (vr(b, 4), ("s32", "s33")[t], pr * 64))
    if DIAG:
        a.label("L_FIN")
        a("s_waitcnt vmcnt(0)")
        stamp(a, 11)
        stamp_flush(a)
    a.label("L_END")
    a("s_endpgm")
    a.fix_hazards()
    return a.text()

def main():
    nm = "standalone__sliding_block__prompt_kernel"
    hdr = open("standalone__sliding_block__prompt.s.ref").read().split("; Override")[0]
    out = hdr
    out += "; @launch grid=(256,1,1) block=(512,1,1) lds=163840\n"
    out += '.amdgcn_target "amdgcn-amd-amdhsa--gfx950"\n.text\n'
    out += kernel_header(nm) + build()
    out += '.section .rodata,"a"\n.p2align 6\n' + kernel_desc(nm, 240, 100, 240)
    open(sys.argv[1] if len(sys.argv) > 1 else "standalone__sliding_block__prompt.s", "w").write(out)
main()
```

```python
import sys, os, struct
from asmlib import *

DIAG = int(os.environ.get("DIAG", "0"))
KG_OFF = 0
VG_OFF = 4 << 20
OG_OFF = 8 << 20
FL_OFF = 12 << 20
C2_OFF = FL_OFF + 65536
WS_BYTES = 64 << 20
DIAG_OFF = 32 << 20
SPIN_MAX = 200000
CPF = int(os.environ.get("CPF", "1"))
NM = "standalone__sliding_block__prompt_kernel"

def f32bits(x): return struct.unpack("<I", struct.pack("<f", x))[0]
CSC = (32 ** -0.5) * 1.4426950408889634
NEG = f32bits(-1.0e30)

class Cnt:
    def __init__(self, name, mx): self.n = 0; self.done = 0; self.name = name; self.mx = mx
    def issue(self): self.n += 1; return self.n
    def need(self, a, idn):
        if idn <= self.done: return
        cnt = min(self.n - idn, self.mx)
        a("s_waitcnt %s(%d)" % (self.name, cnt)); self.done = self.n - cnt
    def all(self, a):
        a("s_waitcnt %s(0)" % self.name); self.done = self.n
def Lgkm(): return Cnt("lgkmcnt", 15)
def Vm(): return Cnt("vmcnt", 63)

def vr(b, n): return "v[%d:%d]" % (b, b + n - 1)
def srd(a, d, lo, hi, nbytes):
    a("s_mov_b32 s%d, s%d" % (d, lo)); a("s_mov_b32 s%d, s%d" % (d + 1, hi))
    a("s_mov_b32 s%d, 0x%x" % (d + 2, nbytes)); a("s_mov_b32 s%d, 0x00020000" % (d + 3))

SB = 64
NSLOT = 16
def stamp(a, slot):
    if not DIAG: return
    a("s_memrealtime s[%d:%d]" % (SB + 2 * slot, SB + 2 * slot + 1))
    a("s_waitcnt lgkmcnt(0)")
AMP = int(os.environ.get("AMP", "-1"))
def stamp_flush(a):
    if not DIAG: return
    if AMP >= 0:
        a("s_sub_u32 s62, s%d, s%d" % (SB + 2 * AMP, SB))
        a("s_add_u32 s62, s62, s%d" % (SB + 2 * 11))
        a.label("L_AMP")
        a("s_memrealtime s[60:61]")
        a("s_waitcnt lgkmcnt(0)")
        a("s_sub_u32 s60, s60, s62")
        a("s_cmp_lt_i32 s60, 0")
        a("s_cbranch_scc1 L_AMP")
        return
    t = 62
    a("s_lshl_b32 s%d, s2, 3" % t); a("s_add_u32 s%d, s%d, s24" % (t, t)); a("s_lshl_b32 s%d, s%d, 7" % (t, t))
    a("s_add_u32 s%d, s%d, 0x%x" % (t, t, DIAG_OFF))
    a("v_mov_b32 v4, 0")
    for sl in range(NSLOT):
        a("v_mov_b32 v2, s%d" % (SB + 2 * sl)); a("v_mov_b32 v3, s%d" % (SB + 2 * sl + 1))
        a("buffer_store_dwordx2 v[2:3], v4, s[20:23], s%d offen offset:%d" % (t, sl * 8))
        a("s_nop 1")

def poll(a, soff, cmp_op, val, name, srdn=20, vt=2, vz=3, st=34, sc=35):
    a("v_mov_b32 v%d, 0" % vz)
    a("s_mov_b32 s%d, %d" % (sc, SPIN_MAX))
    a.label(name)
    a("buffer_load_dword v%d, v%d, s[%d:%d], %s offen sc1" % (vt, vz, srdn, srdn + 3, soff))
    a("s_waitcnt vmcnt(0)")
    a("v_readfirstlane_b32 s%d, v%d" % (st, vt))
    a("s_cmp_%s_u32 s%d, %s" % (cmp_op, st, val))
    a("s_cbranch_scc1 %s_ok" % name)
    a("s_sub_u32 s%d, s%d, 1" % (sc, sc))
    a("s_cmp_lg_u32 s%d, 0" % sc)
    a("s_cbranch_scc1 %s" % name)
    a.label(name + "_ok")

WR = 0
XR = 65536
R4 = 131072
KVH = [65536, 114688]
QL = 0
WOE = 0
WOO = 65536
RED = 131072
QF = 16

def build():
    a = Asm()
    a("s_cmp_ge_u32 s2, 256")
    a("s_cbranch_scc1 L_END")
    a("s_load_dwordx8 s[4:11], s[0:1], 0")
    a("s_load_dwordx4 s[40:43], s[0:1], 32")
    if DIAG:
        for sl in range(1, NSLOT): a("s_mov_b64 s[%d:%d], 0" % (SB + 2 * sl, SB + 2 * sl + 1))
        a("s_memrealtime s[%d:%d]" % (SB, SB + 1))
    a("v_lshrrev_b32 v1, 6, v0")
    a("v_readfirstlane_b32 s24, v1")
    a("v_and_b32 v0, 63, v0")
    a("s_and_b32 s27, s2, 7")
    a("s_lshr_b32 s28, s2, 3")
    a("s_and_b32 s25, s27, 1"); a("s_lshl_b32 s25, s25, 3"); a("s_and_b32 s29, s28, 7"); a("s_add_u32 s25, s25, s29")
    a("s_lshr_b32 s26, s27, 1"); a("s_lshl_b32 s26, s26, 2"); a("s_lshr_b32 s29, s28, 3"); a("s_add_u32 s26, s26, s29")
    a("v_lshlrev_b32 v1, 4, v0")
    a("s_cmp_lt_u32 s24, 4")
    a("s_cbranch_scc1 L_KV")
    a("s_sub_u32 s30, s24, 4")
    a("v_lshrrev_b32 v4, 3, v0")
    a("v_and_b32 v5, 7, v0")
    a("v_lshrrev_b32 v6, 4, v0")
    a("s_and_b32 s31, s30, 1")
    a("s_lshl_b32 s32, s31, 2")
    a("v_or_b32 v7, s32, v6")
    a("v_xor_b32 v7, v7, v5")
    a("v_lshlrev_b32 v7, 4, v7")
    a("v_lshlrev_b32 v2, 11, v4")
    a("v_add_u32 v2, v2, v7")
    a("s_lshl_b32 s32, s25, 7"); a("s_lshl_b32 s33, s30, 3"); a("s_add_u32 s32, s32, s33"); a("s_lshl_b32 s32, s32, 11")
    a("v_add_u32 v2, s32, v2")
    a("v_and_b32 v7, 1, v6")
    a("s_lshl_b32 s32, s31, 1")
    a("v_or_b32 v7, s32, v7")
    a("v_lshlrev_b32 v7, 1, v7")
    a("v_xor_b32 v7, v7, v5")
    a("v_lshlrev_b32 v7, 4, v7")
    a("v_mul_u32_u24 v3, 0x1800, v4")
    a("v_add_u32 v3, v3, v7")
    a("s_mul_i32 s32, s30, %d" % (8 * 6144)); a("s_lshl_b32 s33, s26, 7"); a("s_add_u32 s32, s32, s33")
    a("v_add_u32 v3, s32, v3")
    a("s_lshl_b32 s34, s30, 10")
    if os.environ.get("ROTMJ"):
        a("s_add_u32 s59, s25, s26")
    else:
        a("s_lshr_b32 s59, s28, 3"); a("s_lshl_b32 s59, s59, 2"); a("s_and_b32 s60, s28, 7"); a("s_lshl_b32 s60, s60, 1")
        a("s_add_u32 s59, s59, s60"); a("s_lshr_b32 s60, s27, 1"); a("s_add_u32 s59, s59, s60"); a("s_and_b32 s60, s27, 1"); a("s_add_u32 s59, s59, s60")
    a("s_waitcnt lgkmcnt(0)")
    srd(a, 12, 4, 5, 2048 * 1024 * 2)
    srd(a, 16, 6, 7, 1024 * 3072 * 2)
    vm = Vm()
    landed = {}
    def kbregs(b):
        a("s_add_u32 s35, s59, %d" % b); a("s_and_b32 s35, s35, 15")
        a("s_lshl_b32 s36, s35, 7"); a("s_mul_i32 s37, s35, 393216")
    def issue_stage(b):
        sl = b & 3
        kbregs(b)
        for i in range(4):
            a("s_add_u32 m0, s34, %d" % (XR + sl * 16384 + i * 4096))
            a("s_add_u32 s38, s36, %d" % (i * 65536))
            a("buffer_load_dwordx4 v2, s[12:15], s38 offen lds"); vm.issue()
        for s in range(2):
            for gg in range(2):
                a("s_add_u32 m0, s34, %d" % (WR + sl * 16384 + s * 8192 + gg * 4096))
                a("s_add_u32 s38, s37, %d" % (gg * 196608 + (s + 1) * 2048))
                a("buffer_load_dwordx4 v3, s[16:19], s38 offen lds"); landed[("S", b)] = vm.issue()
    def issue_wq(b, ldsoff, regs=True):
        if regs: kbregs(b)
        for gg in range(2):
            a("s_add_u32 m0, s34, %d" % (ldsoff + gg * 4096))
            if gg: a("s_add_u32 s38, s37, 196608")
            a("buffer_load_dwordx4 v3, s[16:19], %s offen lds" % ("s37", "s38")[gg]); landed[("Q", b)] = vm.issue()
    stamp(a, 12)
    issue_stage(0); issue_wq(0, R4, False)
    issue_stage(1); issue_wq(1, R4 + 8192, False)
    srd(a, 20, 42, 43, WS_BYTES)
    srd(a, 44, 8, 9, 1024 * 1024 * 2)
    srd(a, 48, 10, 11, 2048 * 1024 * 2)
    srd(a, 52, 40, 41, 256)
    CAP = 64; QA = 192; WF = 32; XF = 224
    vX = [8, 9]; vW = [10, 11, 12, 13]
    a("v_and_b32 v14, 15, v0"); a("v_lshrrev_b32 v15, 4, v0")
    a("v_lshrrev_b32 v16, 1, v14"); a("v_xor_b32 v16, v16, v15")
    a("s_lshl_b32 s32, s30, 12")
    a("v_lshlrev_b32 v17, 7, v14"); a("v_add_u32 v17, s32, v17"); a("v_add_u32 v17, 0x%x, v17" % XR)
    for kq in range(2):
        a("v_xor_b32 v18, %d, v16" % (kq << 2)); a("v_lshlrev_b32 v18, 4, v18"); a("v_add_u32 v%d, v17, v18" % vX[kq])
    a("v_lshrrev_b32 v17, 2, v14"); a("v_and_b32 v18, 3, v14")
    a("v_lshlrev_b32 v19, 3, v15"); a("v_add_u32 v19, v19, v17"); a("v_lshlrev_b32 v19, 7, v19")
    a("v_lshrrev_b32 v20, 1, v17"); a("v_and_b32 v21, 1, v15"); a("v_lshlrev_b32 v21, 1, v21"); a("v_or_b32 v20, v20, v21")
    a("v_lshlrev_b32 v20, 5, v20"); a("v_lshlrev_b32 v18, 3, v18")
    a("v_add3_u32 v19, v19, v20, v18")
    for c in range(4): a("v_xor_b32 v%d, %d, v19" % (vW[c], c * 32))
    vWR = [24, 25, 26, 27]
    for c in range(4): a("v_add_u32 v%d, 0x%x, v%d" % (vWR[c], R4, vW[c]))
    for r in range(32): a("v_mov_b32 v%d, 0" % (QA + r))
    lg = Lgkm()
    def qsteps(blocks):
        steps = []
        for (xs, wv, wo) in blocks:
            for kq in range(2): steps.append((xs, wv, wo, kq))
        return steps
    state = {"st": 0}
    def q_reads(step, st):
        xs, wv, wo, kq = step
        ids = {}; fl = []
        if xs[0] == "lds":
            for t in range(2):
                def f(t=t):
                    a("ds_read_b128 %s, v%d offset:%d" % (vr(XF + st * 8 + t * 4, 4), vX[kq], xs[1] * 16384 + t * 2048)); ids["X"] = lg.issue()
                fl.append(f)
        for c in range(4):
            for hf in range(2):
                def f(c=c, hf=hf):
                    a("ds_read_b64_tr_b16 %s, v%d offset:%d" % (vr(WF + st * 16 + c * 4 + hf * 2, 2), wv[c], wo + kq * 4096 + hf * 512)); ids[c] = lg.issue()
                fl.append(f)
        return fl, ids
    def q_run(steps, hooks=None):
        hooks = hooks or {}
        st = 0
        if 0 in hooks: hooks[0]()
        rl, ids = q_reads(steps[0], st)
        for f in rl: f()
        for n, step in enumerate(steps):
            xs, wv, wo, kq = step
            nxt = n + 1 < len(steps)
            nrl = []
            k = 0
            for c in range(4):
                for t in range(2):
                    lg.need(a, ids[c])
                    if xs[0] == "lds": xr = XF + st * 8 + t * 4
                    else: xr = xs[1] + kq * 8 + t * 4
                    d = vr(QA + (t * 4 + c) * 4, 4)
                    a("v_mfma_f32_16x16x32_bf16 %s, %s, %s, %s" % (d, vr(WF + st * 16 + c * 4, 4), vr(xr, 4), d))
                    if k == 0 and nxt:
                        if n + 1 in hooks: hooks[n + 1]()
                        nrl, nids = q_reads(steps[n + 1], st ^ 1)
                    take = 2 if len(nrl) > (7 - k) else 1
                    for _ in range(take):
                        if nrl: nrl.pop(0)()
                    k += 1
            if nxt:
                while nrl: nrl.pop(0)()
                ids = nids; st ^= 1
    def capture(b):
        base = CAP + (b - 4) * 16
        for kq in range(2):
            for t in range(2):
                a("ds_read_b128 %s, v%d offset:%d" % (vr(base + kq * 8 + t * 4, 4), vX[kq], (b & 3) * 16384 + t * 2048)); lg.issue()
    vm.need(a, landed[("Q", 0)])
    stamp(a, 1)
    a("s_barrier")
    for b in range(16):
        if b == 0:
            issue_stage(2); issue_wq(2, R4 + 2 * 8192, False)
            issue_stage(3); issue_wq(3, R4 + 3 * 8192, False)
        elif b + 3 < 16:
            issue_stage(b + 3)
        if 5 <= b <= 8: issue_wq(12 + b - 5, R4 + (b - 5) * 8192)
        if b >= 13:
            q0 = 4 + 2 * (b - 13)
            issue_wq(q0, WR + (b - 13) * 16384); issue_wq(q0 + 1, WR + (b - 13) * 16384 + 8192)
        if b < 4:
            q_run(qsteps([(("lds", b), vWR, b * 8192)]))
        elif b < 12:
            capture(b)
        lg.all(a)
        if b + 1 < 16:
            vm.need(a, landed[("Q", b + 1)] if b + 1 < 4 else landed[("S", b + 1)])
        a("s_barrier")
    stamp(a, 2)
    issue_wq(10, WR + 3 * 16384); issue_wq(11, WR + 3 * 16384 + 8192)
    blocks = [(("lds", s), vWR, s * 8192) for s in range(4)] + [(("reg", CAP + q * 16), vW, WR + q * 8192) for q in range(8)]
    def hookP1():
        lg.all(a); stamp(a, 13); vm.all(a); a("s_barrier"); stamp(a, 15)
    def hookP2():
        lg.all(a); a("s_barrier")
    q_run(qsteps(blocks), {8: hookP1, 12: hookP2})
    stamp(a, 3)
    a("s_lshl_b32 s32, s30, 10")
    a("v_add_u32 v14, s32, v1")
    a("s_nop 4")
    for h in range(2):
        for t in range(2):
            dst = (WF + h * 4) if t == 0 else (QF + h * 4)
            for nt in range(2):
                s0 = QA + (t * 4 + 2 * h + nt) * 4
                a("v_cvt_pk_bf16_f32 v%d, v%d, v%d" % (dst + nt * 2, s0, s0 + 1))
                a("v_cvt_pk_bf16_f32 v%d, v%d, v%d" % (dst + nt * 2 + 1, s0 + 2, s0 + 3))
        a("ds_write_b128 v14, %s offset:%d" % (vr(WF + h * 4, 4), QL + h * 4096))
    a("s_branch L_ATT")
    a.label("L_KV")
    ACC = 64; FR = 128; PK = 192
    vXb = [4, 5]; vWb = [6, 7]; vX = [8, 9]; vW2 = [10, 11]
    def fX(st, t): return FR + st * 32 + t * 4
    def fW(st, c): return FR + st * 32 + 16 + c * 4
    def acc(t, c): return ACC + (t * 4 + c) * 4
    a("s_lshr_b32 s30, s24, 1")
    a("s_and_b32 s31, s24, 1")
    a("s_waitcnt lgkmcnt(0)")
    srd(a, 20, 42, 43, WS_BYTES)
    srd(a, 44, 8, 9, 1024 * 1024 * 2)
    srd(a, 48, 10, 11, 2048 * 1024 * 2)
    srd(a, 52, 40, 41, 256)
    if CPF:
        a("s_getpc_b64 s[96:97]")
        a.label("L_PC")
        a("s_sub_u32 s96, s96, L_PC-%s" % NM)
        a("s_subb_u32 s97, s97, 0")
        a("v_lshlrev_b32 v12, 7, v0")
        a("s_lshl_b32 s32, s24, 13")
        a("v_add_u32 v12, s32, v12")
        a("v_min_u32 v12, L_END-%s, v12" % NM)
        a("global_load_dword v30, v12, s[96:97]")
    a("s_cmp_lg_u32 s24, 0")
    a("s_cbranch_scc1 L_NOINIT")
    a("s_mov_b64 exec, 1")
    for r in range(4): a("v_mov_b32 v%d, 0" % (12 + r))
    a("s_lshl_b32 s32, s25, 4"); a("s_add_u32 s32, s32, s26"); a("s_lshl_b32 s32, s32, 7"); a("s_add_u32 s32, s32, 0x%x" % FL_OFF)
    a("buffer_store_dwordx4 v[12:15], v12, s[20:23], s32 offen sc1")
    a("s_cmp_lg_u32 s26, 0")
    a("s_cbranch_scc1 L_NOC2")
    a("s_lshl_b32 s32, s25, 7"); a("s_add_u32 s32, s32, 0x%x" % C2_OFF)
    a("buffer_store_dword v12, v12, s[20:23], s32 offen sc1")
    a("buffer_store_dword v12, v12, s[20:23], s32 offen offset:2048 sc1")
    a.label("L_NOC2")
    a("s_and_b32 s32, s2, 31"); a("s_lshl_b32 s32, 1, s32")
    a("v_mov_b32 v16, s32")
    a("s_lshr_b32 s33, s2, 5"); a("s_lshl_b32 s33, s33, 2")
    a("s_waitcnt vmcnt(0)")
    a("buffer_atomic_or v16, v12, s[52:55], s33 offen sc1")
    a("s_mov_b64 exec, -1")
    a.label("L_NOINIT")
    a("v_and_b32 v12, 15, v0"); a("v_lshrrev_b32 v13, 4, v0")
    a("v_lshrrev_b32 v14, 1, v12"); a("v_xor_b32 v14, v14, v13")
    a("s_lshl_b32 s32, s30, 13")
    a("v_lshlrev_b32 v15, 7, v12"); a("v_add_u32 v15, s32, v15"); a("v_add_u32 v15, 0x%x, v15" % XR)
    for kq in range(2):
        a("v_xor_b32 v16, %d, v14" % (kq << 2)); a("v_lshlrev_b32 v16, 4, v16"); a("v_add_u32 v%d, v15, v16" % vXb[kq])
    a("v_lshrrev_b32 v17, 2, v12"); a("v_and_b32 v18, 3, v12")
    a("v_lshlrev_b32 v20, 3, v13"); a("v_add_u32 v20, v20, v17"); a("v_lshlrev_b32 v20, 7, v20")
    a("v_lshrrev_b32 v21, 1, v17"); a("v_and_b32 v22, 1, v13"); a("v_lshlrev_b32 v22, 1, v22"); a("v_or_b32 v21, v21, v22")
    a("s_lshl_b32 s33, s31, 1")
    a("v_xor_b32 v21, s33, v21"); a("v_lshlrev_b32 v21, 5, v21"); a("v_lshlrev_b32 v22, 3, v18")
    a("v_add3_u32 v%d, v21, v22, v20" % vWb[0])
    a("v_xor_b32 v%d, 32, v%d" % (vWb[1], vWb[0]))
    for q in range(2):
        a("v_mov_b32 v%d, v%d" % (vX[q], vXb[q])); a("v_mov_b32 v%d, v%d" % (vW2[q], vWb[q]))
    for r in range(64): a("v_mov_b32 v%d, 0" % (ACC + r))
    a("s_mov_b32 s34, 16384")
    a("s_mov_b32 s35, 0")
    lg = Lgkm()
    def reads(kq, st):
        ids = {}
        def rX(t):
            def f():
                a("ds_read_b128 %s, v%d offset:%d" % (vr(fX(st, t), 4), vX[kq], t * 2048)); ids["X%d" % t] = lg.issue()
            return f
        def rW(c, hf):
            def f():
                a("ds_read_b64_tr_b16 %s, v%d offset:%d" % (vr(fW(st, c) + 2 * hf, 2), vW2[c & 1], (c >> 1) * 8192 + kq * 4096 + hf * 512)); ids["W%d" % c] = lg.issue()
            return f
        l = [rX(0), rW(0, 0), rW(0, 1), rX(1), rX(2), rX(3)]
        for c in range(1, 4): l += [rW(c, 0), rW(c, 1)]
        return l, ids
    def mfma(t, c, st, ids):
        lg.need(a, max(ids["X%d" % t], ids["W%d" % c]))
        d = vr(acc(t, c), 4)
        if c < 2: a("v_mfma_f32_16x16x32_bf16 %s, %s, %s, %s" % (d, vr(fW(st, c), 4), vr(fX(st, t), 4), d))
        else:     a("v_mfma_f32_16x16x32_bf16 %s, %s, %s, %s" % (d, vr(fX(st, t), 4), vr(fW(st, c), 4), d))
    order = [(t, c) for c in range(4) for t in range(4)]
    a("s_barrier")
    stamp(a, 1)
    rl, ids = reads(0, 0)
    for f in rl: f()
    a.label("L_G1LOOP")
    for kq in range(2):
        st = kq
        nrl, nids = reads(kq ^ 1, st ^ 1)
        start = 0 if kq == 0 else 3
        for n, (t, c) in enumerate(order):
            mfma(t, c, st, ids)
            if kq == 1 and n < 2:
                a("v_add_u32 v%d, s34, v%d" % (vX[n], vXb[n])); a("v_add_u32 v%d, s34, v%d" % (vW2[n], vWb[n]))
            if kq == 1 and n == 2:
                lg.all(a); a("s_barrier")
            if start <= n < start + 12: nrl[n - start]()
            if kq == 0 and n == 13:
                a("s_add_u32 s35, s35, 1")
            if kq == 1 and n == 14:
                a("s_add_u32 s34, s34, 16384")
                a("s_and_b32 s34, s34, 0xffff")
                a("s_cmp_lt_u32 s35, 16")
        ids = nids
    assert lg.n - lg.done == 12, (lg.n, lg.done)
    a("s_cbranch_scc1 L_G1LOOP")
    a("s_waitcnt lgkmcnt(0)")
    stamp(a, 2)
    a("s_lshl_b32 s36, s26, 1"); a("s_add_u32 s36, s36, s31"); a("s_lshl_b32 s36, s36, 7")
    a("s_lshl_b32 s37, s25, 3"); a("s_lshl_b32 s38, s30, 2"); a("s_add_u32 s37, s37, s38")
    a("s_add_u32 s36, s36, s37"); a("s_lshl_b32 s36, s36, 10")
    a("s_add_u32 s37, s36, 0x%x" % VG_OFF)
    def pk(t, s): return PK + t * 8 + s * 4
    for s in range(2):
        for t in range(4):
            for nt in range(2):
                c = s * 2 + nt
                for hf in range(2):
                    a("v_cvt_pk_bf16_f32 v%d, v%d, v%d" % (pk(t, s) + nt * 2 + hf, acc(t, c) + 2 * hf, acc(t, c) + 2 * hf + 1))
            a("buffer_store_dwordx4 %s, v1, s[20:23], %s offen offset:%d sc1" % (vr(pk(t, s), 4), ("s36", "s37")[s], t * 1024))
    a("s_mul_i32 s38, s31, %d" % (KVH[1] - KVH[0]))
    a("s_add_u32 s38, s38, %d" % KVH[0])
    a("s_lshl_b32 s39, s30, 12")
    a("s_add_u32 s38, s38, s39")
    a("v_add_u32 v12, s38, v1")
    a("v_lshlrev_b32 v13, 3, v0"); a("v_add_u32 v13, s38, v13")
    a("s_lshl_b32 s32, s25, 4"); a("s_add_u32 s32, s32, s26"); a("s_lshl_b32 s32, s32, 7"); a("s_add_u32 s32, s32, 0x%x" % FL_OFF)
    a("s_lshl_b32 s33, s24, 2"); a("s_add_u32 s32, s32, s33")
    a("s_barrier")
    for t in range(4):
        a("ds_write_b128 v12, %s offset:%d" % (vr(pk(t, 0), 4), (16 + t) * 1024))
        a("ds_write_b64 v13, %s offset:%d" % (vr(pk(t, 1), 2), 24576 + (16 + t) * 1024))
        a("ds_write_b64 v13, %s offset:%d" % (vr(pk(t, 1) + 2, 2), 24576 + (16 + t) * 1024 + 512))
    a("s_barrier")
    a("v_mov_b32 v15, 1"); a("v_mov_b32 v16, 0")
    a("s_waitcnt vmcnt(0)")
    a("s_mov_b64 exec, 1")
    a("buffer_store_dword v15, v16, s[20:23], s32 offen sc1")
    a("s_mov_b64 exec, -1")
    stamp(a, 3)
    a("v_and_b32 v17, 1, v0"); a("v_add_u32 v17, 1, v17")
    a("v_cmp_ge_u32 vcc, s25, v17")
    a("v_cndmask_b32_e64 v17, 0, v17, vcc")
    a("v_lshlrev_b32 v17, 11, v17")
    a("v_sub_u32 v17, s32, v17")
    a("v_and_b32 v18, 7, v0"); a("v_lshlrev_b32 v18, 2, v18")
    a("s_mov_b32 s35, %d" % SPIN_MAX)
    a.label("L_HPOLL")
    a("buffer_load_dword v19, v18, s[52:55], 0 offen sc1")
    a("buffer_load_dword v20, v17, s[20:23], 0 offen sc1")
    a("s_waitcnt vmcnt(0)")
    a("v_cmp_ne_u32 vcc, -1, v19")
    a("v_cmp_ne_u32 s[58:59], 1, v20")
    a("s_or_b64 s[58:59], s[58:59], vcc")
    a("s_cmp_eq_u64 s[58:59], 0")
    a("s_cbranch_scc1 L_HOK")
    a("s_sub_u32 s35, s35, 1"); a("s_cmp_lg_u32 s35, 0")
    a("s_cbranch_scc1 L_HPOLL")
    a.label("L_HOK")
    stamp(a, 13)
    HB = 64
    for d in (1, 2):
        skip = "L_HSKIP%d" % d
        a("s_cmp_lt_u32 s25, %d" % d)
        a("s_cbranch_scc1 %s" % skip)
        a("s_sub_u32 s38, s36, %d" % (d * 8192)); a("s_sub_u32 s39, s37, %d" % (d * 8192))
        hb = HB + (d - 1) * 32
        for t in range(4):
            a("buffer_load_dwordx4 %s, v1, s[20:23], s38 offen offset:%d sc1" % (vr(hb + t * 8, 4), t * 1024))
            a("buffer_load_dwordx4 %s, v1, s[20:23], s39 offen offset:%d sc1" % (vr(hb + t * 8 + 4, 4), t * 1024))
        a.label(skip)
    a("s_waitcnt vmcnt(0)")
    for d in (1, 2):
        skip = "L_HW%d" % d
        a("s_cmp_lt_u32 s25, %d" % d)
        a("s_cbranch_scc1 %s" % skip)
        hb = HB + (d - 1) * 32
        tb = (2 - d) * 8
        for t in range(4):
            a("ds_write_b128 v12, %s offset:%d" % (vr(hb + t * 8, 4), (tb + t) * 1024))
            a("ds_write_b64 v13, %s offset:%d" % (vr(hb + t * 8 + 4, 2), 24576 + (tb + t) * 1024))
            a("ds_write_b64 v13, %s offset:%d" % (vr(hb + t * 8 + 6, 2), 24576 + (tb + t) * 1024 + 512))
        a.label(skip)
    a.label("L_ATT")
    a("s_and_b32 s56, s27, 3"); a("s_lshl_b32 s56, s56, 2"); a("s_and_b32 s29, s28, 3"); a("s_add_u32 s56, s56, s29")
    a("s_lshr_b32 s57, s27, 2"); a("s_lshl_b32 s57, s57, 3"); a("s_lshr_b32 s29, s28, 2"); a("s_add_u32 s57, s57, s29")
    a("v_lshrrev_b32 v4, 3, v0"); a("v_and_b32 v5, 7, v0"); a("v_lshrrev_b32 v6, 4, v0")
    a("v_lshlrev_b32 v6, 1, v6"); a("v_xor_b32 v6, v6, v5"); a("v_lshlrev_b32 v6, 4, v6")
    a("v_lshlrev_b32 v10, 11, v4"); a("v_add_u32 v10, v10, v6")
    a("s_lshl_b32 s30, s57, 7")
    a("v_add_u32 v10, s30, v10")
    def wo_dma(par, first, count):
        base = (WOE, WOO)[par]
        for i in range(count):
            c0 = first * 4 + 8 * i
            a("s_add_u32 m0, s61, %d" % (base + c0 * 1024))
            a("s_add_u32 s33, s60, %d" % (((c0 >> 2) * 64 + 32 * par) * 2048))
            a("buffer_load_dwordx4 v10, s[44:47], s33 offen lds")
    a("s_lshl_b32 s61, s24, 10")
    a("s_lshr_b32 s60, s24, 2"); a("s_lshl_b32 s60, s60, 17")
    a("s_and_b32 s33, s24, 3"); a("s_lshl_b32 s33, s33, 14")
    a("s_add_u32 s60, s60, s33")
    ML = 24; MH = 28; ONE = 32; O = 36; L = 44; CC = 48; MC = 50; MX = 52; KF = 56; VF = 72; S = 96
    a("s_waitcnt lgkmcnt(0)")
    a("v_and_b32 v2, 15, v0")
    a("v_lshrrev_b32 v3, 4, v0"); a("v_lshlrev_b32 v3, 2, v3")
    a("v_sub_u32 v4, v2, v3")
    a("v_mov_b32 v5, 0x%x" % NEG)
    for r in range(4):
        a("v_cmp_le_i32 vcc, %d, v4" % r)
        a("v_cndmask_b32_e64 v%d, v5, 0, vcc" % (MH + r))
        a("v_cndmask_b32_e64 v%d, 0, v5, vcc" % (ML + r))
    for r in range(4): a("v_mov_b32 v%d, 0x3f803f80" % (ONE + r))
    a("v_mov_b32 v%d, 0x%x" % (CC, f32bits(CSC))); a("v_mov_b32 v%d, 0x%x" % (CC + 1, f32bits(CSC)))
    a("s_and_b32 s31, s24, 3"); a("s_lshl_b32 s31, s31, 1"); a("s_lshr_b32 s32, s24, 2"); a("s_add_u32 s31, s31, s32")
    a("s_lshl_b32 s36, s31, 10")
    a("v_add_u32 v6, s36, v1")
    a("v_lshlrev_b32 v7, 3, v0"); a("v_add_u32 v7, s36, v7")
    a("v_add_u32 v6, 0x%x, v6" % KVH[0]); a("v_add_u32 v7, 0x%x, v7" % (KVH[0] + 24576))
    a("v_add_u32 v8, s61, v1")
    a("s_lshl_b32 s37, s25, 3"); a("s_add_u32 s37, s37, s31"); a("s_lshl_b32 s37, s37, 5")
    a("s_lshl_b32 s38, s26, 1"); a("s_add_u32 s37, s37, s38"); a("s_lshl_b32 s37, s37, 10")
    a("s_add_u32 s37, s37, 0x%x" % OG_OFF)
    a("s_lshl_b32 s38, s25, 3"); a("s_add_u32 s38, s38, s31")
    a("s_sub_i32 s38, 16, s38"); a("s_max_i32 s38, s38, 0")
    a("s_lshl_b32 s39, s25, 7"); a("s_add_u32 s39, s39, 0x%x" % C2_OFF)
    a("s_mov_b32 s58, 0")
    a("s_barrier")
    stamp(a, 4)
    a("s_cmp_ge_u32 s24, 4")
    a("s_cbranch_scc1 L_NOQRD")
    a("ds_read_b128 %s, v8 offset:%d" % (vr(QF, 4), QL))
    a("ds_read_b128 %s, v8 offset:%d" % (vr(QF + 4, 4), QL + 4096))
    a.label("L_NOQRD")
    wo_dma(0, 2, 7)
    a.label("L_ROUND")
    lg = Lgkm(); lg.n = 2
    kid = {}
    def rdK(i):
        a("ds_read_b128 %s, v6 offset:%d" % (vr(KF + (i % 4) * 4, 4), i * 1024)); kid[i] = lg.issue()
    for i in range(3): rdK(i)
    for r in range(8): a("v_mov_b32 v%d, 0" % (O + r))
    for r in range(4): a("v_mov_b32 v%d, 0" % (L + r))
    for i in range(17):
        c0 = vr(ML, 4) if i == 0 else (vr(MH, 4) if i == 16 else "0")
        lg.need(a, kid[i])
        a("v_mfma_f32_16x16x32_bf16 %s, %s, %s, %s" % (vr(S + 4 * i, 4), vr(KF + (i % 4) * 4, 4), vr(QF, 4), c0))
        if i + 3 < 17: rdK(i + 3)
    vid = {}
    def rdV(p):
        st = VF + (p % 3) * 8
        for dt in range(2):
            for h in range(2):
                if 2 * p + h < 17:
                    a("ds_read_b64 %s, v7 offset:%d" % (vr(st + dt * 4 + h * 2, 2), (2 * p + h) * 1024 + dt * 512)); vid[(p, dt)] = lg.issue()
    rdV(0); rdV(1)
    a("s_cmp_eq_u32 s58, 0")
    a("s_cbranch_scc1 L_NOPUB0")
    a("s_waitcnt vmcnt(0)")
    a("s_barrier")
    a("s_cmp_lg_u32 s24, 0")
    a("s_cbranch_scc1 L_NOSIG0")
    a("s_mov_b64 exec, 1")
    a("v_mov_b32 v2, 1"); a("v_mov_b32 v3, 0")
    a("buffer_atomic_add v2, v3, s[20:23], s39 offen sc1")
    a("s_mov_b64 exec, -1")
    a.label("L_NOSIG0")
    wo_dma(0, 0, 1)
    wo_dma(1, 0, 6)
    a.label("L_NOPUB0")
    a("s_nop 7")
    a("s_cmp_eq_u32 s38, 0")
    a("s_cbranch_scc1 L_NOFIX")
    for i in range(16):
        for r in range(4): a("v_mov_b32 v%d, v5" % (S + 4 * i + r))
        if i < 15:
            a("s_cmp_eq_u32 s38, %d" % (i + 1))
            a("s_cbranch_scc1 L_NOFIX")
    a.label("L_NOFIX")
    for q in range(34):
        m = MX + (q % 2)
        if q < 2: a("v_max_f32 v%d, v%d, v%d" % (m, S + 2 * q, S + 2 * q + 1))
        else: a("v_max3_f32 v%d, v%d, v%d, v%d" % (m, m, S + 2 * q, S + 2 * q + 1))
    a("v_max_f32 v%d, v%d, v%d" % (MX, MX, MX + 1))
    a("v_mov_b32 v%d, v%d" % (MX + 1, MX))
    a("v_permlane32_swap_b32 v%d, v%d" % (MX, MX + 1))
    a("v_max_f32 v%d, v%d, v%d" % (MX, MX, MX + 1))
    a("v_mov_b32 v%d, v%d" % (MX + 1, MX))
    a("v_permlane16_swap_b32 v%d, v%d" % (MX, MX + 1))
    a("v_max_f32 v%d, v%d, v%d" % (MX, MX, MX + 1))
    a("v_mul_f32 v%d, v%d, v%d" % (MC, MX, CC))
    a("v_sub_f32 v%d, 0, v%d" % (MC, MC))
    a("v_mov_b32 v%d, v%d" % (MC + 1, MC))
    for p in range(9):
        b = S + 8 * p
        nv = 8 if p < 8 else 4
        for r in range(0, nv, 2):
            a("v_pk_fma_f32 %s, %s, %s, %s" % (vr(b + r, 2), vr(b + r, 2), vr(CC, 2), vr(MC, 2)))
        for r in range(nv): a("v_exp_f32 v%d, v%d" % (b + r, b + r))
        for r in range(nv // 2): a("v_cvt_pk_bf16_f32 v%d, v%d, v%d" % (b + r, b + 2 * r, b + 2 * r + 1))
        st = VF + (p % 3) * 8
        for dt in range(2):
            lg.need(a, vid[(p, dt)])
            if p < 8: a("v_mfma_f32_16x16x32_bf16 %s, %s, %s, %s" % (vr(O + 4 * dt, 4), vr(st + 4 * dt, 4), vr(b, 4), vr(O + 4 * dt, 4)))
            else:     a("v_mfma_f32_16x16x16_bf16 %s, %s, %s, %s" % (vr(O + 4 * dt, 4), vr(st + 4 * dt, 2), vr(b, 2), vr(O + 4 * dt, 4)))
        if p < 8: a("v_mfma_f32_16x16x32_bf16 %s, %s, %s, %s" % (vr(L, 4), vr(ONE, 4), vr(b, 4), vr(L, 4)))
        else:     a("v_mfma_f32_16x16x16_bf16 %s, %s, %s, %s" % (vr(L, 4), vr(ONE, 2), vr(b, 2), vr(L, 4)))
        if p + 2 < 9: rdV(p + 2)
    a("v_rcp_f32 v%d, v%d" % (MX, L))
    for r in range(8): a("v_mul_f32 v%d, v%d, v%d" % (O + r, O + r, MX))
    for r in range(4): a("v_cvt_pk_bf16_f32 v%d, v%d, v%d" % (S + r, O + 2 * r, O + 2 * r + 1))
    a("buffer_store_dwordx4 %s, v1, s[20:23], s37 offen sc1" % vr(S, 4))
    a("s_add_u32 s37, s37, 1024")
    a("v_add_u32 v6, %d, v6" % (KVH[1] - KVH[0])); a("v_add_u32 v7, %d, v7" % (KVH[1] - KVH[0]))
    for r in range(4): a("v_mov_b32 v%d, v%d" % (QF + r, QF + 4 + r))
    if DIAG:
        a("s_cmp_lg_u32 s58, 0")
        a("s_cbranch_scc1 L_NOST14")
        stamp(a, 14)
        a.label("L_NOST14")
    a("s_add_u32 s58, s58, 1")
    a("s_cmp_lt_u32 s58, 2")
    a("s_cbranch_scc1 L_ROUND")
    stamp(a, 5)
    a("s_waitcnt vmcnt(0)")
    a("s_barrier")
    a("s_cmp_lg_u32 s24, 0")
    a("s_cbranch_scc1 L_NOSIG1")
    a("s_mov_b64 exec, 1")
    a("v_mov_b32 v2, 1"); a("v_mov_b32 v3, 0")
    a("buffer_atomic_add v2, v3, s[20:23], s39 offen offset:2048 sc1")
    a("s_mov_b64 exec, -1")
    a.label("L_NOSIG1")
    wo_dma(1, 12, 2)
    stamp(a, 6)
    A2 = 16; F2 = 48; OF = 96
    a("v_and_b32 v12, 15, v0"); a("v_lshrrev_b32 v13, 4, v0")
    a("v_lshrrev_b32 v17, 2, v12"); a("v_and_b32 v18, 3, v12")
    a("v_lshlrev_b32 v19, 2, v13"); a("v_add_u32 v19, v19, v17")
    a("v_lshrrev_b32 v20, 1, v19"); a("v_and_b32 v20, 3, v20")
    a("v_lshlrev_b32 v19, 7, v19"); a("v_lshlrev_b32 v20, 5, v20"); a("v_lshlrev_b32 v18, 3, v18")
    a("v_add3_u32 v19, v19, v20, v18")
    a("s_lshr_b32 s30, s24, 2"); a("s_lshl_b32 s31, s30, 15")
    a("v_add_u32 v19, s31, v19")
    AE = [4, 5, 6, 7]; AO = [8, 9, 11, 14]
    for nt in range(4):
        a("v_xor_b32 v20, %d, v19" % (nt * 32))
        a("v_add_u32 v%d, %d, v20" % (AE[nt], WOE)); a("v_add_u32 v%d, 0x%x, v20" % (AO[nt], WOO))
    for r in range(32): a("v_mov_b32 v%d, 0" % (A2 + r))
    a("s_lshl_b32 s32, s56, 3"); a("s_and_b32 s33, s24, 3"); a("s_lshl_b32 s33, s33, 1"); a("s_add_u32 s32, s32, s33")
    a("s_lshl_b32 s36, s32, 15")
    a("s_lshl_b32 s33, s30, 14")
    a("s_add_u32 s36, s36, s33"); a("s_add_u32 s36, s36, 0x%x" % OG_OFF)
    a("s_lshl_b32 s39, s56, 7"); a("s_add_u32 s39, s39, 0x%x" % C2_OFF)
    a("s_add_u32 s38, s39, 2048")
    def oloads(par):
        for s in range(8):
            for t in range(2):
                off = t * 32768 + (2 * s + par) * 1024
                a("s_add_u32 s33, s36, %d" % (off & ~4095))
                a("buffer_load_dwordx4 %s, v1, s[20:23], s33 offen offset:%d sc1" % (vr(OF + par * 64 + s * 8 + t * 4, 4), off & 4095))
    poll(a, "s39", "ge", "16", "L_PC0")
    stamp(a, 7)
    oloads(0)
    lg = Lgkm()
    def wreads(par, s):
        st = s & 1
        ids = {}
        fl = []
        for nt in range(4):
            for hf in range(2):
                def f(nt=nt, hf=hf):
                    a("ds_read_b64_tr_b16 %s, v%d offset:%d" % (vr(F2 + st * 16 + nt * 4 + hf * 2, 2), (AE, AO)[par][nt], s * 4096 + hf * 2048))
                    ids[nt] = lg.issue()
                fl.append(f)
        return fl, ids
    for par in range(2):
        if par == 1:
            stamp(a, 9)
            a("s_barrier")
        rl, ids = wreads(par, 0)
        for f in rl: f()
        for s in range(8):
            st = s & 1
            if s + 1 < 8: nrl, nids = wreads(par, s + 1)
            if par == 0:
                if s < 4: a("s_waitcnt vmcnt(%d)" % (14 - 2 * s))
                elif s == 4:
                    poll(a, "s38", "ge", "16", "L_PC1")
                    stamp(a, 8)
                    oloads(1)
            else:
                a("s_waitcnt vmcnt(%d)" % (14 - 2 * s))
            n = 0
            for nt in range(4):
                lg.need(a, ids[nt])
                for t in range(2):
                    d = vr(A2 + (t * 4 + nt) * 4, 4)
                    a("v_mfma_f32_16x16x32_bf16 %s, %s, %s, %s" % (d, vr(F2 + st * 16 + nt * 4, 4), vr(OF + par * 64 + s * 8 + t * 4, 4), d))
                    if s + 1 < 8: nrl[n]()
                    n += 1
            if s + 1 < 8: ids = nids
    stamp(a, 10)
    a("s_and_b32 s33, s24, 3"); a("s_lshl_b32 s33, s33, 13"); a("s_add_u32 s33, s33, 0x%x" % RED)
    a("v_add_u32 v2, s33, v1")
    a("s_nop 7")
    a("s_cmp_eq_u32 s30, 0")
    a("s_cbranch_scc1 L_RED0")
    for q in range(8): a("ds_write_b128 v2, %s offset:%d" % (vr(A2 + q * 4, 4), q * 1024))
    a("s_waitcnt lgkmcnt(0)")
    a("s_barrier")
    if DIAG:
        a("s_branch L_FIN")
    else:
        a("s_endpgm")
    a.label("L_RED0")
    a("s_barrier")
    for q in range(8): a("ds_read_b128 %s, v2 offset:%d" % (vr(OF + q * 4, 4), q * 1024))
    a("v_lshlrev_b32 v12, 11, v12")
    a("v_and_b32 v15, 1, v13"); a("v_lshlrev_b32 v15, 5, v15")
    a("v_lshrrev_b32 v13, 1, v13"); a("v_lshlrev_b32 v13, 4, v13")
    a("v_add3_u32 v12, v12, v15, v13")
    a("s_lshl_b32 s32, s32, 15")
    a("s_lshl_b32 s33, s57, 7"); a("s_add_u32 s32, s32, s33")
    a("s_add_u32 s33, s32, 32768")
    for q in range(8):
        a("s_waitcnt lgkmcnt(%d)" % (7 - q))
        for r in range(0, 4, 2):
            a("v_pk_add_f32 %s, %s, %s" % (vr(A2 + q * 4 + r, 2), vr(A2 + q * 4 + r, 2), vr(OF + q * 4 + r, 2)))
    for t in range(2):
        for pr in range(2):
            b = F2 + (t * 2 + pr) * 4
            for h in range(2):
                nt = pr * 2 + h
                s0 = A2 + (t * 4 + nt) * 4
                a("v_cvt_pk_bf16_f32 v%d, v%d, v%d" % (b + 2 * h, s0, s0 + 1))
                a("v_cvt_pk_bf16_f32 v%d, v%d, v%d" % (b + 2 * h + 1, s0 + 2, s0 + 3))
            a("v_permlane16_swap_b32 v%d, v%d" % (b, b + 2))
            a("v_permlane16_swap_b32 v%d, v%d" % (b + 1, b + 3))
            a("buffer_store_dwordx4 %s, v12, s[48:51], %s offen offset:%d" % (vr(b, 4), ("s32", "s33")[t], pr * 64))
    if DIAG:
        a.label("L_FIN")
        a("s_waitcnt vmcnt(0)")
        stamp(a, 11)
        stamp_flush(a)
    a.label("L_END")
    a("s_endpgm")
    a.fix_hazards()
    return a.text()

def main():
    nm = "standalone__sliding_block__prompt_kernel"
    hdr = open("standalone__sliding_block__prompt.s.ref").read().split("; Override")[0]
    out = hdr
    out += "; @launch grid=(256,1,1) block=(512,1,1) lds=163840\n"
    out += '.amdgcn_target "amdgcn-amd-amdhsa--gfx950"\n.text\n'
    out += kernel_header(nm) + build()
    out += '.section .rodata,"a"\n.p2align 6\n' + kernel_desc(nm, 240, 100, 240)
    open(sys.argv[1] if len(sys.argv) > 1 else "standalone__sliding_block__prompt.s", "w").write(out)
main()
```

```python
import sys, os, struct
from asmlib import *

DIAG = int(os.environ.get("DIAG", "0"))
KG_OFF = 0
VG_OFF = 4 << 20
OG_OFF = 8 << 20
FL_OFF = 12 << 20
C2_OFF = FL_OFF + 65536
WS_BYTES = 64 << 20
DIAG_OFF = 32 << 20
SPIN_MAX = 200000
RAMP = [int(x) for x in os.environ.get("RAMP", "2,4,6,9").split(",")]
NOATOM = int(os.environ.get("NOATOM", "0"))
ROT2 = int(os.environ.get("ROT2", "7"))
SIGP = int(os.environ.get("SIGP", "3"))
CNT = 65536 - 1024
FORCE_EXACT = int(os.environ.get("FORCE_EXACT", "0"))
FLY0 = int(os.environ.get("FLY0", "4"))
EARLY = int(os.environ.get("EARLY", "1"))
LA3 = int(os.environ.get("LA3", "3"))
LOOPSTAMP = int(os.environ.get("LOOPSTAMP", "0"))
PRIO = int(os.environ.get("PRIO", "1"))
WOPF = int(os.environ.get("WOPF", "99"))
CPF = int(os.environ.get("CPF", "1"))
NM = "standalone__sliding_block__prompt_kernel"

def f32bits(x): return struct.unpack("<I", struct.pack("<f", x))[0]
CSC = (32 ** -0.5) * 1.4426950408889634
NEG = f32bits(-1.0e30)

class Cnt:
    def __init__(self, name, mx): self.n = 0; self.done = 0; self.name = name; self.mx = mx
    def issue(self): self.n += 1; return self.n
    def need(self, a, idn):
        if idn <= self.done: return
        cnt = min(self.n - idn, self.mx)
        a("s_waitcnt %s(%d)" % (self.name, cnt)); self.done = self.n - cnt
    def all(self, a):
        a("s_waitcnt %s(0)" % self.name); self.done = self.n
def Lgkm(): return Cnt("lgkmcnt", 15)
def Vm(): return Cnt("vmcnt", 63)

def vr(b, n): return "v[%d:%d]" % (b, b + n - 1)
def srd(a, d, lo, hi, nbytes):
    a("s_mov_b32 s%d, s%d" % (d, lo)); a("s_mov_b32 s%d, s%d" % (d + 1, hi))
    a("s_mov_b32 s%d, 0x%x" % (d + 2, nbytes)); a("s_mov_b32 s%d, 0x00020000" % (d + 3))

SB = 64
NSLOT = 16
def stamp(a, slot):
    if not DIAG: return
    a("s_memrealtime s[%d:%d]" % (SB + 2 * slot, SB + 2 * slot + 1))
    a("s_waitcnt lgkmcnt(0)")
AMP = int(os.environ.get("AMP", "-1"))
def stamp_flush(a):
    if not DIAG: return
    if AMP >= 0:
        a("s_sub_u32 s62, s%d, s%d" % (SB + 2 * AMP, SB))
        a("s_add_u32 s62, s62, s%d" % (SB + 2 * 11))
        a.label("L_AMP")
        a("s_memrealtime s[60:61]")
        a("s_waitcnt lgkmcnt(0)")
        a("s_sub_u32 s60, s60, s62")
        a("s_cmp_lt_i32 s60, 0")
        a("s_cbranch_scc1 L_AMP")
        return
    t = 62
    a("s_lshl_b32 s%d, s2, 3" % t); a("s_add_u32 s%d, s%d, s24" % (t, t)); a("s_lshl_b32 s%d, s%d, 7" % (t, t))
    a("s_add_u32 s%d, s%d, 0x%x" % (t, t, DIAG_OFF))
    a("v_mov_b32 v4, 0")
    for sl in range(NSLOT):
        a("v_mov_b32 v2, s%d" % (SB + 2 * sl)); a("v_mov_b32 v3, s%d" % (SB + 2 * sl + 1))
        a("buffer_store_dwordx2 v[2:3], v4, s[20:23], s%d offen offset:%d" % (t, sl * 8))
        a("s_nop 1")

def pollf(a, soff, name, va=15, vt=2, sc=35):
    a("s_mov_b32 s%d, %d" % (sc, SPIN_MAX))
    a.label(name)
    a("buffer_load_dword v%d, v%d, s[20:23], %s offen sc1" % (vt, va, soff))
    a("s_waitcnt vmcnt(0)")
    a("v_cmp_ne_u32 vcc, 1, v%d" % vt)
    a("s_cmp_eq_u64 vcc, 0")
    a("s_cbranch_scc1 %s_ok" % name)
    a("s_sub_u32 s%d, s%d, 1" % (sc, sc))
    a("s_cmp_lg_u32 s%d, 0" % sc)
    a("s_cbranch_scc1 %s" % name)
    a.label(name + "_ok")

def poll(a, soff, cmp_op, val, name, srdn=20, vt=2, vz=3, st=34, sc=35):
    a("v_mov_b32 v%d, 0" % vz)
    a("s_mov_b32 s%d, %d" % (sc, SPIN_MAX))
    a.label(name)
    a("buffer_load_dword v%d, v%d, s[%d:%d], %s offen sc1" % (vt, vz, srdn, srdn + 3, soff))
    a("s_waitcnt vmcnt(0)")
    a("v_readfirstlane_b32 s%d, v%d" % (st, vt))
    a("s_cmp_%s_u32 s%d, %s" % (cmp_op, st, val))
    a("s_cbranch_scc1 %s_ok" % name)
    a("s_sub_u32 s%d, s%d, 1" % (sc, sc))
    a("s_cmp_lg_u32 s%d, 0" % sc)
    a("s_cbranch_scc1 %s" % name)
    a.label(name + "_ok")

WR = 0
XR = 65536
R4 = 131072
KVH = [65536, 114688]
QL = 0
WOE = 0
WOO = 65536
RED = 131072
QF = 16

def build():
    a = Asm()
    a("s_cmp_ge_u32 s2, 256")
    a("s_cbranch_scc1 L_END")
    a("s_load_dwordx8 s[4:11], s[0:1], 0")
    a("s_load_dwordx4 s[40:43], s[0:1], 32")
    if DIAG:
        for sl in range(1, NSLOT): a("s_mov_b64 s[%d:%d], 0" % (SB + 2 * sl, SB + 2 * sl + 1))
        a("s_memrealtime s[%d:%d]" % (SB, SB + 1))
    a("v_lshrrev_b32 v1, 6, v0")
    a("v_readfirstlane_b32 s24, v1")
    a("v_and_b32 v0, 63, v0")
    a("s_and_b32 s27, s2, 7")
    a("s_lshr_b32 s28, s2, 3")
    a("s_and_b32 s25, s27, 1"); a("s_lshl_b32 s25, s25, 3"); a("s_and_b32 s29, s28, 7"); a("s_add_u32 s25, s25, s29")
    a("s_lshr_b32 s26, s27, 1"); a("s_lshl_b32 s26, s26, 2"); a("s_lshr_b32 s29, s28, 3"); a("s_add_u32 s26, s26, s29")
    a("v_lshlrev_b32 v1, 4, v0")
    a("s_cmp_lt_u32 s24, 4")
    a("s_cbranch_scc1 L_KV")
    a("s_sub_u32 s30, s24, 4")
    a("v_lshrrev_b32 v4, 3, v0")
    a("v_and_b32 v5, 7, v0")
    a("v_lshrrev_b32 v6, 4, v0")
    a("s_and_b32 s31, s30, 1")
    a("s_lshl_b32 s32, s31, 2")
    a("v_or_b32 v7, s32, v6")
    a("v_xor_b32 v7, v7, v5")
    a("v_lshlrev_b32 v7, 4, v7")
    a("v_lshlrev_b32 v2, 11, v4")
    a("v_add_u32 v2, v2, v7")
    a("s_lshl_b32 s32, s25, 7"); a("s_lshl_b32 s33, s30, 3"); a("s_add_u32 s32, s32, s33"); a("s_lshl_b32 s32, s32, 11")
    a("v_add_u32 v2, s32, v2")
    a("v_and_b32 v7, 1, v6")
    a("s_lshl_b32 s32, s31, 1")
    a("v_or_b32 v7, s32, v7")
    a("v_lshlrev_b32 v7, 1, v7")
    a("v_xor_b32 v7, v7, v5")
    a("v_lshlrev_b32 v7, 4, v7")
    a("v_mul_u32_u24 v3, 0x1800, v4")
    a("v_add_u32 v3, v3, v7")
    a("s_mul_i32 s32, s30, %d" % (8 * 6144)); a("s_lshl_b32 s33, s26, 7"); a("s_add_u32 s32, s32, s33")
    a("v_add_u32 v3, s32, v3")
    a("s_lshl_b32 s34, s30, 10")
    if int(os.environ.get("ROTMJ", "1")):
        if os.environ.get("ROTSUB"): a("s_sub_u32 s59, s25, s26"); a("s_add_u32 s59, s59, 16")
        else: a("s_add_u32 s59, s25, s26")
    else:
        a("s_lshr_b32 s59, s28, 3"); a("s_lshl_b32 s59, s59, 2"); a("s_and_b32 s60, s28, 7"); a("s_lshl_b32 s60, s60, 1")
        a("s_add_u32 s59, s59, s60"); a("s_lshr_b32 s60, s27, 1"); a("s_add_u32 s59, s59, s60"); a("s_and_b32 s60, s27, 1"); a("s_add_u32 s59, s59, s60")
    a("s_waitcnt lgkmcnt(0)")
    srd(a, 12, 4, 5, 2048 * 1024 * 2)
    srd(a, 16, 6, 7, 1024 * 3072 * 2)
    vm = Vm()
    landed = {}
    def kbregs(b):
        a("s_add_u32 s35, s59, %d" % b); a("s_and_b32 s35, s35, 15")
        a("s_lshl_b32 s36, s35, 7"); a("s_mul_i32 s37, s35, 393216")
    cur = {"kb": None}
    def kbr(b):
        if cur["kb"] != b: kbregs(b); cur["kb"] = b
    def stage_ops(b):
        sl = b & 3
        ops = []
        for i in range(4):
            def f(i=i):
                kbr(b)
                a("s_add_u32 m0, s34, %d" % (XR + sl * 16384 + i * 4096))
                a("s_add_u32 s38, s36, %d" % (i * 65536))
                a("buffer_load_dwordx4 v2, s[12:15], s38 offen lds"); landed[("S", b)] = vm.issue()
            ops.append(f)
        for s in range(2):
            for gg in range(2):
                def f(s=s, gg=gg):
                    kbr(b)
                    a("s_add_u32 m0, s34, %d" % (WR + sl * 16384 + s * 8192 + gg * 4096))
                    a("s_add_u32 s38, s37, %d" % (gg * 196608 + (s + 1) * 2048))
                    a("buffer_load_dwordx4 v3, s[16:19], s38 offen lds"); landed[("S", b)] = vm.issue()
                ops.append(f)
        return ops
    def issue_wq(b, ldsoff, regs=True):
        kbr(b)
        for gg in range(2):
            a("s_add_u32 m0, s34, %d" % (ldsoff + gg * 4096))
            if gg: a("s_add_u32 s38, s37, 196608")
            a("buffer_load_dwordx4 v3, s[16:19], %s offen lds" % ("s37", "s38")[gg]); landed[("Q", b)] = vm.issue()
    stamp(a, 12)
    fly = list(range(FLY0, FLY0 + 4))
    cap = [b for b in range(12) if b not in fly]
    queue = []
    for b in range(16):
        queue += [(b, f) for f in stage_ops(b)]
        if b in fly: queue.append((b, lambda b=b: issue_wq(b, R4 + (b - FLY0) * 8192)))
    def issue_upto(full, extra):
        while queue and queue[0][0] <= full: queue.pop(0)[1]()
        done = 8 + (1 if full + 1 in fly else 0) - sum(1 for q in queue if q[0] == full + 1)
        while queue and queue[0][0] == full + 1 and done < extra:
            queue.pop(0)[1](); done += 1
    issue_upto(1, 0)
    srd(a, 20, 42, 43, WS_BYTES)
    srd(a, 44, 8, 9, 1024 * 1024 * 2)
    srd(a, 48, 10, 11, 2048 * 1024 * 2)
    srd(a, 52, 40, 41, 256)
    CAP = 64; QA = 192; WF = 32; XF = 224
    vX = [8, 9]; vW = [10, 11, 12, 13]
    a("v_and_b32 v14, 15, v0"); a("v_lshrrev_b32 v15, 4, v0")
    a("v_lshrrev_b32 v16, 1, v14"); a("v_xor_b32 v16, v16, v15")
    a("s_lshl_b32 s32, s30, 12")
    a("v_lshlrev_b32 v17, 7, v14"); a("v_add_u32 v17, s32, v17"); a("v_add_u32 v17, 0x%x, v17" % XR)
    for kq in range(2):
        a("v_xor_b32 v18, %d, v16" % (kq << 2)); a("v_lshlrev_b32 v18, 4, v18"); a("v_add_u32 v%d, v17, v18" % vX[kq])
    a("v_lshrrev_b32 v17, 2, v14"); a("v_and_b32 v18, 3, v14")
    a("v_lshlrev_b32 v19, 3, v15"); a("v_add_u32 v19, v19, v17"); a("v_lshlrev_b32 v19, 7, v19")
    a("v_lshrrev_b32 v20, 1, v17"); a("v_and_b32 v21, 1, v15"); a("v_lshlrev_b32 v21, 1, v21"); a("v_or_b32 v20, v20, v21")
    a("v_lshlrev_b32 v20, 5, v20"); a("v_lshlrev_b32 v18, 3, v18")
    a("v_add3_u32 v19, v19, v20, v18")
    for c in range(4): a("v_xor_b32 v%d, %d, v19" % (vW[c], c * 32))
    vWR = [24, 25, 26, 27]
    for c in range(4): a("v_add_u32 v%d, 0x%x, v%d" % (vWR[c], R4, vW[c]))
    for r in range(32): a("v_mov_b32 v%d, 0" % (QA + r))
    lg = Lgkm()
    def qsteps(blocks):
        steps = []
        for (xs, wv, wo) in blocks:
            for kq in range(2): steps.append((xs, wv, wo, kq))
        return steps
    state = {"st": 0}
    def q_reads(step, st):
        xs, wv, wo, kq = step
        ids = {}; fl = []
        if xs[0] == "lds":
            for t in range(2):
                def f(t=t):
                    a("ds_read_b128 %s, v%d offset:%d" % (vr(XF + st * 8 + t * 4, 4), vX[kq], xs[1] * 16384 + t * 2048)); ids["X"] = lg.issue()
                fl.append(f)
        for c in range(4):
            for hf in range(2):
                def f(c=c, hf=hf):
                    a("ds_read_b64_tr_b16 %s, v%d offset:%d" % (vr(WF + st * 16 + c * 4 + hf * 2, 2), wv[c], wo + kq * 4096 + hf * 512)); ids[c] = lg.issue()
                fl.append(f)
        return fl, ids
    def q_run(steps, hooks=None):
        hooks = hooks or {}
        st = 0
        if 0 in hooks: hooks[0]()
        rl, ids = q_reads(steps[0], st)
        for f in rl: f()
        for n, step in enumerate(steps):
            xs, wv, wo, kq = step
            nxt = n + 1 < len(steps)
            nrl = []
            k = 0
            for c in range(4):
                for t in range(2):
                    lg.need(a, ids[c])
                    if xs[0] == "lds": xr = XF + st * 8 + t * 4
                    else: xr = xs[1] + kq * 8 + t * 4
                    d = vr(QA + (t * 4 + c) * 4, 4)
                    a("v_mfma_f32_16x16x32_bf16 %s, %s, %s, %s" % (d, vr(WF + st * 16 + c * 4, 4), vr(xr, 4), d))
                    if k == 0 and nxt:
                        if n + 1 in hooks: hooks[n + 1]()
                        nrl, nids = q_reads(steps[n + 1], st ^ 1)
                    take = 2 if len(nrl) > (7 - k) else 1
                    for _ in range(take):
                        if nrl: nrl.pop(0)()
                    k += 1
            if nxt:
                while nrl: nrl.pop(0)()
                ids = nids; st ^= 1
    def capture(b):
        base = CAP + cap.index(b) * 16
        for kq in range(2):
            for t in range(2):
                a("ds_read_b128 %s, v%d offset:%d" % (vr(base + kq * 8 + t * 4, 4), vX[kq], (b & 3) * 16384 + t * 2048)); lg.issue()
    def need_stage(b):
        vm.need(a, landed[("Q", b)] if b in fly else landed[("S", b)])
    need_stage(0)
    stamp(a, 1)
    a("s_barrier")
    for b in range(16):
        issue_upto(b + 2, RAMP[min(b, len(RAMP) - 1)])
        x = b - (FLY0 + 4)
        if 0 <= x < 4: issue_wq(12 + x, R4 + x * 8192)
        if b >= 13:
            q0 = 2 * (b - 13)
            issue_wq(cap[q0], WR + q0 * 8192); issue_wq(cap[q0 + 1], WR + (q0 + 1) * 8192)
        if b == WOPF:
            a("v_and_b32 v28, 15, v0"); a("v_lshlrev_b32 v28, 7, v28")
            a("s_lshl_b32 s38, s2, 13"); a("s_lshl_b32 s29, s30, 11"); a("s_add_u32 s38, s38, s29")
            a("buffer_load_dword v29, v28, s[44:47], s38 offen"); vm.issue()
        if b in fly:
            q_run(qsteps([(("lds", b & 3), vWR, (b - FLY0) * 8192)]))
            lg.all(a)
        elif b < 12:
            capture(b)
            lg.all(a)
        if b == 12:
            a("s_load_dwordx4 s[4:7], s[40:41], 0")
        if b == 15:
            a("s_waitcnt lgkmcnt(0)")
            a("s_and_b64 s[4:5], s[4:5], s[6:7]"); a("s_and_b32 s4, s4, s5")
            a("s_cmp_eq_u32 s4, 0x01010101")
            a("s_cbranch_scc1 L_INITOK")
            a("v_and_b32 v28, 3, v0"); a("v_lshlrev_b32 v28, 2, v28")
            a("s_mov_b32 s35, %d" % SPIN_MAX)
            a("s_mov_b32 s29, 0x01010101")
            a.label("L_INITCHK")
            a("buffer_load_dword v29, v28, s[52:55], 0 offen sc1")
            a("s_waitcnt vmcnt(0)")
            a("v_cmp_ne_u32 vcc, s29, v29")
            a("s_cmp_eq_u64 vcc, 0")
            a("s_cbranch_scc1 L_INITOK")
            a("s_sub_u32 s35, s35, 1"); a("s_cmp_lg_u32 s35, 0")
            a("s_cbranch_scc1 L_INITCHK")
            a.label("L_INITOK")
        if b + 1 < 16: need_stage(b + 1)
        else: vm.need(a, landed[("Q", cap[3])])
        a("s_barrier")
    stamp(a, 2)
    issue_wq(cap[6], WR + 6 * 8192); issue_wq(cap[7], WR + 7 * 8192)
    blocks = [(("lds", s), vWR, s * 8192) for s in range(4)] + [(("reg", CAP + q * 16), vW, WR + q * 8192) for q in range(8)]
    def hookP():
        lg.all(a); stamp(a, 13); vm.all(a); a("s_barrier"); stamp(a, 15)
    q_run(qsteps(blocks), {16: hookP})
    stamp(a, 3)
    a("s_lshl_b32 s32, s30, 10")
    a("v_add_u32 v14, s32, v1")
    a("v_mov_b32 v28, 0x%x" % f32bits(CSC)); a("v_mov_b32 v29, 0x%x" % f32bits(CSC))
    a("s_nop 2")
    for r in range(0, 32, 2):
        a("v_pk_mul_f32 %s, %s, v[28:29]" % (vr(QA + r, 2), vr(QA + r, 2)))
    for h in range(2):
        for t in range(2):
            dst = (WF + h * 4) if t == 0 else (QF + h * 4)
            for nt in range(2):
                s0 = QA + (t * 4 + 2 * h + nt) * 4
                a("v_cvt_pk_bf16_f32 v%d, v%d, v%d" % (dst + nt * 2, s0, s0 + 1))
                a("v_cvt_pk_bf16_f32 v%d, v%d, v%d" % (dst + nt * 2 + 1, s0 + 2, s0 + 3))
        a("ds_write_b128 v14, %s offset:%d" % (vr(WF + h * 4, 4), QL + h * 4096))
    a("s_branch L_ATT")
    a.label("L_KV")
    ACC = 64; FR = 128; PK = 192
    vXb = [4, 5]; vWb = [6, 7]; vX = [8, 9]; vW2 = [10, 11]
    def fX(st, t): return FR + st * 32 + t * 4
    def fW(st, c): return FR + st * 32 + 16 + c * 4
    def acc(t, c): return ACC + (t * 4 + c) * 4
    a("s_lshr_b32 s30, s24, 1")
    a("s_and_b32 s31, s24, 1")
    a("s_waitcnt lgkmcnt(0)")
    srd(a, 20, 42, 43, WS_BYTES)
    srd(a, 44, 8, 9, 1024 * 1024 * 2)
    srd(a, 48, 10, 11, 2048 * 1024 * 2)
    srd(a, 52, 40, 41, 256)
    if CPF:
        a("s_getpc_b64 s[96:97]")
        a.label("L_PC")
        a("s_sub_u32 s96, s96, L_PC-%s" % NM)
        a("s_subb_u32 s97, s97, 0")
        a("v_lshlrev_b32 v12, 7, v0")
        a("s_lshl_b32 s32, s24, 13")
        a("v_add_u32 v12, s32, v12")
        a("v_min_u32 v12, L_END-%s, v12" % NM)
        a("global_load_dword v30, v12, s[96:97]")
    a("s_or_b32 s32, s24, s26")
    a("s_cmp_lg_u32 s32, 0")
    a("s_cbranch_scc1 L_NOINIT")
    for r in range(4): a("v_mov_b32 v%d, 0" % (12 + r))
    a("v_and_b32 v16, 15, v0"); a("v_lshlrev_b32 v17, 7, v16")
    a("v_lshlrev_b32 v16, 4, v16")
    a("s_lshl_b32 s32, s25, 11"); a("s_add_u32 s32, s32, 0x%x" % FL_OFF)
    a("s_lshl_b32 s33, s25, 8"); a("s_add_u32 s33, s33, 0x%x" % C2_OFF)
    a("s_mov_b64 exec, 0xffff")
    a("buffer_store_dwordx4 v[12:15], v17, s[20:23], s32 offen sc1")
    a("buffer_store_dwordx4 v[12:15], v16, s[20:23], s33 offen sc1")
    a("s_mov_b64 exec, 1")
    a("v_mov_b32 v18, 1")
    a("s_waitcnt vmcnt(0)")
    a("buffer_store_byte v18, v12, s[52:55], s25 offen sc1")
    a("s_mov_b64 exec, -1")
    a.label("L_NOINIT")
    a("v_and_b32 v12, 15, v0"); a("v_lshrrev_b32 v13, 4, v0")
    a("v_lshrrev_b32 v14, 1, v12"); a("v_xor_b32 v14, v14, v13")
    a("s_lshl_b32 s32, s30, 13")
    a("v_lshlrev_b32 v15, 7, v12"); a("v_add_u32 v15, s32, v15"); a("v_add_u32 v15, 0x%x, v15" % XR)
    for kq in range(2):
        a("v_xor_b32 v16, %d, v14" % (kq << 2)); a("v_lshlrev_b32 v16, 4, v16"); a("v_add_u32 v%d, v15, v16" % vXb[kq])
    a("v_lshrrev_b32 v17, 2, v12"); a("v_and_b32 v18, 3, v12")
    a("v_lshlrev_b32 v20, 3, v13"); a("v_add_u32 v20, v20, v17"); a("v_lshlrev_b32 v20, 7, v20")
    a("v_lshrrev_b32 v21, 1, v17"); a("v_and_b32 v22, 1, v13"); a("v_lshlrev_b32 v22, 1, v22"); a("v_or_b32 v21, v21, v22")
    a("s_lshl_b32 s33, s31, 1")
    a("v_xor_b32 v21, s33, v21"); a("v_lshlrev_b32 v21, 5, v21"); a("v_lshlrev_b32 v22, 3, v18")
    a("v_add3_u32 v%d, v21, v22, v20" % vWb[0])
    a("v_xor_b32 v%d, 32, v%d" % (vWb[1], vWb[0]))
    for q in range(2):
        a("v_mov_b32 v%d, v%d" % (vX[q], vXb[q])); a("v_mov_b32 v%d, v%d" % (vW2[q], vWb[q]))
    for r in range(64): a("v_mov_b32 v%d, 0" % (ACC + r))
    a("s_mov_b32 s34, 16384")
    a("s_mov_b32 s35, 0")
    if LOOPSTAMP:
        a("s_lshl_b32 s61, s2, 3"); a("s_add_u32 s61, s61, s24"); a("s_lshl_b32 s61, s61, 7"); a("s_add_u32 s61, s61, 0x%x" % (DIAG_OFF + 256 * 8 * 128))
    lg = Lgkm()
    def reads(kq, st):
        ids = {}
        def rX(t):
            def f():
                a("ds_read_b128 %s, v%d offset:%d" % (vr(fX(st, t), 4), vX[kq], t * 2048)); ids["X%d" % t] = lg.issue()
            return f
        def rW(c, hf):
            def f():
                a("ds_read_b64_tr_b16 %s, v%d offset:%d" % (vr(fW(st, c) + 2 * hf, 2), vW2[c & 1], (c >> 1) * 8192 + kq * 4096 + hf * 512)); ids["W%d" % c] = lg.issue()
            return f
        l = [rX(0), rW(0, 0), rW(0, 1), rX(1), rX(2), rX(3)]
        for c in range(1, 4): l += [rW(c, 0), rW(c, 1)]
        return l, ids
    def mfma(t, c, st, ids):
        lg.need(a, max(ids["X%d" % t], ids["W%d" % c]))
        d = vr(acc(t, c), 4)
        if c < 2: a("v_mfma_f32_16x16x32_bf16 %s, %s, %s, %s" % (d, vr(fW(st, c), 4), vr(fX(st, t), 4), d))
        else:     a("v_mfma_f32_16x16x32_bf16 %s, %s, %s, %s" % (d, vr(fX(st, t), 4), vr(fW(st, c), 4), d))
    order = [(t, c) for c in range(4) for t in range(4)]
    a("s_barrier")
    stamp(a, 1)
    rl, ids = reads(0, 0)
    for f in rl: f()
    a.label("L_G1LOOP")
    for kq in range(2):
        st = kq
        nrl, nids = reads(kq ^ 1, st ^ 1)
        start = 0 if kq == 0 else 3
        for n, (t, c) in enumerate(order):
            mfma(t, c, st, ids)
            if kq == 1 and n < 2:
                a("v_add_u32 v%d, s34, v%d" % (vX[n], vXb[n])); a("v_add_u32 v%d, s34, v%d" % (vW2[n], vWb[n]))
            if kq == 1 and n == 2:
                lg.all(a); a("s_barrier")
                if LOOPSTAMP:
                    a("%s s[98:99]" % ("s_memrealtime" if LOOPSTAMP == 1 else "s_memtime"))
                    a("s_waitcnt lgkmcnt(0)")
                    a("v_mov_b32 v24, s98"); a("v_mov_b32 v25, s99"); a("v_mov_b32 v26, 0")
                    a("buffer_store_dwordx2 v[24:25], v26, s[20:23], s61 offen")
                    a("s_add_u32 s61, s61, 8")
            if start <= n < start + 12: nrl[n - start]()
            if kq == 0 and n == 13:
                a("s_add_u32 s35, s35, 1")
            if kq == 1 and n == 14:
                a("s_add_u32 s34, s34, 16384")
                a("s_and_b32 s34, s34, 0xffff")
                a("s_cmp_lt_u32 s35, 16")
        ids = nids
    assert lg.n - lg.done == 12, (lg.n, lg.done)
    a("s_cbranch_scc1 L_G1LOOP")
    a("s_waitcnt lgkmcnt(0)")
    stamp(a, 2)
    a("s_lshl_b32 s36, s26, 1"); a("s_add_u32 s36, s36, s31"); a("s_lshl_b32 s36, s36, 7")
    a("s_lshl_b32 s37, s25, 3"); a("s_lshl_b32 s38, s30, 2"); a("s_add_u32 s37, s37, s38")
    a("s_add_u32 s36, s36, s37"); a("s_lshl_b32 s36, s36, 10")
    a("s_add_u32 s37, s36, 0x%x" % VG_OFF)
    def pk(t, s): return PK + t * 8 + s * 4
    a("s_lshl_b32 s32, s25, 4"); a("s_add_u32 s32, s32, s26"); a("s_lshl_b32 s32, s32, 7"); a("s_add_u32 s32, s32, 0x%x" % FL_OFF)
    a("s_lshl_b32 s33, s24, 2"); a("s_add_u32 s32, s32, s33")
    a("v_and_b32 v17, 1, v0"); a("v_add_u32 v17, 1, v17")
    a("v_cmp_ge_u32 s[60:61], s25, v17")
    a("v_lshlrev_b32 v17, 11, v17")
    a("v_cndmask_b32_e64 v17, 0, v17, s[60:61]")
    a("v_sub_u32 v17, s32, v17")
    a("buffer_load_dword v20, v17, s[20:23], 0 offen sc1")
    for s in range(2):
        for t in range(4):
            for nt in range(2):
                c = s * 2 + nt
                for hf in range(2):
                    a("v_cvt_pk_bf16_f32 v%d, v%d, v%d" % (pk(t, s) + nt * 2 + hf, acc(t, c) + 2 * hf, acc(t, c) + 2 * hf + 1))
            a("buffer_store_dwordx4 %s, v1, s[20:23], %s offen offset:%d sc1" % (vr(pk(t, s), 4), ("s36", "s37")[s], t * 1024))
    a("s_mul_i32 s38, s31, %d" % (KVH[1] - KVH[0]))
    a("s_add_u32 s38, s38, %d" % KVH[0])
    a("s_lshl_b32 s39, s30, 12")
    a("s_add_u32 s38, s38, s39")
    a("v_add_u32 v12, s38, v1")
    a("v_lshlrev_b32 v13, 3, v0"); a("v_add_u32 v13, s38, v13")
    a("v_mov_b32 v15, 1"); a("v_mov_b32 v16, 0")
    a("s_waitcnt vmcnt(0)")
    a("s_mov_b64 exec, 1")
    a("buffer_store_dword v15, v16, s[20:23], s32 offen sc1")
    a("s_mov_b64 exec, -1")
    stamp(a, 3)
    HB = 64
    def chk(lbl_ok):
        a("v_cmp_ne_u32 vcc, 1, v20")
        a("s_and_b64 s[58:59], vcc, s[60:61]")
        a("s_cmp_eq_u64 s[58:59], 0")
        a("s_cbranch_scc1 %s" % lbl_ok)
    def halo_loads(tag):
        for d in (1, 2):
            skip = "L_HSKIP%s%d" % (tag, d)
            a("s_cmp_lt_u32 s25, %d" % d)
            a("s_cbranch_scc1 %s" % skip)
            a("s_sub_u32 s38, s36, %d" % (d * 8192)); a("s_sub_u32 s39, s37, %d" % (d * 8192))
            hb = HB + (d - 1) * 32
            for t in range(4):
                a("buffer_load_dwordx4 %s, v1, s[20:23], s38 offen offset:%d sc1" % (vr(hb + t * 8, 4), t * 1024))
                a("buffer_load_dwordx4 %s, v1, s[20:23], s39 offen offset:%d sc1" % (vr(hb + t * 8 + 4, 4), t * 1024))
            a.label(skip)
    def own_writes():
        a("s_barrier")
        for t in range(4):
            a("ds_write_b128 v12, %s offset:%d" % (vr(pk(t, 0), 4), (16 + t) * 1024))
            a("ds_write_b64 v13, %s offset:%d" % (vr(pk(t, 1), 2), 24576 + (16 + t) * 1024))
            a("ds_write_b64 v13, %s offset:%d" % (vr(pk(t, 1) + 2, 2), 24576 + (16 + t) * 1024 + 512))
    chk("L_HEARLY")
    a("buffer_load_dword v20, v17, s[20:23], 0 offen sc1")
    own_writes()
    a("s_mov_b32 s35, %d" % SPIN_MAX)
    a.label("L_HPOLL")
    a("s_waitcnt vmcnt(0)")
    chk("L_HOK")
    a("buffer_load_dword v20, v17, s[20:23], 0 offen sc1")
    a("s_sub_u32 s35, s35, 1"); a("s_cmp_lg_u32 s35, 0")
    a("s_cbranch_scc1 L_HPOLL")
    a.label("L_HOK")
    halo_loads("a")
    a("s_branch L_HJOIN")
    a.label("L_HEARLY")
    halo_loads("b")
    own_writes()
    a.label("L_HJOIN")
    stamp(a, 13)
    a("s_cmp_lt_u32 s25, 2")
    a("s_cbranch_scc1 L_HSMALL")
    def halo_write(d, t):
        hb = HB + (d - 1) * 32; tb = (2 - d) * 8
        a("ds_write_b128 v12, %s offset:%d" % (vr(hb + t * 8, 4), (tb + t) * 1024))
        a("ds_write_b64 v13, %s offset:%d" % (vr(hb + t * 8 + 4, 2), 24576 + (tb + t) * 1024))
        a("ds_write_b64 v13, %s offset:%d" % (vr(hb + t * 8 + 6, 2), 24576 + (tb + t) * 1024 + 512))
    n = 0
    for d in (1, 2):
        for t in range(4):
            n += 2
            a("s_waitcnt vmcnt(%d)" % (16 - n))
            halo_write(d, t)
    a("s_branch L_ATT")
    a.label("L_HSMALL")
    a("s_cmp_lt_u32 s25, 1")
    a("s_cbranch_scc1 L_ATT")
    a("s_waitcnt vmcnt(0)")
    for t in range(4): halo_write(1, t)
    a.label("L_ATT")
    a("s_and_b32 s56, s27, 3"); a("s_lshl_b32 s56, s56, 2"); a("s_and_b32 s29, s28, 3"); a("s_add_u32 s56, s56, s29")
    a("s_lshr_b32 s57, s27, 2"); a("s_lshl_b32 s57, s57, 3"); a("s_lshr_b32 s29, s28, 2"); a("s_add_u32 s57, s57, s29")
    a("v_lshrrev_b32 v4, 3, v0"); a("v_and_b32 v5, 7, v0"); a("v_lshrrev_b32 v6, 4, v0")
    a("v_lshlrev_b32 v6, 1, v6"); a("v_xor_b32 v6, v6, v5"); a("v_lshlrev_b32 v6, 4, v6")
    a("v_lshlrev_b32 v10, 11, v4"); a("v_add_u32 v10, v10, v6")
    a("s_lshl_b32 s30, s57, 7")
    a("v_add_u32 v10, s30, v10")
    def wo_one(par, p):
        a("s_add_u32 m0, s61, %d" % ((WOE, WOO)[par] + p * 8192))
        a("s_add_u32 s33, s100, %d" % (2 * p)); a("s_and_b32 s33, s33, 7"); a("s_lshl_b32 s33, s33, 17")
        a("s_add_u32 s33, s33, s60")
        off = ((8 if p >= 4 else 0) * 64 + 32 * par) * 2048
        if off: a("s_add_u32 s33, s33, 0x%x" % off)
        a("buffer_load_dwordx4 v10, s[44:47], s33 offen lds")
    def wo_dma(par, first, count):
        for i in range(count): wo_one(par, first // 2 + i)
    a("s_lshl_b32 s61, s24, 10")
    a("s_and_b32 s60, s24, 3"); a("s_lshl_b32 s60, s60, 14")
    a("s_and_b32 s101, s57, %d" % ROT2)
    a("s_lshr_b32 s100, s24, 2"); a("s_add_u32 s100, s100, s101")
    ML = 24; MH = 28; ONE = 32; O = 36; L = 44; CC = 48; MC = 50; MX = 52; KF = 56; VF = 72; S = 96
    a("s_waitcnt lgkmcnt(0)")
    a("v_and_b32 v2, 15, v0")
    a("v_lshrrev_b32 v3, 4, v0"); a("v_lshlrev_b32 v3, 2, v3")
    a("v_sub_u32 v4, v2, v3")
    a("v_mov_b32 v5, 0x%x" % NEG)
    for r in range(4):
        a("v_cmp_le_i32 vcc, %d, v4" % r)
        a("v_cndmask_b32_e64 v%d, v5, 0, vcc" % (MH + r))
        a("v_cndmask_b32_e64 v%d, 0, v5, vcc" % (ML + r))
    for r in range(4): a("v_mov_b32 v%d, 0x3f803f80" % (ONE + r))

    a("s_and_b32 s31, s24, 3"); a("s_lshl_b32 s31, s31, 1"); a("s_lshr_b32 s32, s24, 2"); a("s_add_u32 s31, s31, s32")
    a("s_lshl_b32 s36, s31, 10")
    a("v_add_u32 v6, s36, v1")
    a("v_lshlrev_b32 v7, 3, v0"); a("v_add_u32 v7, s36, v7")
    a("v_add_u32 v6, 0x%x, v6" % KVH[0]); a("v_add_u32 v7, 0x%x, v7" % (KVH[0] + 24576))
    a("v_add_u32 v8, s61, v1")
    a("s_lshl_b32 s37, s25, 3"); a("s_add_u32 s37, s37, s31"); a("s_lshl_b32 s37, s37, 5")
    a("s_lshl_b32 s38, s26, 1"); a("s_add_u32 s37, s37, s38"); a("s_lshl_b32 s37, s37, 10")
    a("s_add_u32 s37, s37, 0x%x" % OG_OFF)
    a("s_lshl_b32 s38, s25, 3"); a("s_add_u32 s38, s38, s31")
    a("s_sub_i32 s38, 16, s38"); a("s_max_i32 s38, s38, 0")
    a("s_lshl_b32 s39, s25, 8"); a("s_lshl_b32 s33, s26, 2"); a("s_add_u32 s39, s39, s33"); a("s_add_u32 s39, s39, 0x%x" % C2_OFF)
    a("s_lshr_b32 s30, s24, 2")
    a("s_lshl_b32 s96, s56, 8"); a("s_lshl_b32 s33, s30, 5"); a("s_add_u32 s96, s96, s33"); a("s_add_u32 s96, s96, 0x%x" % C2_OFF)
    a("v_and_b32 v11, 7, v0"); a("v_lshlrev_b32 v11, 2, v11")
    a("s_and_b32 s33, s24, 3"); a("s_lshl_b32 s33, s33, 1")
    a("s_lshl_b32 s32, s56, 3"); a("s_add_u32 s32, s32, s33")
    a("s_lshl_b32 s97, s32, 15"); a("s_lshl_b32 s33, s30, 14"); a("s_add_u32 s97, s97, s33"); a("s_add_u32 s97, s97, 0x%x" % OG_OFF)
    a("s_lshl_b32 s33, s30, 15")
    a("s_add_u32 s98, s97, 32768"); a("s_sub_u32 s98, s98, s33")
    a("s_add_u32 s97, s97, s33")
    a("s_add_u32 s32, s32, s30")
    a("s_mov_b32 s99, 0")
    a("s_mov_b32 s58, 0")
    a("s_barrier")
    stamp(a, 4)
    a("s_cmp_ge_u32 s24, 4")
    a("s_cbranch_scc1 L_NOQRD")
    a("ds_read_b128 %s, v8 offset:%d" % (vr(QF, 4), QL))
    a("ds_read_b128 %s, v8 offset:%d" % (vr(QF + 4, 4), QL + 4096))
    a("v_mov_b32 v2, 0"); a("v_mov_b32 v3, 0x%x" % CNT)
    a("ds_write_b32 v3, v2")
    a("s_waitcnt lgkmcnt(0)")
    a.label("L_NOQRD")
    a("s_barrier")
    def wo_slot(p): wo_one(0, p)
    OFA = 164; OFB = 96
    def oloads(par, sl=range(8)):
        ob = (OFA, OFB)[par]
        for sx in sl:
            a("s_add_u32 s34, s101, %d" % sx); a("s_and_b32 s34, s34, 7"); a("s_lshl_b32 s34, s34, 11")
            for t in range(2):
                a("s_add_u32 s33, %s, s34" % ("s97", "s98")[t])
                a("buffer_load_dwordx4 %s, v1, s[20:23], s33 offen offset:%d sc1" % (vr(ob + sx * 8 + t * 4, 4), par * 1024))
    def signal(tag):
        a("s_waitcnt vmcnt(0)")
        a("s_barrier")
        a("s_cmp_lg_u32 s24, 0")
        a("s_cbranch_scc1 L_NOSIG%s" % tag)
        a("s_mov_b64 exec, 1")
        a("v_mov_b32 v2, 1"); a("v_mov_b32 v3, 0")
        a("buffer_store_dword v2, v3, s[20:23], s39 offen sc1")
        a("s_mov_b64 exec, -1")
        a.label("L_NOSIG%s" % tag)
        a("s_add_u32 s39, s39, 128")
    if PRIO:
        a("s_cmp_lt_u32 s24, 4")
        a("s_cbranch_scc1 L_NOPRIO")
        a("s_setprio 1")
        a.label("L_NOPRIO")
    CT = 48
    KR = 120
    a("s_cmp_eq_u32 s38, 0")
    a("s_cbranch_scc1 L_MLOK")
    for r in range(4): a("v_mov_b32 v%d, v5" % (ML + r))
    a.label("L_MLOK")
    a("s_mov_b32 s34, 0x%x" % f32bits(2.0 ** -24)); a("s_mov_b32 s35, 0x%x" % f32bits(2.0 ** 40))
    a("v_mov_b32 v54, s34"); a("v_mov_b32 v55, s35")
    a.label("L_ROUND")
    lg = Lgkm()
    kid = {}; vid = {}
    def rdK(i):
        if i < 17:
            a("ds_read_b128 %s, v6 offset:%d" % (vr(KR + (i % 6) * 4, 4), i * 1024)); kid[i] = lg.issue()
    def rdV1(p, dt, h):
        st = VF + (p % 3) * 8
        if 2 * p + h < 17:
            a("ds_read_b64 %s, v7 offset:%d" % (vr(st + dt * 4 + h * 2, 2), (2 * p + h) * 1024 + dt * 512)); vid[(p, dt)] = lg.issue()
    def rdV(p):
        for dt in range(2):
            for h in range(2): rdV1(p, dt, h)
    def sb(p): return S + (p % 3) * 8
    def qk(i):
        if i >= 17: return
        if 1 <= i <= 15:
            a("s_cmp_eq_u32 s38, %d" % i)
            a("s_cbranch_scc1 L_CTR%d" % i)
            a.label("L_CT%d" % i)
        c0 = vr(ML, 4) if i == 0 else (vr(MH, 4) if i == 16 else vr(CT, 4))
        lg.need(a, kid[i])
        a("v_mfma_f32_16x16x32_bf16 %s, %s, %s, %s" % (vr(sb(i >> 1) + (i & 1) * 4, 4), vr(KR + (i % 6) * 4, 4), vr(QF, 4), c0))
    def exps(p, b):
        nv = 8 if p < 8 else 4
        return ["v_exp_f32 v%d, v%d" % (b + r, b + r) for r in range(nv)]
    def cvts(p, b):
        nv = 8 if p < 8 else 4
        return ["v_cvt_pk_bf16_f32 v%d, v%d, v%d" % (b + r, b + 2 * r, b + 2 * r + 1) for r in range(nv // 2)]
    def pv(p, k, b):
        st = VF + (p % 3) * 8
        if k < 2:
            lg.need(a, vid[(p, k)])
            d = vr(O + 4 * k, 4); A = st + 4 * k
        else:
            d = vr(L, 4); A = ONE
        c = "0" if p == 0 else d
        if p < 8: a("v_mfma_f32_16x16x32_bf16 %s, %s, %s, %s" % (d, vr(A, 4), vr(b, 4), c))
        else:     a("v_mfma_f32_16x16x16_bf16 %s, %s, %s, %s" % (d, vr(A, 2), vr(b, 2), c))
    for i in range(6): rdK(i)
    a("s_cmp_gt_u32 s38, 1")
    a("s_cselect_b32 s33, 0x%x, 0" % NEG)
    for r in range(4): a("v_mov_b32 v%d, s33" % (CT + r))
    rdV(0)
    for i in range(4):
        qk(i); rdK(i + 6)
    rdV(1)
    for x in exps(0, sb(0)): a(x)
    for p in range(9):
        if p < 4:
            a("s_cmp_lg_u32 s58, 0")
            a("s_cbranch_scc1 L_SK%d" % p)
            wo_slot(2 * p)
            if p < 3: wo_slot(2 * p + 1)
            else:
                a("s_cmp_eq_u32 s24, 7")
                a("s_cbranch_scc1 L_SK%d" % p)
                wo_slot(7)
            a.label("L_SK%d" % p)
        if p == SIGP or (EARLY and p >= 6):
            a("s_cmp_lg_u32 s58, 0")
            a("s_cbranch_scc1 L_OOL%d" % p)
            a.label("L_OOLR%d" % p)
        cv = cvts(p, sb(p))
        ne = exps(p + 1, sb(p + 1)) if p < 8 else []
        qk(2 * p + 4); rdK(2 * p + 10)
        for x in cv[:2]: a(x)
        qk(2 * p + 5); rdK(2 * p + 11)
        for x in cv[2:]: a(x)
        for k in range(3):
            for x in ne[:2]: a(x)
            ne = ne[2:]
            pv(p, k, sb(p))
        if p + 2 < 9: rdV(p + 2)
        for x in ne: a(x)
    if PRIO: a("s_setprio 0")
    a("s_nop 6")
    a("v_add_f32_e64 v%d, |v%d|, |v%d|" % (MX, O, O + 1))
    a("v_add_f32_e64 v%d, |v%d|, |v%d|" % (MX + 1, O + 2, O + 3))
    for r in range(4, 8): a("v_add_f32_e64 v%d, |v%d|, v%d" % (MX + (r & 1), O + r, MX + (r & 1)))
    a("v_cmp_nle_f32 vcc, v54, v%d" % L)
    a("v_cmp_nge_f32 s[34:35], v55, v%d" % L)
    a("v_add_f32 v%d, v%d, v%d" % (MX, MX, MX + 1))
    a("s_or_b64 s[34:35], s[34:35], vcc")
    a("v_cmp_nge_f32 vcc, 0x7f000000, v%d" % MX)
    a("s_or_b64 s[34:35], s[34:35], vcc")
    if FORCE_EXACT: a("s_mov_b64 s[34:35], 1")
    a("s_cmp_eq_u64 s[34:35], 0")
    a("s_cbranch_scc1 L_FASTOK")
    lg = Lgkm(); kid = {}; vid = {}
    def rdKx(i):
        a("ds_read_b128 %s, v6 offset:%d" % (vr(KF + (i % 4) * 4, 4), i * 1024)); kid[i] = lg.issue()
    for i in range(4): rdKx(i)
    for i in range(17):
        c0 = vr(ML, 4) if i == 0 else (vr(MH, 4) if i == 16 else "0")
        lg.need(a, kid[i])
        a("v_mfma_f32_16x16x32_bf16 %s, %s, %s, %s" % (vr(S + 4 * i, 4), vr(KF + (i % 4) * 4, 4), vr(QF, 4), c0))
        if i + 4 < 17: rdKx(i + 4)
    rdV(0); rdV(1)
    a("s_nop 7")
    a("s_cmp_eq_u32 s38, 0")
    a("s_cbranch_scc1 L_NOFIX")
    for i in range(16):
        for r in range(4): a("v_mov_b32 v%d, v5" % (S + 4 * i + r))
        if i < 15:
            a("s_cmp_eq_u32 s38, %d" % (i + 1))
            a("s_cbranch_scc1 L_NOFIX")
    a.label("L_NOFIX")
    for i in range(17):
        for q in range(2):
            m = MX + q; s0 = S + 4 * i + 2 * q
            if i == 0: a("v_max_f32 v%d, v%d, v%d" % (m, s0, s0 + 1))
            else: a("v_max3_f32 v%d, v%d, v%d, v%d" % (m, m, s0, s0 + 1))
    a("v_max_f32 v%d, v%d, v%d" % (MX, MX, MX + 1))
    a("v_mov_b32 v%d, v%d" % (MX + 1, MX))
    a("v_permlane32_swap_b32 v%d, v%d" % (MX, MX + 1))
    a("v_max_f32 v%d, v%d, v%d" % (MX, MX, MX + 1))
    a("v_mov_b32 v%d, v%d" % (MX + 1, MX))
    a("v_permlane16_swap_b32 v%d, v%d" % (MX, MX + 1))
    a("v_max_f32 v%d, v%d, v%d" % (MX, MX, MX + 1))
    for p in range(9):
        b = S + 8 * p; nv = 8 if p < 8 else 4
        for r in range(nv): a("v_sub_f32 v%d, v%d, v%d" % (b + r, b + r, MX))
        for x in exps(p, b): a(x)
        for x in cvts(p, b): a(x)
        for k in range(3): pv(p, k, b)
        if p + 2 < 9: rdV(p + 2)
    a("s_nop 7")
    a.label("L_FASTOK")
    a("v_rcp_f32 v%d, v%d" % (MX, L))
    for r in range(8): a("v_mul_f32 v%d, v%d, v%d" % (O + r, O + r, MX))
    for r in range(4): a("v_cvt_pk_bf16_f32 v%d, v%d, v%d" % (S + r, O + 2 * r, O + 2 * r + 1))
    a("buffer_store_dwordx4 %s, v1, s[20:23], s37 offen sc1" % vr(S, 4))
    a("s_add_u32 s37, s37, 1024")
    a("v_add_u32 v6, %d, v6" % (KVH[1] - KVH[0])); a("v_add_u32 v7, %d, v7" % (KVH[1] - KVH[0]))
    for r in range(4): a("v_mov_b32 v%d, v%d" % (QF + r, QF + 4 + r))

    if DIAG:
        a("s_cmp_lg_u32 s58, 0")
        a("s_cbranch_scc1 L_NOST14")
        stamp(a, 14)
        a.label("L_NOST14")
    a("s_add_u32 s58, s58, 1")
    a("s_cmp_lt_u32 s58, 2")
    a("s_cbranch_scc1 L_ROUND")
    stamp(a, 5)
    signal("1")
    stamp(a, 6)
    A2 = 16; F2 = 48
    a("v_mov_b32 v15, v11")
    a("v_and_b32 v12, 15, v0"); a("v_lshrrev_b32 v13, 4, v0")
    a("v_lshrrev_b32 v17, 2, v12"); a("v_and_b32 v18, 3, v12")
    a("v_lshlrev_b32 v19, 2, v13"); a("v_add_u32 v19, v19, v17")
    a("v_lshrrev_b32 v20, 1, v19"); a("v_and_b32 v20, 3, v20")
    a("v_lshlrev_b32 v19, 7, v19"); a("v_lshlrev_b32 v20, 5, v20"); a("v_lshlrev_b32 v18, 3, v18")
    a("v_add3_u32 v19, v19, v20, v18")
    a("s_lshl_b32 s31, s30, 15")
    a("v_add_u32 v19, s31, v19")
    AE = [4, 5, 6, 7]; AO = [8, 9, 11, 14]
    for nt in range(4):
        a("v_xor_b32 v20, %d, v19" % (nt * 32))
        a("v_add_u32 v%d, %d, v20" % (AE[nt], WOE)); a("v_add_u32 v%d, 0x%x, v20" % (AO[nt], WOO))
    for r in range(32): a("v_mov_b32 v%d, 0" % (A2 + r))
    a("s_cmp_eq_u32 s99, 1")
    a("s_cbranch_scc1 L_HAVEA")
    pollf(a, "s96", "L_PC0")
    oloads(0)
    a.label("L_HAVEA")
    a("s_cmp_lg_u32 s24, 7")
    a("s_cbranch_scc1 L_NOC63")
    wo_slot(7)
    a.label("L_NOC63")
    stamp(a, 7)
    a("v_and_b32 v15, 15, v0"); a("v_lshlrev_b32 v15, 2, v15")
    a("s_add_u32 s96, s96, 128")
    lg = Lgkm()
    def wreads(par, s):
        st = s & 1
        ids = {}
        fl = []
        for nt in range(4):
            for hf in range(2):
                def f(nt=nt, hf=hf):
                    a("ds_read_b64_tr_b16 %s, v%d offset:%d" % (vr(F2 + st * 16 + nt * 4 + hf * 2, 2), (AE, AO)[par][nt], s * 4096 + hf * 2048))
                    ids[nt] = lg.issue()
                fl.append(f)
        return fl, ids
    PSL = int(os.environ.get("PSL", "5"))
    for par in range(2):
        ob = (OFA, OFB)[par]
        if par == 1:
            stamp(a, 9)
            a("s_waitcnt vmcnt(16)")
            a("s_barrier")
        rl, ids = wreads(par, 0)
        for f in rl: f()
        for s in range(8):
            st = s & 1
            if s + 1 < 8: nrl, nids = wreads(par, s + 1)
            BGS = 4
            extra = []
            if par == 0:
                if s < BGS:
                    a("s_waitcnt vmcnt(%d)" % (14 - 2 * s + 2 * s))
                    extra = [lambda q=2 * s: wo_one(1, q), lambda q=2 * s + 1: wo_one(1, q)]
                if s == BGS:
                    a("s_cmp_lg_u32 s24, 0")
                    a("s_cbranch_scc1 L_NOPOLL")
                    pollf(a, "s96", "L_PC1")
                    a.label("L_NOPOLL")
                    a("s_waitcnt vmcnt(8)")
                    a("s_barrier")
                    stamp(a, 8)
                if s >= BGS:
                    k0 = (s - BGS) * 8 // (8 - BGS); k1 = (s - BGS + 1) * 8 // (8 - BGS)
                    extra = [lambda q=q: oloads(1, [q]) for q in range(k0, k1)]
            else:
                a("s_waitcnt vmcnt(%d)" % (14 - 2 * s))
            n = 0
            for nt in range(4):
                lg.need(a, ids[nt])
                for t in range(2):
                    d = vr(A2 + (t * 4 + nt) * 4, 4)
                    a("v_mfma_f32_16x16x32_bf16 %s, %s, %s, %s" % (d, vr(F2 + st * 16 + nt * 4, 4), vr(ob + s * 8 + t * 4, 4), d))
                    if s + 1 < 8: nrl[n]()
                    if n in (0, 3) and extra: extra.pop(0)()
                    n += 1
            assert not extra
            if s + 1 < 8: ids = nids
    stamp(a, 10)
    a("s_lshl_b32 s33, s24, 12"); a("s_add_u32 s33, s33, 0x%x" % RED)
    a("v_add_u32 v2, s33, v1")
    a("v_xor_b32 v3, 0x4000, v2")
    a("v_lshlrev_b32 v12, 11, v12")
    a("v_and_b32 v15, 1, v13"); a("v_lshlrev_b32 v15, 5, v15")
    a("v_lshrrev_b32 v13, 1, v13"); a("v_lshlrev_b32 v13, 4, v13")
    a("v_add3_u32 v12, v12, v15, v13")
    a("s_lshl_b32 s32, s32, 15")
    a("s_lshl_b32 s33, s57, 7"); a("s_add_u32 s32, s32, s33")
    for q in range(4): a("ds_write_b128 v2, %s offset:%d" % (vr(A2 + 16 + q * 4, 4), q * 1024))
    a("s_waitcnt lgkmcnt(0)")
    a("s_barrier")
    for q in range(4): a("ds_read_b128 %s, v3 offset:%d" % (vr(OFB + q * 4, 4), q * 1024))
    for pr in range(2):
        b = F2 + pr * 4
        for h in range(2):
            nt = pr * 2 + h
            s0 = A2 + nt * 4
            a("s_waitcnt lgkmcnt(%d)" % (3 - nt))
            for r in range(0, 4, 2):
                a("v_pk_add_f32 %s, %s, %s" % (vr(s0 + r, 2), vr(s0 + r, 2), vr(OFB + nt * 4 + r, 2)))
            a("v_cvt_pk_bf16_f32 v%d, v%d, v%d" % (b + 2 * h, s0, s0 + 1))
            a("v_cvt_pk_bf16_f32 v%d, v%d, v%d" % (b + 2 * h + 1, s0 + 2, s0 + 3))
        a("v_permlane16_swap_b32 v%d, v%d" % (b, b + 2))
        a("v_permlane16_swap_b32 v%d, v%d" % (b + 1, b + 3))
        a("buffer_store_dwordx4 %s, v12, s[48:51], s32 offen offset:%d" % (vr(b, 4), pr * 64))
    if DIAG:
        a("s_waitcnt vmcnt(0)")
        stamp(a, 11)
        stamp_flush(a)
    a("s_endpgm")
    a.label("L_OOL%d" % SIGP)
    a("s_waitcnt vmcnt(0)")
    a("s_mov_b64 exec, 1")
    a("v_mov_b32 v2, 1"); a("v_mov_b32 v3, 0x%x" % CNT)
    a("ds_add_rtn_u32 v3, v3, v2")
    a("s_waitcnt lgkmcnt(0)")
    a("v_readfirstlane_b32 s33, v3")
    a("s_cmp_lg_u32 s33, 7")
    a("s_cbranch_scc1 L_NOSIG0")
    a("v_mov_b32 v3, 0")
    a("buffer_store_dword v2, v3, s[20:23], s39 offen sc1")
    a.label("L_NOSIG0")
    a("s_mov_b64 exec, -1")
    a("s_add_u32 s39, s39, 128")
    if EARLY: a("buffer_load_dword v9, v11, s[20:23], s96 offen sc1")
    a("s_branch L_OOLR%d" % SIGP)
    if EARLY:
        for p in (6, 7, 8):
            a.label("L_OOL%d" % p)
            if p == 6:
                a("s_waitcnt vmcnt(0)")
                a("v_cmp_ne_u32 vcc, 1, v9")
                a("s_cmp_eq_u64 vcc, 0")
                a("s_cselect_b32 s99, 1, 0")
            a("s_cmp_eq_u32 s99, 0")
            a("s_cbranch_scc1 L_OOLR%d" % p)
            oloads(0, {6: range(0, 3), 7: range(3, 6), 8: range(6, 8)}[p])
            a("s_branch L_OOLR%d" % p)
    for i in range(1, 16):
        a.label("L_CTR%d" % i)
        a("s_nop 3")
        for r in range(4): a("v_mov_b32 v%d, 0" % (CT + r))
        a("s_nop 1")
        a("s_branch L_CT%d" % i)
    a.label("L_END")
    a("s_endpgm")
    a.fix_hazards()
    return a.text()

def main():
    nm = "standalone__sliding_block__prompt_kernel"
    hdr = open("standalone__sliding_block__prompt.s.ref").read().split("; Override")[0]
    out = hdr
    out += "; @launch grid=(256,1,1) block=(512,1,1) lds=163840\n"
    out += '.amdgcn_target "amdgcn-amd-amdhsa--gfx950"\n.text\n'
    out += kernel_header(nm) + build()
    out += '.section .rodata,"a"\n.p2align 6\n' + kernel_desc(nm, 240, 102, 240)
    open(sys.argv[1] if len(sys.argv) > 1 else "standalone__sliding_block__prompt.s", "w").write(out)
main()
```

```python
import sys, os, struct
from asmlib import *

DIAG = int(os.environ.get("DIAG", "0"))
KG_OFF = 0
VG_OFF = 4 << 20
OG_OFF = 8 << 20
FL_OFF = 12 << 20
C2_OFF = FL_OFF + 65536
WS_BYTES = 64 << 20
DIAG_OFF = 32 << 20
SPIN_MAX = 200000
PARK = 196
PB0 = int(os.environ.get("PB0", "0"))
BLN = int(os.environ.get("BLN", "2"))
NOBH = int(os.environ.get("NOBH", "1"))
PSTEP = int(os.environ.get("PSTEP", "10"))
XPOLL = int(os.environ.get("XPOLL", "1"))
KORD = os.environ.get("KORD", "")
CSEQ = [int(x) for x in os.environ.get("CSEQ", "0,2,1,3,4,6,5,7,8,10,9,11,12,14,13,15").split(",")]
assert sorted(CSEQ) == list(range(16))
NTX = int(os.environ.get("NTX", "0"))
NTW = int(os.environ.get("NTW", "0"))
WOPF2 = int(os.environ.get("WOPF2", "0"))
WF1ST = int(os.environ.get("WF1ST", "0"))
BGS = int(os.environ.get("BGS", "4"))
E5 = int(os.environ.get("E5", "0"))
EK = int(os.environ.get("EK", "2"))
KVP = int(os.environ.get("KVP", "0"))
QBP = int(os.environ.get("QBP", "0"))
BARN = int(os.environ.get("BARN", "2"))
EP = int(os.environ.get("EP", "6"))
RAMP = [int(x) for x in os.environ.get("RAMP", "2,4,6,9").split(",")]
NOATOM = int(os.environ.get("NOATOM", "0"))
ROT2 = int(os.environ.get("ROT2", "7"))
SIGP = int(os.environ.get("SIGP", "2"))
CNT = 65536 - 1024
FORCE_EXACT = int(os.environ.get("FORCE_EXACT", "0"))
FLY0 = int(os.environ.get("FLY0", "4"))
EARLY = int(os.environ.get("EARLY", "2"))
LA3 = int(os.environ.get("LA3", "3"))
LOOPSTAMP = int(os.environ.get("LOOPSTAMP", "0"))
PRIO = int(os.environ.get("PRIO", "1"))
WOPF = int(os.environ.get("WOPF", "99"))
CPF = int(os.environ.get("CPF", "1"))
NM = "standalone__sliding_block__prompt_kernel"

def f32bits(x): return struct.unpack("<I", struct.pack("<f", x))[0]
CSC = (32 ** -0.5) * 1.4426950408889634
NEG = f32bits(-1.0e30)

class Cnt:
    def __init__(self, name, mx): self.n = 0; self.done = 0; self.name = name; self.mx = mx
    def issue(self): self.n += 1; return self.n
    def need(self, a, idn):
        if idn <= self.done: return
        cnt = min(self.n - idn, self.mx)
        a("s_waitcnt %s(%d)" % (self.name, cnt)); self.done = self.n - cnt
    def all(self, a):
        a("s_waitcnt %s(0)" % self.name); self.done = self.n
def Lgkm(): return Cnt("lgkmcnt", 15)
def Vm(): return Cnt("vmcnt", 63)

def vr(b, n): return "v[%d:%d]" % (b, b + n - 1)
def srd(a, d, lo, hi, nbytes):
    a("s_mov_b32 s%d, s%d" % (d, lo)); a("s_mov_b32 s%d, s%d" % (d + 1, hi))
    a("s_mov_b32 s%d, 0x%x" % (d + 2, nbytes)); a("s_mov_b32 s%d, 0x00020000" % (d + 3))

SB = 64
NSLOT = 16
def stamp(a, slot):
    if not DIAG: return
    a("s_memrealtime s[%d:%d]" % (SB + 2 * slot, SB + 2 * slot + 1))
    a("s_waitcnt lgkmcnt(0)")
AMP = int(os.environ.get("AMP", "-1"))
def stamp_flush(a):
    if not DIAG: return
    if AMP >= 0:
        a("s_sub_u32 s62, s%d, s%d" % (SB + 2 * AMP, SB))
        a("s_add_u32 s62, s62, s%d" % (SB + 2 * 11))
        a.label("L_AMP")
        a("s_memrealtime s[60:61]")
        a("s_waitcnt lgkmcnt(0)")
        a("s_sub_u32 s60, s60, s62")
        a("s_cmp_lt_i32 s60, 0")
        a("s_cbranch_scc1 L_AMP")
        return
    t = 62
    a("s_lshl_b32 s%d, s2, 3" % t); a("s_add_u32 s%d, s%d, s24" % (t, t)); a("s_lshl_b32 s%d, s%d, 7" % (t, t))
    a("s_add_u32 s%d, s%d, 0x%x" % (t, t, DIAG_OFF))
    a("v_mov_b32 v4, 0")
    for sl in range(NSLOT):
        a("v_mov_b32 v2, s%d" % (SB + 2 * sl)); a("v_mov_b32 v3, s%d" % (SB + 2 * sl + 1))
        a("buffer_store_dwordx2 v[2:3], v4, s[20:23], s%d offen offset:%d" % (t, sl * 8))
        a("s_nop 1")

def pollf(a, soff, name, va=15, vt=2, sc=35):
    a("s_mov_b32 s%d, %d" % (sc, SPIN_MAX))
    a.label(name)
    a("buffer_load_dword v%d, v%d, s[20:23], %s offen sc1" % (vt, va, soff))
    a("s_waitcnt vmcnt(0)")
    a("v_cmp_ne_u32 vcc, 1, v%d" % vt)
    a("s_cmp_eq_u64 vcc, 0")
    a("s_cbranch_scc1 %s_ok" % name)
    a("s_sub_u32 s%d, s%d, 1" % (sc, sc))
    a("s_cmp_lg_u32 s%d, 0" % sc)
    a("s_cbranch_scc1 %s" % name)
    a.label(name + "_ok")

def poll(a, soff, cmp_op, val, name, srdn=20, vt=2, vz=3, st=34, sc=35):
    a("v_mov_b32 v%d, 0" % vz)
    a("s_mov_b32 s%d, %d" % (sc, SPIN_MAX))
    a.label(name)
    a("buffer_load_dword v%d, v%d, s[%d:%d], %s offen sc1" % (vt, vz, srdn, srdn + 3, soff))
    a("s_waitcnt vmcnt(0)")
    a("v_readfirstlane_b32 s%d, v%d" % (st, vt))
    a("s_cmp_%s_u32 s%d, %s" % (cmp_op, st, val))
    a("s_cbranch_scc1 %s_ok" % name)
    a("s_sub_u32 s%d, s%d, 1" % (sc, sc))
    a("s_cmp_lg_u32 s%d, 0" % sc)
    a("s_cbranch_scc1 %s" % name)
    a.label(name + "_ok")

WR = 0
XR = 65536
R4 = 131072
KVH = [65536, 114688]
QL = 0
WOE = 0
WOO = 65536
RED = 131072
QF = 16

def build():
    a = Asm()
    def wo_one(par, p, reg=None):
        if reg is None: a("s_add_u32 m0, s61, %d" % ((WOE, WOO)[par] + p * 8192))
        a("s_add_u32 s33, s100, %d" % (2 * p)); a("s_and_b32 s33, s33, 7"); a("s_lshl_b32 s33, s33, 17")
        a("s_add_u32 s33, s33, s60")
        off = ((8 if p >= 4 else 0) * 64 + 32 * par) * 2048
        if off: a("s_add_u32 s33, s33, 0x%x" % off)
        if reg is None: a("buffer_load_dwordx4 v10, s[44:47], s33 offen lds")
        else: a("buffer_load_dwordx4 %s, v10, s[44:47], s33 offen" % vr(reg, 4))
    def wo_dma(par, first, count):
        for i in range(count): wo_one(par, first // 2 + i)
    ML = 24; MH = 28; ONE = 32; O = 36; L = 44; CC = 48; MC = 50; MX = 52; KF = 56; VF = 72; S = 96
    CT = 48
    KR = 120
    def att_setup(tag):
        a("s_and_b32 s56, s27, 3"); a("s_lshl_b32 s56, s56, 2"); a("s_and_b32 s29, s28, 3"); a("s_add_u32 s56, s56, s29")
        a("s_lshr_b32 s57, s27, 2"); a("s_lshl_b32 s57, s57, 3"); a("s_lshr_b32 s29, s28, 2"); a("s_add_u32 s57, s57, s29")
        a("v_lshrrev_b32 v4, 3, v0"); a("v_and_b32 v5, 7, v0"); a("v_lshrrev_b32 v6, 4, v0")
        a("v_lshlrev_b32 v6, 1, v6"); a("v_xor_b32 v6, v6, v5"); a("v_lshlrev_b32 v6, 4, v6")
        a("v_lshlrev_b32 v10, 11, v4"); a("v_add_u32 v10, v10, v6")
        a("s_lshl_b32 s30, s57, 7")
        a("v_add_u32 v10, s30, v10")
        a("s_lshl_b32 s61, s24, 10")
        a("s_and_b32 s60, s24, 3"); a("s_lshl_b32 s60, s60, 14")
        a("s_and_b32 s101, s57, %d" % ROT2)
        a("s_lshr_b32 s100, s24, 2"); a("s_add_u32 s100, s100, s101")
        a("s_waitcnt lgkmcnt(0)")
        a("v_and_b32 v2, 15, v0")
        a("v_lshrrev_b32 v3, 4, v0"); a("v_lshlrev_b32 v3, 2, v3")
        a("v_sub_u32 v4, v2, v3")
        a("v_mov_b32 v5, 0x%x" % NEG)
        for r in range(4):
            a("v_cmp_le_i32 vcc, %d, v4" % r)
            a("v_cndmask_b32_e64 v%d, v5, 0, vcc" % (MH + r))
            a("v_cndmask_b32_e64 v%d, 0, v5, vcc" % (ML + r))
        for r in range(4): a("v_mov_b32 v%d, 0x3f803f80" % (ONE + r))

        a("s_and_b32 s31, s24, 3"); a("s_lshl_b32 s31, s31, 1"); a("s_lshr_b32 s32, s24, 2"); a("s_add_u32 s31, s31, s32")
        a("s_lshl_b32 s36, s31, 10")
        a("v_add_u32 v6, s36, v1")
        a("v_lshlrev_b32 v7, 3, v0"); a("v_add_u32 v7, s36, v7")
        a("v_add_u32 v6, 0x%x, v6" % KVH[0]); a("v_add_u32 v7, 0x%x, v7" % (KVH[0] + 24576))
        a("v_add_u32 v8, s61, v1")
        a("s_lshl_b32 s37, s25, 3"); a("s_add_u32 s37, s37, s31"); a("s_lshl_b32 s37, s37, 5")
        a("s_lshl_b32 s38, s26, 1"); a("s_add_u32 s37, s37, s38"); a("s_lshl_b32 s37, s37, 10")
        a("s_add_u32 s37, s37, 0x%x" % OG_OFF)
        a("s_lshl_b32 s38, s25, 3"); a("s_add_u32 s38, s38, s31")
        a("s_sub_i32 s38, 16, s38"); a("s_max_i32 s38, s38, 0")
        a("s_lshl_b32 s39, s25, 8"); a("s_lshl_b32 s33, s26, 2"); a("s_add_u32 s39, s39, s33"); a("s_add_u32 s39, s39, 0x%x" % C2_OFF)
        a("s_lshr_b32 s30, s24, 2")
        a("s_lshl_b32 s96, s56, 8"); a("s_lshl_b32 s33, s30, 5"); a("s_add_u32 s96, s96, s33"); a("s_add_u32 s96, s96, 0x%x" % C2_OFF)
        a("v_and_b32 v11, 7, v0"); a("v_lshlrev_b32 v11, 2, v11")
        a("s_and_b32 s33, s24, 3"); a("s_lshl_b32 s33, s33, 1")
        a("s_lshl_b32 s32, s56, 3"); a("s_add_u32 s32, s32, s33")
        a("s_lshl_b32 s97, s32, 15"); a("s_lshl_b32 s33, s30, 14"); a("s_add_u32 s97, s97, s33"); a("s_add_u32 s97, s97, 0x%x" % OG_OFF)
        a("s_lshl_b32 s33, s30, 15")
        a("s_add_u32 s98, s97, 32768"); a("s_sub_u32 s98, s98, s33")
        a("s_add_u32 s97, s97, s33")
        a("s_add_u32 s32, s32, s30")
        a("s_mov_b32 s99, 0")
        a("s_mov_b32 s10, 0")
        a("s_mov_b32 s58, 0")

        a("s_cmp_eq_u32 s38, 0")
        a("s_cbranch_scc1 L_MLOK"+tag+"")
        for r in range(4): a("v_mov_b32 v%d, v5" % (ML + r))
        a.label("L_MLOK"+tag+"")
        a("s_mov_b32 s34, 0x%x" % f32bits(2.0 ** -24)); a("s_mov_b32 s35, 0x%x" % f32bits(2.0 ** 40))
        a("v_mov_b32 v54, s34"); a("v_mov_b32 v55, s35")

    a("s_cmp_ge_u32 s2, 256")
    a("s_cbranch_scc1 L_END")
    a("s_load_dwordx8 s[4:11], s[0:1], 0")
    a("s_load_dwordx4 s[40:43], s[0:1], 32")
    if DIAG:
        for sl in range(1, NSLOT): a("s_mov_b64 s[%d:%d], 0" % (SB + 2 * sl, SB + 2 * sl + 1))
        a("s_memrealtime s[%d:%d]" % (SB, SB + 1))
    a("v_lshrrev_b32 v1, 6, v0")
    a("v_readfirstlane_b32 s24, v1")
    a("v_and_b32 v0, 63, v0")
    a("s_and_b32 s27, s2, 7")
    a("s_lshr_b32 s28, s2, 3")
    a("s_and_b32 s25, s27, 1"); a("s_lshl_b32 s25, s25, 3"); a("s_and_b32 s29, s28, 7"); a("s_add_u32 s25, s25, s29")
    a("s_lshr_b32 s26, s27, 1"); a("s_lshl_b32 s26, s26, 2"); a("s_lshr_b32 s29, s28, 3"); a("s_add_u32 s26, s26, s29")
    a("v_lshlrev_b32 v1, 4, v0")
    a("s_cmp_lt_u32 s24, 4")
    a("s_cbranch_scc1 L_KV")
    a("s_sub_u32 s30, s24, 4")
    a("v_lshrrev_b32 v4, 3, v0")
    a("v_and_b32 v5, 7, v0")
    a("v_lshrrev_b32 v6, 4, v0")
    a("s_and_b32 s31, s30, 1")
    a("s_lshl_b32 s32, s31, 2")
    a("v_or_b32 v7, s32, v6")
    a("v_xor_b32 v7, v7, v5")
    a("v_lshlrev_b32 v7, 4, v7")
    a("v_lshlrev_b32 v2, 11, v4")
    a("v_add_u32 v2, v2, v7")
    a("s_lshl_b32 s32, s25, 7"); a("s_lshl_b32 s33, s30, 3"); a("s_add_u32 s32, s32, s33"); a("s_lshl_b32 s32, s32, 11")
    a("v_add_u32 v2, s32, v2")
    a("v_and_b32 v7, 1, v6")
    a("s_lshl_b32 s32, s31, 1")
    a("v_or_b32 v7, s32, v7")
    a("v_lshlrev_b32 v7, 1, v7")
    a("v_xor_b32 v7, v7, v5")
    a("v_lshlrev_b32 v7, 4, v7")
    a("v_mul_u32_u24 v3, 0x1800, v4")
    a("v_add_u32 v3, v3, v7")
    a("s_mul_i32 s32, s30, %d" % (8 * 6144)); a("s_lshl_b32 s33, s26, 7"); a("s_add_u32 s32, s32, s33")
    a("v_add_u32 v3, s32, v3")
    a("s_lshl_b32 s34, s30, 10")
    if KORD == "xor":
        a("s_and_b32 s59, s28, 7"); a("s_lshl_b32 s59, s59, 1"); a("s_and_b32 s60, s27, 1"); a("s_or_b32 s59, s59, s60"); a("s_xor_b32 s59, s59, s26")
    elif int(os.environ.get("ROTMJ", "1")):
        if os.environ.get("ROTSUB"): a("s_sub_u32 s59, s25, s26"); a("s_add_u32 s59, s59, 16")
        else: a("s_add_u32 s59, s25, s26")
        if os.environ.get("RSH"): a("s_lshl_b32 s59, s59, %s" % os.environ["RSH"])
    else:
        a("s_lshr_b32 s59, s28, 3"); a("s_lshl_b32 s59, s59, 2"); a("s_and_b32 s60, s28, 7"); a("s_lshl_b32 s60, s60, 1")
        a("s_add_u32 s59, s59, s60"); a("s_lshr_b32 s60, s27, 1"); a("s_add_u32 s59, s59, s60"); a("s_and_b32 s60, s27, 1"); a("s_add_u32 s59, s59, s60")
    a("s_waitcnt lgkmcnt(0)")
    srd(a, 12, 4, 5, 2048 * 1024 * 2)
    srd(a, 16, 6, 7, 1024 * 3072 * 2)
    vm = Vm()
    landed = {}
    def kbregs(b):
        if KORD == "xor": a("s_xor_b32 s35, s59, %d" % CSEQ[b])
        elif KORD == "zig":
            off = ((b + 1) // 2 if b & 1 else -(b // 2)) & 15
            a("s_add_u32 s35, s59, %d" % off); a("s_and_b32 s35, s35, 15")
        else:
            a("s_add_u32 s35, s59, %d" % b); a("s_and_b32 s35, s35, 15")
        a("s_lshl_b32 s36, s35, 7"); a("s_mul_i32 s37, s35, 393216")
    cur = {"kb": None}
    def kbr(b):
        if cur["kb"] != b: kbregs(b); cur["kb"] = b
    def stage_ops(b):
        sl = b & 3
        ops = []
        for i in range(4):
            def f(i=i):
                kbr(b)
                a("s_add_u32 m0, s34, %d" % (XR + sl * 16384 + i * 4096))
                a("s_add_u32 s38, s36, %d" % (i * 65536))
                a("buffer_load_dwordx4 v2, s[12:15], s38 offen %slds" % ("nt " if b < NTX else "")); landed[("S", b)] = vm.issue()
            ops.append(f)
        for s in range(2):
            for gg in range(2):
                def f(s=s, gg=gg):
                    kbr(b)
                    a("s_add_u32 m0, s34, %d" % (WR + sl * 16384 + s * 8192 + gg * 4096))
                    a("s_add_u32 s38, s37, %d" % (gg * 196608 + (s + 1) * 2048))
                    a("buffer_load_dwordx4 v3, s[16:19], s38 offen %slds" % ("nt " if b < NTW else "")); landed[("S", b)] = vm.issue()
                ops.append(f)
        return ops
    def issue_wq(b, ldsoff, regs=True):
        kbr(b)
        for gg in range(2):
            a("s_add_u32 m0, s34, %d" % (ldsoff + gg * 4096))
            if gg: a("s_add_u32 s38, s37, 196608")
            a("buffer_load_dwordx4 v3, s[16:19], %s offen lds" % ("s37", "s38")[gg]); landed[("Q", b)] = vm.issue()
    stamp(a, 12)
    fly = list(range(FLY0, FLY0 + 4))
    cap = [b for b in range(12) if b not in fly]
    queue = []
    for b in range(16):
        queue += [(b, f) for f in stage_ops(b)]
        if b in fly: queue.append((b, lambda b=b: issue_wq(b, R4 + (b - FLY0) * 8192)))
    def issue_upto(full, extra):
        while queue and queue[0][0] <= full: queue.pop(0)[1]()
        done = 8 + (1 if full + 1 in fly else 0) - sum(1 for q in queue if q[0] == full + 1)
        while queue and queue[0][0] == full + 1 and done < extra:
            queue.pop(0)[1](); done += 1
    issue_upto(1, 0)
    srd(a, 20, 42, 43, WS_BYTES)
    srd(a, 44, 8, 9, 1024 * 1024 * 2)
    srd(a, 48, 10, 11, 2048 * 1024 * 2)
    srd(a, 52, 40, 41, 256)
    CAP = 64; QA = 192; WF = 32; XF = 224
    vX = [8, 9]; vW = [10, 11, 12, 13]
    a("v_and_b32 v14, 15, v0"); a("v_lshrrev_b32 v15, 4, v0")
    a("v_lshrrev_b32 v16, 1, v14"); a("v_xor_b32 v16, v16, v15")
    a("s_lshl_b32 s32, s30, 12")
    a("v_lshlrev_b32 v17, 7, v14"); a("v_add_u32 v17, s32, v17"); a("v_add_u32 v17, 0x%x, v17" % XR)
    for kq in range(2):
        a("v_xor_b32 v18, %d, v16" % (kq << 2)); a("v_lshlrev_b32 v18, 4, v18"); a("v_add_u32 v%d, v17, v18" % vX[kq])
    a("v_lshrrev_b32 v17, 2, v14"); a("v_and_b32 v18, 3, v14")
    a("v_lshlrev_b32 v19, 3, v15"); a("v_add_u32 v19, v19, v17"); a("v_lshlrev_b32 v19, 7, v19")
    a("v_lshrrev_b32 v20, 1, v17"); a("v_and_b32 v21, 1, v15"); a("v_lshlrev_b32 v21, 1, v21"); a("v_or_b32 v20, v20, v21")
    a("v_lshlrev_b32 v20, 5, v20"); a("v_lshlrev_b32 v18, 3, v18")
    a("v_add3_u32 v19, v19, v20, v18")
    for c in range(4): a("v_xor_b32 v%d, %d, v19" % (vW[c], c * 32))
    vWR = [24, 25, 26, 27]
    for c in range(4): a("v_add_u32 v%d, 0x%x, v%d" % (vWR[c], R4, vW[c]))
    for r in range(32): a("v_mov_b32 v%d, 0" % (QA + r))
    lg = Lgkm()
    def qsteps(blocks):
        steps = []
        for (xs, wv, wo) in blocks:
            for kq in range(2): steps.append((xs, wv, wo, kq))
        return steps
    state = {"st": 0}
    def q_reads(step, st):
        xs, wv, wo, kq = step
        ids = {}; fl = []
        if xs[0] == "lds":
            for t in range(2):
                def f(t=t):
                    a("ds_read_b128 %s, v%d offset:%d" % (vr(XF + st * 8 + t * 4, 4), vX[kq], xs[1] * 16384 + t * 2048)); ids["X"] = lg.issue()
                fl.append(f)
        for c in range(4):
            for hf in range(2):
                def f(c=c, hf=hf):
                    a("ds_read_b64_tr_b16 %s, v%d offset:%d" % (vr(WF + st * 16 + c * 4 + hf * 2, 2), wv[c], wo + kq * 4096 + hf * 512)); ids[c] = lg.issue()
                fl.append(f)
        return fl, ids
    def q_run(steps, hooks=None):
        hooks = hooks or {}
        st = 0
        if 0 in hooks: hooks[0]()
        rl, ids = q_reads(steps[0], st)
        for f in rl: f()
        for n, step in enumerate(steps):
            xs, wv, wo, kq = step
            nxt = n + 1 < len(steps)
            nrl = []
            k = 0
            for c in range(4):
                for t in range(2):
                    lg.need(a, ids[c])
                    if xs[0] == "lds": xr = XF + st * 8 + t * 4
                    else: xr = xs[1] + kq * 8 + t * 4
                    d = vr(QA + (t * 4 + c) * 4, 4)
                    a("v_mfma_f32_16x16x32_bf16 %s, %s, %s, %s" % (d, vr(WF + st * 16 + c * 4, 4), vr(xr, 4), d))
                    if k == 0 and nxt:
                        if n + 1 in hooks: hooks[n + 1]()
                        nrl, nids = q_reads(steps[n + 1], st ^ 1)
                    take = 2 if len(nrl) > (7 - k) else 1
                    for _ in range(take):
                        if nrl: nrl.pop(0)()
                    k += 1
            if nxt:
                while nrl: nrl.pop(0)()
                ids = nids; st ^= 1
    def capture(b):
        base = CAP + cap.index(b) * 16
        for kq in range(2):
            for t in range(2):
                a("ds_read_b128 %s, v%d offset:%d" % (vr(base + kq * 8 + t * 4, 4), vX[kq], (b & 3) * 16384 + t * 2048)); lg.issue()
    def wqpos(q): return WR + (q & 3) * 16384 + (q >> 2) * 8192
    def need_stage(b):
        vm.need(a, landed[("Q", b)] if b in fly else landed[("S", b)])
    need_stage(0)
    stamp(a, 1)
    a("s_barrier")
    for b in range(16):
        issue_upto(b + 2, RAMP[min(b, len(RAMP) - 1)])
        x = b - (FLY0 + 4)
        if 0 <= x < 4: issue_wq(12 + x, R4 + x * 8192)
        if b >= 13:
            issue_wq(cap[b - 13], wqpos(b - 13))
        if b == WOPF:
            a("v_and_b32 v28, 15, v0"); a("v_lshlrev_b32 v28, 7, v28")
            a("s_lshl_b32 s38, s2, 13"); a("s_lshl_b32 s29, s30, 11"); a("s_add_u32 s38, s38, s29")
            a("buffer_load_dword v29, v28, s[44:47], s38 offen"); vm.issue()
        if b in fly:
            q_run(qsteps([(("lds", b & 3), vWR, (b - FLY0) * 8192)]))
            lg.all(a)
        elif b < 12:
            capture(b)
            lg.all(a)
        if b == 12:
            a("s_load_dwordx4 s[4:7], s[40:41], 0")
        if b == 15:
            a("s_waitcnt lgkmcnt(0)")
            a("s_and_b64 s[4:5], s[4:5], s[6:7]"); a("s_and_b32 s4, s4, s5")
            a("s_cmp_eq_u32 s4, 0x01010101")
            a("s_cbranch_scc1 L_INITOK")
            a("v_and_b32 v28, 3, v0"); a("v_lshlrev_b32 v28, 2, v28")
            a("s_mov_b32 s35, %d" % SPIN_MAX)
            a("s_mov_b32 s29, 0x01010101")
            a.label("L_INITCHK")
            a("buffer_load_dword v29, v28, s[52:55], 0 offen sc1")
            a("s_waitcnt vmcnt(0)")
            a("v_cmp_ne_u32 vcc, s29, v29")
            a("s_cmp_eq_u64 vcc, 0")
            a("s_cbranch_scc1 L_INITOK")
            a("s_sub_u32 s35, s35, 1"); a("s_cmp_lg_u32 s35, 0")
            a("s_cbranch_scc1 L_INITCHK")
            a.label("L_INITOK")
        if b + 1 < 16: need_stage(b + 1)
        a("s_barrier")
    issue_wq(cap[3], wqpos(3))
    vm.all(a)
    a("s_barrier")
    stamp(a, 2)
    for q in range(4, 8): issue_wq(cap[q], wqpos(q))
    def wopf2():
        a("v_lshrrev_b32 v28, 3, v0"); a("v_lshlrev_b32 v28, 11, v28"); a("v_and_b32 v29, 7, v0"); a("v_lshlrev_b32 v29, 7, v29"); a("v_add_u32 v28, v28, v29")
        a("s_lshl_b32 s38, s28, 5"); a("s_lshl_b32 s29, s30, 3"); a("s_add_u32 s38, s38, s29"); a("s_lshl_b32 s38, s38, 11")
        a("s_lshr_b32 s29, s27, 2"); a("s_lshl_b32 s29, s29, 10"); a("s_add_u32 s38, s38, s29")
        a("buffer_load_dword v30, v28, s[44:47], s38 offen"); vm.issue()
    if WOPF2 == 16: wopf2()
    if QBP: a("s_setprio %d" % QBP)
    blocks = [(("lds", s), vWR, s * 8192) for s in range(4)] + [(("reg", CAP + q * 16), vW, wqpos(q)) for q in range(8)]
    def hookP():
        lg.all(a); stamp(a, 13); vm.need(a, landed[("Q", cap[7])]); a("s_barrier"); stamp(a, 15)
        if WOPF2 == 17: wopf2()
    q_run(qsteps(blocks), {PSTEP: hookP})
    if QBP: a("s_setprio 0")
    stamp(a, 3)
    a("s_lshl_b32 s32, s30, 10")
    a("v_add_u32 v14, s32, v1")
    if WOPF2: a("s_waitcnt vmcnt(0)")
    a("v_mov_b32 v28, 0x%x" % f32bits(CSC)); a("v_mov_b32 v29, 0x%x" % f32bits(CSC))
    a("s_nop 2")
    for r in range(0, 32, 2):
        a("v_pk_mul_f32 %s, %s, v[28:29]" % (vr(QA + r, 2), vr(QA + r, 2)))
    for h in range(2):
        for t in range(2):
            dst = (WF + h * 4) if t == 0 else (QF + h * 4)
            for nt in range(2):
                s0 = QA + (t * 4 + 2 * h + nt) * 4
                a("v_cvt_pk_bf16_f32 v%d, v%d, v%d" % (dst + nt * 2, s0, s0 + 1))
                a("v_cvt_pk_bf16_f32 v%d, v%d, v%d" % (dst + nt * 2 + 1, s0 + 2, s0 + 3))
        a("ds_write_b128 v14, %s offset:%d" % (vr(WF + h * 4, 4), QL + h * 4096))
    att_setup("q")
    a("s_branch L_ATT")
    a.label("L_KV")
    ACC = 64; FR = 128; PK = 192
    vXb = [4, 5]; vWb = [6, 7]; vX = [8, 9]; vW2 = [10, 11]
    def fX(st, t): return FR + st * 32 + t * 4
    def fW(st, c): return FR + st * 32 + 16 + c * 4
    def acc(t, c): return ACC + (t * 4 + c) * 4
    a("s_lshr_b32 s30, s24, 1")
    a("s_and_b32 s31, s24, 1")
    a("s_waitcnt lgkmcnt(0)")
    srd(a, 20, 42, 43, WS_BYTES)
    srd(a, 44, 8, 9, 1024 * 1024 * 2)
    srd(a, 48, 10, 11, 2048 * 1024 * 2)
    srd(a, 52, 40, 41, 256)
    if CPF:
        a("s_getpc_b64 s[96:97]")
        a.label("L_PC")
        a("s_sub_u32 s96, s96, L_PC-%s" % NM)
        a("s_subb_u32 s97, s97, 0")
        a("v_lshlrev_b32 v12, 7, v0")
        a("s_lshl_b32 s32, s24, 13")
        a("v_add_u32 v12, s32, v12")
        a("v_min_u32 v12, L_END-%s, v12" % NM)
        a("global_load_dword v30, v12, s[96:97]")
    a("s_or_b32 s32, s24, s26")
    a("s_cmp_lg_u32 s32, 0")
    a("s_cbranch_scc1 L_NOINIT")
    for r in range(4): a("v_mov_b32 v%d, 0" % (12 + r))
    a("v_and_b32 v16, 15, v0"); a("v_lshlrev_b32 v17, 7, v16")
    a("v_lshlrev_b32 v16, 4, v16")
    a("s_lshl_b32 s32, s25, 11"); a("s_add_u32 s32, s32, 0x%x" % FL_OFF)
    a("s_lshl_b32 s33, s25, 8"); a("s_add_u32 s33, s33, 0x%x" % C2_OFF)
    a("s_mov_b64 exec, 0xffff")
    a("buffer_store_dwordx4 v[12:15], v17, s[20:23], s32 offen sc1")
    a("buffer_store_dwordx4 v[12:15], v16, s[20:23], s33 offen sc1")
    a("s_mov_b64 exec, 1")
    a("v_mov_b32 v18, 1")
    a("s_waitcnt vmcnt(0)")
    a("buffer_store_byte v18, v12, s[52:55], s25 offen sc1")
    a("s_mov_b64 exec, -1")
    a.label("L_NOINIT")
    a("v_and_b32 v12, 15, v0"); a("v_lshrrev_b32 v13, 4, v0")
    a("v_lshrrev_b32 v14, 1, v12"); a("v_xor_b32 v14, v14, v13")
    a("s_lshl_b32 s32, s30, 13")
    a("v_lshlrev_b32 v15, 7, v12"); a("v_add_u32 v15, s32, v15"); a("v_add_u32 v15, 0x%x, v15" % XR)
    for kq in range(2):
        a("v_xor_b32 v16, %d, v14" % (kq << 2)); a("v_lshlrev_b32 v16, 4, v16"); a("v_add_u32 v%d, v15, v16" % vXb[kq])
    a("v_lshrrev_b32 v17, 2, v12"); a("v_and_b32 v18, 3, v12")
    a("v_lshlrev_b32 v20, 3, v13"); a("v_add_u32 v20, v20, v17"); a("v_lshlrev_b32 v20, 7, v20")
    a("v_lshrrev_b32 v21, 1, v17"); a("v_and_b32 v22, 1, v13"); a("v_lshlrev_b32 v22, 1, v22"); a("v_or_b32 v21, v21, v22")
    a("s_lshl_b32 s33, s31, 1")
    a("v_xor_b32 v21, s33, v21"); a("v_lshlrev_b32 v21, 5, v21"); a("v_lshlrev_b32 v22, 3, v18")
    a("v_add3_u32 v%d, v21, v22, v20" % vWb[0])
    a("v_xor_b32 v%d, 32, v%d" % (vWb[1], vWb[0]))
    for q in range(2):
        a("v_mov_b32 v%d, v%d" % (vX[q], vXb[q])); a("v_mov_b32 v%d, v%d" % (vW2[q], vWb[q]))
    for r in range(64): a("v_mov_b32 v%d, 0" % (ACC + r))
    a("s_mov_b32 s34, 16384")
    a("s_mov_b32 s35, 0")
    if LOOPSTAMP:
        a("s_lshl_b32 s61, s2, 3"); a("s_add_u32 s61, s61, s24"); a("s_lshl_b32 s61, s61, 7"); a("s_add_u32 s61, s61, 0x%x" % (DIAG_OFF + 256 * 8 * 128))
    lg = Lgkm()
    def reads(kq, st):
        ids = {}
        def rX(t):
            def f():
                a("ds_read_b128 %s, v%d offset:%d" % (vr(fX(st, t), 4), vX[kq], t * 2048)); ids["X%d" % t] = lg.issue()
            return f
        def rW(c, hf):
            def f():
                a("ds_read_b64_tr_b16 %s, v%d offset:%d" % (vr(fW(st, c) + 2 * hf, 2), vW2[c & 1], (c >> 1) * 8192 + kq * 4096 + hf * 512)); ids["W%d" % c] = lg.issue()
            return f
        l = [rX(0), rW(0, 0), rW(0, 1), rX(1), rX(2), rX(3)]
        for c in range(1, 4): l += [rW(c, 0), rW(c, 1)]
        return l, ids
    def mfma(t, c, st, ids):
        lg.need(a, max(ids["X%d" % t], ids["W%d" % c]))
        d = vr(acc(t, c), 4)
        if c < 2: a("v_mfma_f32_16x16x32_bf16 %s, %s, %s, %s" % (d, vr(fW(st, c), 4), vr(fX(st, t), 4), d))
        else:     a("v_mfma_f32_16x16x32_bf16 %s, %s, %s, %s" % (d, vr(fX(st, t), 4), vr(fW(st, c), 4), d))
    order = [(t, c) for c in range(4) for t in range(4)]
    if KVP: a("s_setprio %d" % KVP)
    a("s_barrier")
    stamp(a, 1)
    rl, ids = reads(0, 0)
    for f in rl: f()
    a.label("L_G1LOOP")
    for kq in range(2):
        st = kq
        nrl, nids = reads(kq ^ 1, st ^ 1)
        start = 0 if kq == 0 else BARN + 1
        for n, (t, c) in enumerate(order):
            mfma(t, c, st, ids)
            if kq == 1 and n < 2:
                a("v_add_u32 v%d, s34, v%d" % (vX[n], vXb[n])); a("v_add_u32 v%d, s34, v%d" % (vW2[n], vWb[n]))
            if kq == 1 and n == BARN:
                lg.all(a); a("s_barrier")
                if LOOPSTAMP:
                    a("%s s[98:99]" % ("s_memrealtime" if LOOPSTAMP == 1 else "s_memtime"))
                    a("s_waitcnt lgkmcnt(0)")
                    a("v_mov_b32 v24, s98"); a("v_mov_b32 v25, s99"); a("v_mov_b32 v26, 0")
                    a("buffer_store_dwordx2 v[24:25], v26, s[20:23], s61 offen")
                    a("s_add_u32 s61, s61, 8")
            if kq == 0 or BARN <= 3:
                if start <= n < start + 12: nrl[n - start]()
            elif n >= start:
                rem = 16 - start
                k0 = (n - start) * 12 // rem; k1 = (n - start + 1) * 12 // rem
                for q in range(k0, k1): nrl[q]()
            if kq == 0 and n == 13:
                a("s_add_u32 s35, s35, 1")
            if kq == 1 and n == 14:
                a("s_add_u32 s34, s34, 16384")
                a("s_and_b32 s34, s34, 0xffff")
                a("s_cmp_lt_u32 s35, 12")
        ids = nids
    assert lg.n - lg.done == 12, (lg.n, lg.done)
    a("s_cbranch_scc1 L_G1LOOP")
    a("s_lshl_b32 s36, s26, 1"); a("s_add_u32 s36, s36, s31"); a("s_lshl_b32 s36, s36, 7")
    a("s_lshl_b32 s37, s25, 3"); a("s_lshl_b32 s38, s30, 2"); a("s_add_u32 s37, s37, s38")
    a("s_add_u32 s36, s36, s37"); a("s_lshl_b32 s36, s36, 10")
    a("s_add_u32 s37, s36, 0x%x" % VG_OFF)
    def pk(t, s): return PK + t * 8 + s * 4
    def cvt_store(s, t):
        for nt in range(2):
            c = s * 2 + nt
            for hf in range(2):
                a("v_cvt_pk_bf16_f32 v%d, v%d, v%d" % (pk(t, s) + nt * 2 + hf, acc(t, c) + 2 * hf, acc(t, c) + 2 * hf + 1))
        a("buffer_store_dwordx4 %s, v1, s[20:23], %s offen offset:%d sc1" % (vr(pk(t, s), 4), ("s36", "s37")[s], t * 1024))
    def treads(step, st):
        sl, kq, cp = step
        ids = {}
        def rX(t):
            def f():
                a("ds_read_b128 %s, v%d offset:%d" % (vr(fX(st, t), 4), vXb[kq], sl * 16384 + t * 2048)); ids["X%d" % t] = lg.issue()
            return f
        def rW(c, hf):
            def f():
                a("ds_read_b64_tr_b16 %s, v%d offset:%d" % (vr(fW(st, c) + 2 * hf, 2), vWb[c & 1], sl * 16384 + (c >> 1) * 8192 + kq * 4096 + hf * 512)); ids["W%d" % c] = lg.issue()
            return f
        c0 = 2 * cp
        return [rX(0), rW(c0, 0), rW(c0, 1), rX(1), rX(2), rX(3), rW(c0 + 1, 0), rW(c0 + 1, 1)], ids
    steps = [(sl, kq, 0) for sl in range(4) for kq in range(2)] + [(sl, kq, 1) for sl in range(4) for kq in range(2)][1:]
    st = 0
    for n, step in enumerate(steps):
        sl, kq, cp = step
        nxt = n + 1 < len(steps)
        cs = [0, 1, 2, 3] if n == 0 else [2 * cp, 2 * cp + 1]
        nrl = []
        k = 0
        for c in cs:
            for t in range(4):
                mfma(t, c, st, ids)
                if k == 0:
                    if (nxt and n + 1 <= 8 and (n + 1) % 2 == 0) or not nxt:
                        lg.all(a); a("s_barrier")
                    if nxt: nrl, nids = treads(steps[n + 1], st ^ 1)
                take = 2 if len(nrl) > (len(cs) * 4 - 1 - k) else 1
                for _ in range(take):
                    if nrl: nrl.pop(0)()
                if n in (9, 10) and k in (1, 5): cvt_store(0, (n - 9) * 2 + (k >> 2))
                k += 1
        if nxt:
            while nrl: nrl.pop(0)()
            ids = nids; st ^= 1
    stamp(a, 2)
    a("s_lshl_b32 s32, s25, 4"); a("s_add_u32 s32, s32, s26"); a("s_lshl_b32 s32, s32, 7"); a("s_add_u32 s32, s32, 0x%x" % FL_OFF)
    a("s_lshl_b32 s33, s24, 2"); a("s_add_u32 s32, s32, s33")
    a("v_and_b32 v17, 1, v0"); a("v_add_u32 v17, 1, v17")
    a("v_cmp_ge_u32 s[60:61], s25, v17")
    a("v_lshlrev_b32 v17, 11, v17")
    a("v_cndmask_b32_e64 v17, 0, v17, s[60:61]")
    a("v_sub_u32 v17, s32, v17")
    a("buffer_load_dword v20, v17, s[20:23], 0 offen sc1")
    for t in range(4): cvt_store(1, t)
    a("s_mul_i32 s38, s31, %d" % (KVH[1] - KVH[0]))
    a("s_add_u32 s38, s38, %d" % KVH[0])
    a("s_lshl_b32 s39, s30, 12")
    a("s_add_u32 s38, s38, s39")
    a("v_add_u32 v12, s38, v1")
    a("v_lshlrev_b32 v13, 3, v0"); a("v_add_u32 v13, s38, v13")
    a("v_mov_b32 v15, 1"); a("v_mov_b32 v16, 0")
    a("s_barrier")
    for t in range(4):
        a("ds_write_b128 v12, %s offset:%d" % (vr(pk(t, 0), 4), (16 + t) * 1024))
        a("ds_write_b64 v13, %s offset:%d" % (vr(pk(t, 1), 2), 24576 + (16 + t) * 1024))
        a("ds_write_b64 v13, %s offset:%d" % (vr(pk(t, 1) + 2, 2), 24576 + (16 + t) * 1024 + 512))
    a("s_waitcnt vmcnt(0)")
    a("s_mov_b64 exec, 1")
    a("buffer_store_dword v15, v16, s[20:23], s32 offen sc1")
    a("s_mov_b64 exec, -1")
    stamp(a, 3)
    HB = 64
    def chk(lbl_ok):
        a("v_cmp_ne_u32 vcc, 1, v20")
        a("s_and_b64 s[58:59], vcc, s[60:61]")
        a("s_cmp_eq_u64 s[58:59], 0")
        a("s_cbranch_scc1 %s" % lbl_ok)
    def halo_loads(tag):
        for d in (1, 2):
            skip = "L_HSKIP%s%d" % (tag, d)
            a("s_cmp_lt_u32 s25, %d" % d)
            a("s_cbranch_scc1 %s" % skip)
            a("s_sub_u32 s38, s36, %d" % (d * 8192)); a("s_sub_u32 s39, s37, %d" % (d * 8192))
            hb = HB + (d - 1) * 32
            for t in range(4):
                a("buffer_load_dwordx4 %s, v1, s[20:23], s38 offen offset:%d sc1" % (vr(hb + t * 8, 4), t * 1024))
                a("buffer_load_dwordx4 %s, v1, s[20:23], s39 offen offset:%d sc1" % (vr(hb + t * 8 + 4, 4), t * 1024))
            a.label(skip)
    def own_writes():
        a("s_barrier")
        for t in range(4):
            a("ds_write_b128 v12, %s offset:%d" % (vr(pk(t, 0), 4), (16 + t) * 1024))
            a("ds_write_b64 v13, %s offset:%d" % (vr(pk(t, 1), 2), 24576 + (16 + t) * 1024))
            a("ds_write_b64 v13, %s offset:%d" % (vr(pk(t, 1) + 2, 2), 24576 + (16 + t) * 1024 + 512))
    chk("L_HOK")
    a("s_mov_b32 s35, %d" % SPIN_MAX)
    a.label("L_HPOLL")
    a("buffer_load_dword v20, v17, s[20:23], 0 offen sc1")
    a("s_waitcnt vmcnt(0)")
    chk("L_HOK")
    a("s_sub_u32 s35, s35, 1"); a("s_cmp_lg_u32 s35, 0")
    a("s_cbranch_scc1 L_HPOLL")
    a.label("L_HOK")
    halo_loads("a")
    att_setup("k")
    stamp(a, 13)
    a("s_cmp_lt_u32 s25, 2")
    a("s_cbranch_scc1 L_HSMALL")
    def halo_write(d, t):
        hb = HB + (d - 1) * 32; tb = (2 - d) * 8
        a("ds_write_b128 v12, %s offset:%d" % (vr(hb + t * 8, 4), (tb + t) * 1024))
        a("ds_write_b64 v13, %s offset:%d" % (vr(hb + t * 8 + 4, 2), 24576 + (tb + t) * 1024))
        a("ds_write_b64 v13, %s offset:%d" % (vr(hb + t * 8 + 6, 2), 24576 + (tb + t) * 1024 + 512))
    n = 0
    for d in (1, 2):
        for t in range(4):
            n += 2
            a("s_waitcnt vmcnt(%d)" % (16 - n))
            halo_write(d, t)
    a("s_branch L_ATT")
    a.label("L_HSMALL")
    a("s_cmp_lt_u32 s25, 1")
    a("s_cbranch_scc1 L_ATT")
    a("s_waitcnt vmcnt(0)")
    for t in range(4): halo_write(1, t)
    a.label("L_ATT")
    a("s_waitcnt lgkmcnt(0)")
    a("s_barrier")
    stamp(a, 4)
    a("s_cmp_ge_u32 s24, 4")
    a("s_cbranch_scc1 L_NOQRD")
    a("ds_read_b128 %s, v8 offset:%d" % (vr(QF, 4), QL))
    a("ds_read_b128 %s, v8 offset:%d" % (vr(QF + 4, 4), QL + 4096))
    a("v_mov_b32 v2, 0"); a("v_mov_b32 v3, 0x%x" % CNT)
    a("ds_write_b32 v3, v2")
    a("s_waitcnt lgkmcnt(0)")
    a.label("L_NOQRD")
    a("s_barrier")
    def wo_slot(p): wo_one(0, p)
    OFA = 164; OFB = 96
    def oloads(par, sl=range(8)):
        ob = (OFA, OFB)[par]
        for sx in sl:
            a("s_add_u32 s34, s101, %d" % sx); a("s_and_b32 s34, s34, 7"); a("s_lshl_b32 s34, s34, 11")
            for t in range(2):
                a("s_add_u32 s33, %s, s34" % ("s97", "s98")[t])
                a("buffer_load_dwordx4 %s, v1, s[20:23], s33 offen offset:%d sc1" % (vr(ob + sx * 8 + t * 4, 4), par * 1024))
    def signal(tag, w=True):
        if w: a("s_waitcnt vmcnt(0)")
        a("s_barrier")
        a("s_cmp_lg_u32 s24, 0")
        a("s_cbranch_scc1 L_NOSIG%s" % tag)
        a("s_mov_b64 exec, 1")
        a("v_mov_b32 v2, 1"); a("v_mov_b32 v3, 0")
        a("buffer_store_dword v2, v3, s[20:23], s39 offen sc1")
        a("s_mov_b64 exec, -1")
        a.label("L_NOSIG%s" % tag)
        a("s_add_u32 s39, s39, 128")
    if PRIO:
        a("s_cmp_lt_u32 s24, 4")
        a("s_cbranch_scc1 L_NOPRIO")
        a("s_setprio 1")
        a.label("L_NOPRIO")
    a.label("L_ROUND")
    lg = Lgkm()
    kid = {}; vid = {}
    def rdK(i):
        if i < 17:
            a("ds_read_b128 %s, v6 offset:%d" % (vr(KR + (i % 6) * 4, 4), i * 1024)); kid[i] = lg.issue()
    def rdV1(p, dt, h):
        st = VF + (p % 3) * 8
        if 2 * p + h < 17:
            a("ds_read_b64 %s, v7 offset:%d" % (vr(st + dt * 4 + h * 2, 2), (2 * p + h) * 1024 + dt * 512)); vid[(p, dt)] = lg.issue()
    def rdV(p):
        for dt in range(2):
            for h in range(2): rdV1(p, dt, h)
    def sb(p): return S + (p % 3) * 8
    def qk(i):
        if i >= 17: return
        if 1 <= i <= 15:
            a("s_cmp_eq_u32 s38, %d" % i)
            a("s_cbranch_scc1 L_CTR%d" % i)
            a.label("L_CT%d" % i)
        c0 = vr(ML, 4) if i == 0 else (vr(MH, 4) if i == 16 else vr(CT, 4))
        lg.need(a, kid[i])
        a("v_mfma_f32_16x16x32_bf16 %s, %s, %s, %s" % (vr(sb(i >> 1) + (i & 1) * 4, 4), vr(KR + (i % 6) * 4, 4), vr(QF, 4), c0))
    def exps(p, b):
        nv = 8 if p < 8 else 4
        return ["v_exp_f32 v%d, v%d" % (b + r, b + r) for r in range(nv)]
    def cvts(p, b):
        nv = 8 if p < 8 else 4
        return ["v_cvt_pk_bf16_f32 v%d, v%d, v%d" % (b + r, b + 2 * r, b + 2 * r + 1) for r in range(nv // 2)]
    def pv(p, k, b):
        st = VF + (p % 3) * 8
        if k < 2:
            lg.need(a, vid[(p, k)])
            d = vr(O + 4 * k, 4); A = st + 4 * k
        else:
            d = vr(L, 4); A = ONE
        c = "0" if p == 0 else d
        if p < 8: a("v_mfma_f32_16x16x32_bf16 %s, %s, %s, %s" % (d, vr(A, 4), vr(b, 4), c))
        else:     a("v_mfma_f32_16x16x16_bf16 %s, %s, %s, %s" % (d, vr(A, 2), vr(b, 2), c))
    for i in range(6): rdK(i)
    a("s_cmp_gt_u32 s38, 1")
    a("s_cselect_b32 s33, 0x%x, 0" % NEG)
    for r in range(4): a("v_mov_b32 v%d, s33" % (CT + r))
    rdV(0)
    for i in range(4):
        qk(i); rdK(i + 6)
    rdV(1)
    for x in exps(0, sb(0)): a(x)
    for p in range(9):
        if p < 4:
            a("s_cmp_lg_u32 s58, 0")
            a("s_cbranch_scc1 L_PKD%d" % p)
            wo_slot(2 * p)
            if p < 3: wo_slot(2 * p + 1)
            else:
                a("s_cmp_eq_u32 s24, 7")
                a("s_cbranch_scc1 L_SK%d" % p)
                wo_slot(7)
            a.label("L_SK%d" % p)
        if E5 and p >= 1:
            a("s_cmp_eq_u32 s10, 1")
            a("s_cbranch_scc1 L_E5_%d" % p)
            a.label("L_E5R_%d" % p)
        if EARLY == 2 and p == EP:
            a("buffer_load_dword v9, v11, s[20:23], s96 offen sc1")
        if p == SIGP or (EARLY == 1 and p >= 6):
            a("s_cmp_lg_u32 s58, 0")
            a("s_cbranch_scc1 L_OOL%d" % p)
            a.label("L_OOLR%d" % p)
        cv = cvts(p, sb(p))
        ne = exps(p + 1, sb(p + 1)) if p < 8 else []
        qk(2 * p + 4); rdK(2 * p + 10)
        for x in cv[:2]: a(x)
        qk(2 * p + 5); rdK(2 * p + 11)
        for x in cv[2:]: a(x)
        for k in range(3):
            for x in ne[:2]: a(x)
            ne = ne[2:]
            pv(p, k, sb(p))
        if p + 2 < 9: rdV(p + 2)
        for x in ne: a(x)
    if PRIO: a("s_setprio 0")
    a("s_nop 6")
    a("v_add_f32_e64 v%d, |v%d|, |v%d|" % (MX, O, O + 1))
    a("v_add_f32_e64 v%d, |v%d|, |v%d|" % (MX + 1, O + 2, O + 3))
    for r in range(4, 8): a("v_add_f32_e64 v%d, |v%d|, v%d" % (MX + (r & 1), O + r, MX + (r & 1)))
    a("v_cmp_nle_f32 vcc, v54, v%d" % L)
    a("v_cmp_nge_f32 s[34:35], v55, v%d" % L)
    a("v_add_f32 v%d, v%d, v%d" % (MX, MX, MX + 1))
    a("s_or_b64 s[34:35], s[34:35], vcc")
    a("v_cmp_nge_f32 vcc, 0x7f000000, v%d" % MX)
    a("s_or_b64 s[34:35], s[34:35], vcc")
    if FORCE_EXACT: a("s_mov_b64 s[34:35], 1")
    a("s_cmp_eq_u64 s[34:35], 0")
    a("s_cbranch_scc1 L_FASTOK")
    lg = Lgkm(); kid = {}; vid = {}
    def rdKx(i):
        a("ds_read_b128 %s, v6 offset:%d" % (vr(KF + (i % 4) * 4, 4), i * 1024)); kid[i] = lg.issue()
    for i in range(4): rdKx(i)
    for i in range(17):
        c0 = vr(ML, 4) if i == 0 else (vr(MH, 4) if i == 16 else "0")
        lg.need(a, kid[i])
        a("v_mfma_f32_16x16x32_bf16 %s, %s, %s, %s" % (vr(S + 4 * i, 4), vr(KF + (i % 4) * 4, 4), vr(QF, 4), c0))
        if i + 4 < 17: rdKx(i + 4)
    rdV(0); rdV(1)
    a("s_nop 7")
    a("s_cmp_eq_u32 s38, 0")
    a("s_cbranch_scc1 L_NOFIX")
    for i in range(16):
        for r in range(4): a("v_mov_b32 v%d, v5" % (S + 4 * i + r))
        if i < 15:
            a("s_cmp_eq_u32 s38, %d" % (i + 1))
            a("s_cbranch_scc1 L_NOFIX")
    a.label("L_NOFIX")
    for i in range(17):
        for q in range(2):
            m = MX + q; s0 = S + 4 * i + 2 * q
            if i == 0: a("v_max_f32 v%d, v%d, v%d" % (m, s0, s0 + 1))
            else: a("v_max3_f32 v%d, v%d, v%d, v%d" % (m, m, s0, s0 + 1))
    a("v_max_f32 v%d, v%d, v%d" % (MX, MX, MX + 1))
    a("v_mov_b32 v%d, v%d" % (MX + 1, MX))
    a("v_permlane32_swap_b32 v%d, v%d" % (MX, MX + 1))
    a("v_max_f32 v%d, v%d, v%d" % (MX, MX, MX + 1))
    a("v_mov_b32 v%d, v%d" % (MX + 1, MX))
    a("v_permlane16_swap_b32 v%d, v%d" % (MX, MX + 1))
    a("v_max_f32 v%d, v%d, v%d" % (MX, MX, MX + 1))
    for p in range(9):
        b = S + 8 * p; nv = 8 if p < 8 else 4
        for r in range(nv): a("v_sub_f32 v%d, v%d, v%d" % (b + r, b + r, MX))
        for x in exps(p, b): a(x)
        for x in cvts(p, b): a(x)
        for k in range(3): pv(p, k, b)
        if p + 2 < 9: rdV(p + 2)
    a("s_nop 7")
    a.label("L_FASTOK")
    a("v_rcp_f32 v%d, v%d" % (MX, L))
    for r in range(8): a("v_mul_f32 v%d, v%d, v%d" % (O + r, O + r, MX))
    for r in range(4): a("v_cvt_pk_bf16_f32 v%d, v%d, v%d" % (S + r, O + 2 * r, O + 2 * r + 1))
    a("buffer_store_dwordx4 %s, v1, s[20:23], s37 offen sc1" % vr(S, 4))
    a("s_add_u32 s37, s37, 1024")
    a("v_add_u32 v6, %d, v6" % (KVH[1] - KVH[0])); a("v_add_u32 v7, %d, v7" % (KVH[1] - KVH[0]))
    for r in range(4): a("v_mov_b32 v%d, v%d" % (QF + r, QF + 4 + r))

    if DIAG:
        a("s_cmp_lg_u32 s58, 0")
        a("s_cbranch_scc1 L_NOST14")
        stamp(a, 14)
        a.label("L_NOST14")
    a("s_cmp_lg_u32 s58, 0")
    a("s_cbranch_scc1 L_RDONE")
    if E5:
        a("s_waitcnt vmcnt(1)")
        a("v_cmp_ne_u32 vcc, 1, v9")
        a("s_cmp_eq_u64 vcc, 0")
        a("s_cselect_b32 s10, 1, 0")
    a("s_mov_b32 s58, 1")
    a("s_branch L_ROUND")
    a.label("L_RDONE")
    stamp(a, 5)
    if EARLY == 2:
        a("s_cmp_eq_u32 s10, 1")
        a("s_cbranch_scc1 L_E2NO")
        a("s_waitcnt vmcnt(1)")
        a("v_cmp_ne_u32 vcc, 1, v9")
        a("s_cmp_lg_u64 vcc, 0")
        a("s_cbranch_scc1 L_E2NO")
        oloads(0, range(EK))
        a("s_mov_b32 s99, 1")
        a("s_waitcnt vmcnt(%d)" % (2 * EK))
        a("s_branch L_E2J")
        a.label("L_E2NO")
        a("s_waitcnt vmcnt(0)")
        a.label("L_E2J")
        signal("1", False)
    else:
        signal("1")
    stamp(a, 6)
    A2 = 16; F2 = 48
    a("v_add_u32 v2, s61, v1"); a("v_add_u32 v2, 0x%x, v2" % WOO)
    for q in range(8): a("ds_write_b128 v2, %s offset:%d" % (vr(PARK + 4 * q, 4), q * 8192))
    a("v_mov_b32 v15, v11")
    a("v_and_b32 v12, 15, v0"); a("v_lshrrev_b32 v13, 4, v0")
    a("v_lshrrev_b32 v17, 2, v12"); a("v_and_b32 v18, 3, v12")
    a("v_lshlrev_b32 v19, 2, v13"); a("v_add_u32 v19, v19, v17")
    a("v_lshrrev_b32 v20, 1, v19"); a("v_and_b32 v20, 3, v20")
    a("v_lshlrev_b32 v19, 7, v19"); a("v_lshlrev_b32 v20, 5, v20"); a("v_lshlrev_b32 v18, 3, v18")
    a("v_add3_u32 v19, v19, v20, v18")
    a("s_lshl_b32 s31, s30, 15")
    a("v_add_u32 v19, s31, v19")
    AE = [4, 5, 6, 7]; AO = [8, 9, 11, 14]
    for nt in range(4):
        a("v_xor_b32 v20, %d, v19" % (nt * 32))
        a("v_add_u32 v%d, %d, v20" % (AE[nt], WOE)); a("v_add_u32 v%d, 0x%x, v20" % (AO[nt], WOO))
    for r in range(32): a("v_mov_b32 v%d, 0" % (A2 + r))
    if WF1ST:
        a("s_cmp_lg_u32 s24, 7")
        a("s_cbranch_scc1 L_NOC63")
        wo_slot(7)
        a.label("L_NOC63")
        wo_dma(1, 0, 8)
    a("s_cmp_eq_u32 s10, 1")
    a("s_cbranch_scc1 L_HAVEALL")
    a("s_cmp_eq_u32 s99, 1")
    a("s_cbranch_scc1 L_HAVEA")
    pollf(a, "s96", "L_PC0")
    oloads(0, range(EK))
    a.label("L_HAVEA")
    oloads(0, range(EK, 4))
    a("s_waitcnt lgkmcnt(0)")
    oloads(0, range(4, 8))
    a.label("L_HAVEALL")
    if not WF1ST:
        a("s_cmp_lg_u32 s24, 7")
        a("s_cbranch_scc1 L_NOC63")
        wo_slot(7)
        a.label("L_NOC63")
    stamp(a, 7)
    a("v_and_b32 v15, 15, v0"); a("v_lshlrev_b32 v15, 2, v15")
    a("s_add_u32 s96, s96, 128")
    lg = Lgkm()
    def wreads(par, s):
        st = s & 1
        ids = {}
        fl = []
        for nt in range(4):
            for hf in range(2):
                def f(nt=nt, hf=hf):
                    a("ds_read_b64_tr_b16 %s, v%d offset:%d" % (vr(F2 + st * 16 + nt * 4 + hf * 2, 2), (AE, AO)[par][nt], s * 4096 + hf * 2048))
                    ids[nt] = lg.issue()
                fl.append(f)
        return fl, ids
    PSL = int(os.environ.get("PSL", "5"))
    for par in range(2):
        ob = (OFA, OFB)[par]
        if par == 1:
            stamp(a, 9)
            if not NOBH:
                a("s_waitcnt vmcnt(16)")
                a("s_barrier")
        rl, ids = wreads(par, 0)
        for f in rl: f()
        for s in range(8):
            st = s & 1
            if s + 1 < 8: nrl, nids = wreads(par, s + 1)
            extra = []
            if par == 0 and s == PB0:
                a("s_cmp_lg_u32 s24, 0")
                a("s_cbranch_scc1 L_NOPB0")
                a("buffer_load_dword v2, v15, s[20:23], s96 offen sc1")
                a.label("L_NOPB0")
            if par == 0:
                if s < BGS:
                    if WF1ST:
                        a("s_waitcnt vmcnt(%d)" % (14 - 2 * s))
                    else:
                        a("s_waitcnt vmcnt(%d)" % (14 - 2 * s))
                if s == BGS:
                    a("s_cmp_lg_u32 s24, 0")
                    a("s_cbranch_scc1 L_NOPOLL")
                    if PB0 >= 0:
                        a("s_waitcnt vmcnt(0)")
                        a("v_cmp_ne_u32 vcc, 1, v2")
                        a("s_cmp_eq_u64 vcc, 0")
                        a("s_cbranch_scc1 L_NOPOLL")
                    pollf(a, "s96", "L_PC1")
                    a.label("L_NOPOLL")
                    if not WF1ST: a("s_waitcnt vmcnt(%d)" % (0 if NOBH else 8))
                    a("s_barrier")
                    stamp(a, 8)
                if s >= BGS:
                    k0 = min(8, (s - BGS) * BLN); k1 = min(8, (s - BGS + 1) * BLN)
                    if WF1ST: a("s_waitcnt vmcnt(%d)" % (14 - 2 * s + 2 * k0))
                    extra = [lambda q=q: oloads(1, [q]) for q in range(k0, k1)]
            else:
                a("s_waitcnt vmcnt(%d)" % (14 - 2 * s))
            n = 0
            for nt in range(4):
                lg.need(a, ids[nt])
                for t in range(2):
                    d = vr(A2 + (t * 4 + nt) * 4, 4)
                    a("v_mfma_f32_16x16x32_bf16 %s, %s, %s, %s" % (d, vr(F2 + st * 16 + nt * 4, 4), vr(ob + s * 8 + t * 4, 4), d))
                    if s + 1 < 8: nrl[n]()
                    if n in ((0, 3) if BLN == 2 else (0, 2, 4, 6)) and extra: extra.pop(0)()
                    n += 1
            assert not extra
            if s + 1 < 8: ids = nids
    stamp(a, 10)
    a("s_lshl_b32 s33, s24, 12"); a("s_add_u32 s33, s33, 0x%x" % RED)
    a("v_add_u32 v2, s33, v1")
    a("v_xor_b32 v3, 0x4000, v2")
    a("v_lshlrev_b32 v12, 11, v12")
    a("v_and_b32 v15, 1, v13"); a("v_lshlrev_b32 v15, 5, v15")
    a("v_lshrrev_b32 v13, 1, v13"); a("v_lshlrev_b32 v13, 4, v13")
    a("v_add3_u32 v12, v12, v15, v13")
    a("s_lshl_b32 s32, s32, 15")
    a("s_lshl_b32 s33, s57, 7"); a("s_add_u32 s32, s32, s33")
    for q in range(4): a("ds_write_b128 v2, %s offset:%d" % (vr(A2 + 16 + q * 4, 4), q * 1024))
    a("s_waitcnt lgkmcnt(0)")
    a("s_barrier")
    for q in range(4): a("ds_read_b128 %s, v3 offset:%d" % (vr(OFB + q * 4, 4), q * 1024))
    for pr in range(2):
        b = F2 + pr * 4
        for h in range(2):
            nt = pr * 2 + h
            s0 = A2 + nt * 4
            a("s_waitcnt lgkmcnt(%d)" % (3 - nt))
            for r in range(0, 4, 2):
                a("v_pk_add_f32 %s, %s, %s" % (vr(s0 + r, 2), vr(s0 + r, 2), vr(OFB + nt * 4 + r, 2)))
            a("v_cvt_pk_bf16_f32 v%d, v%d, v%d" % (b + 2 * h, s0, s0 + 1))
            a("v_cvt_pk_bf16_f32 v%d, v%d, v%d" % (b + 2 * h + 1, s0 + 2, s0 + 3))
        a("v_permlane16_swap_b32 v%d, v%d" % (b, b + 2))
        a("v_permlane16_swap_b32 v%d, v%d" % (b + 1, b + 3))
        a("buffer_store_dwordx4 %s, v12, s[48:51], s32 offen offset:%d" % (vr(b, 4), pr * 64))
    if DIAG:
        a("s_waitcnt vmcnt(0)")
        stamp(a, 11)
        stamp_flush(a)
    a("s_endpgm")
    for p in range(4):
        a.label("L_PKD%d" % p)
        wo_one(1, 2 * p, PARK + 8 * p); wo_one(1, 2 * p + 1, PARK + 8 * p + 4)
        a("s_branch L_SK%d" % p)
    a.label("L_OOL%d" % SIGP)
    a("s_waitcnt vmcnt(%d)" % (2 * min(4, SIGP + 1)))
    a("s_mov_b64 exec, 1")
    a("v_mov_b32 v2, 1"); a("v_mov_b32 v3, 0x%x" % CNT)
    a("ds_add_rtn_u32 v3, v3, v2")
    a("s_waitcnt lgkmcnt(0)")
    a("v_readfirstlane_b32 s33, v3")
    a("s_cmp_lg_u32 s33, 7")
    a("s_cbranch_scc1 L_NOSIG0")
    a("v_mov_b32 v3, 0")
    a("buffer_store_dword v2, v3, s[20:23], s39 offen sc1")
    a.label("L_NOSIG0")
    a("s_mov_b64 exec, -1")
    a("s_add_u32 s39, s39, 128")
    if EARLY == 1: a("buffer_load_dword v9, v11, s[20:23], s96 offen sc1")
    a("s_branch L_OOLR%d" % SIGP)
    if EARLY == 1:
        for p in (6, 7, 8):
            a.label("L_OOL%d" % p)
            if p == 6:
                a("s_waitcnt vmcnt(0)")
                a("v_cmp_ne_u32 vcc, 1, v9")
                a("s_cmp_eq_u64 vcc, 0")
                a("s_cselect_b32 s99, 1, 0")
            a("s_cmp_eq_u32 s99, 0")
            a("s_cbranch_scc1 L_OOLR%d" % p)
            oloads(0, {6: range(0, 3), 7: range(3, 6), 8: range(6, 8)}[p])
            a("s_branch L_OOLR%d" % p)
    if E5:
        for p in range(1, 9):
            a.label("L_E5_%d" % p)
            oloads(0, [p - 1])
            a("s_branch L_E5R_%d" % p)
    for i in range(1, 16):
        a.label("L_CTR%d" % i)
        a("s_nop 3")
        for r in range(4): a("v_mov_b32 v%d, 0" % (CT + r))
        a("s_nop 1")
        a("s_branch L_CT%d" % i)
    a.label("L_END")
    a("s_endpgm")
    a.fix_hazards()
    return a.text()

def main():
    nm = "standalone__sliding_block__prompt_kernel"
    hdr = open("standalone__sliding_block__prompt.s.ref").read().split("; Override")[0]
    out = hdr
    out += "; @launch grid=(256,1,1) block=(512,1,1) lds=163840\n"
    out += '.amdgcn_target "amdgcn-amd-amdhsa--gfx950"\n.text\n'
    out += kernel_header(nm) + build()
    out += '.section .rodata,"a"\n.p2align 6\n' + kernel_desc(nm, 240, 102, 240)
    open(sys.argv[1] if len(sys.argv) > 1 else "standalone__sliding_block__prompt.s", "w").write(out)
main()
```

```python
import sys, os, struct
from asmlib import *

DIAG = int(os.environ.get("DIAG", "0"))
KG_OFF = 0
VG_OFF = 4 << 20
OG_OFF = 8 << 20
FL_OFF = 12 << 20
C2_OFF = FL_OFF + 65536
WS_BYTES = 64 << 20
DIAG_OFF = 32 << 20
SPIN_MAX = 200000
WQR = [int(x) for x in os.environ.get("WQR", "13,13,14,14").split(",")]
WARMB = int(os.environ.get("WARMB", "0"))
PB0 = int(os.environ.get("PB0", "0"))
BLN = int(os.environ.get("BLN", "2"))
NOBH = int(os.environ.get("NOBH", "1"))
PSTEP = int(os.environ.get("PSTEP", "10"))
XPOLL = int(os.environ.get("XPOLL", "1"))
KORD = os.environ.get("KORD", "")
CSEQ = [int(x) for x in os.environ.get("CSEQ", "0,2,1,3,4,6,5,7,8,10,9,11,12,14,13,15").split(",")]
assert sorted(CSEQ) == list(range(16))
NTX = int(os.environ.get("NTX", "0"))
NTW = int(os.environ.get("NTW", "0"))
WOPF2 = int(os.environ.get("WOPF2", "0"))
WF1ST = int(os.environ.get("WF1ST", "0"))
BGS = int(os.environ.get("BGS", "4"))
E5 = int(os.environ.get("E5", "0"))
EK = int(os.environ.get("EK", "2"))
KVP = int(os.environ.get("KVP", "0"))
QBP = int(os.environ.get("QBP", "0"))
BARN = int(os.environ.get("BARN", "2"))
EP = int(os.environ.get("EP", "6"))
RAMP = [int(x) for x in os.environ.get("RAMP", "2,4,6,9").split(",")]
NOATOM = int(os.environ.get("NOATOM", "0"))
ROT2 = int(os.environ.get("ROT2", "7"))
SIGP = int(os.environ.get("SIGP", "2"))
CNT = 65536 - 1024
FORCE_EXACT = int(os.environ.get("FORCE_EXACT", "0"))
FLY0 = int(os.environ.get("FLY0", "6"))
EARLY = int(os.environ.get("EARLY", "2"))
LA3 = int(os.environ.get("LA3", "3"))
LOOPSTAMP = int(os.environ.get("LOOPSTAMP", "0"))
PRIO = int(os.environ.get("PRIO", "1"))
WOPF = int(os.environ.get("WOPF", "99"))
CPF = int(os.environ.get("CPF", "1"))
NM = "standalone__sliding_block__prompt_kernel"

def f32bits(x): return struct.unpack("<I", struct.pack("<f", x))[0]
CSC = (32 ** -0.5) * 1.4426950408889634
NEG = f32bits(-1.0e30)

class Cnt:
    def __init__(self, name, mx): self.n = 0; self.done = 0; self.name = name; self.mx = mx
    def issue(self): self.n += 1; return self.n
    def need(self, a, idn):
        if idn <= self.done: return
        cnt = min(self.n - idn, self.mx)
        a("s_waitcnt %s(%d)" % (self.name, cnt)); self.done = self.n - cnt
    def all(self, a):
        a("s_waitcnt %s(0)" % self.name); self.done = self.n
def Lgkm(): return Cnt("lgkmcnt", 15)
def Vm(): return Cnt("vmcnt", 63)

def vr(b, n): return "v[%d:%d]" % (b, b + n - 1)
def srd(a, d, lo, hi, nbytes):
    a("s_mov_b32 s%d, s%d" % (d, lo)); a("s_mov_b32 s%d, s%d" % (d + 1, hi))
    a("s_mov_b32 s%d, 0x%x" % (d + 2, nbytes)); a("s_mov_b32 s%d, 0x00020000" % (d + 3))

SB = 64
NSLOT = 16
def stamp(a, slot):
    if not DIAG: return
    a("s_memrealtime s[%d:%d]" % (SB + 2 * slot, SB + 2 * slot + 1))
    a("s_waitcnt lgkmcnt(0)")
AMP = int(os.environ.get("AMP", "-1"))
def stamp_flush(a):
    if not DIAG: return
    if AMP >= 0:
        a("s_sub_u32 s62, s%d, s%d" % (SB + 2 * AMP, SB))
        a("s_add_u32 s62, s62, s%d" % (SB + 2 * 11))
        a.label("L_AMP")
        a("s_memrealtime s[60:61]")
        a("s_waitcnt lgkmcnt(0)")
        a("s_sub_u32 s60, s60, s62")
        a("s_cmp_lt_i32 s60, 0")
        a("s_cbranch_scc1 L_AMP")
        return
    t = 62
    a("s_lshl_b32 s%d, s2, 3" % t); a("s_add_u32 s%d, s%d, s24" % (t, t)); a("s_lshl_b32 s%d, s%d, 7" % (t, t))
    a("s_add_u32 s%d, s%d, 0x%x" % (t, t, DIAG_OFF))
    a("v_mov_b32 v4, 0")
    for sl in range(NSLOT):
        a("v_mov_b32 v2, s%d" % (SB + 2 * sl)); a("v_mov_b32 v3, s%d" % (SB + 2 * sl + 1))
        a("buffer_store_dwordx2 v[2:3], v4, s[20:23], s%d offen offset:%d" % (t, sl * 8))
        a("s_nop 1")

def pollf(a, soff, name, va=15, vt=2, sc=35):
    a("s_mov_b32 s%d, %d" % (sc, SPIN_MAX))
    a.label(name)
    a("buffer_load_dword v%d, v%d, s[20:23], %s offen sc1" % (vt, va, soff))
    a("s_waitcnt vmcnt(0)")
    a("v_cmp_ne_u32 vcc, 1, v%d" % vt)
    a("s_cmp_eq_u64 vcc, 0")
    a("s_cbranch_scc1 %s_ok" % name)
    a("s_sub_u32 s%d, s%d, 1" % (sc, sc))
    a("s_cmp_lg_u32 s%d, 0" % sc)
    a("s_cbranch_scc1 %s" % name)
    a.label(name + "_ok")

def poll(a, soff, cmp_op, val, name, srdn=20, vt=2, vz=3, st=34, sc=35):
    a("v_mov_b32 v%d, 0" % vz)
    a("s_mov_b32 s%d, %d" % (sc, SPIN_MAX))
    a.label(name)
    a("buffer_load_dword v%d, v%d, s[%d:%d], %s offen sc1" % (vt, vz, srdn, srdn + 3, soff))
    a("s_waitcnt vmcnt(0)")
    a("v_readfirstlane_b32 s%d, v%d" % (st, vt))
    a("s_cmp_%s_u32 s%d, %s" % (cmp_op, st, val))
    a("s_cbranch_scc1 %s_ok" % name)
    a("s_sub_u32 s%d, s%d, 1" % (sc, sc))
    a("s_cmp_lg_u32 s%d, 0" % sc)
    a("s_cbranch_scc1 %s" % name)
    a.label(name + "_ok")

WR = 0
XR = 65536
R4 = 131072
KVH = [65536, 114688]
QL = 0
WOE = 0
WOO = 65536
RED = 131072
QF = 16

def build():
    a = Asm()
    def wo_one(par, p):
        a("s_add_u32 m0, s61, %d" % ((WOE, WOO)[par] + p * 8192))
        a("s_add_u32 s33, s100, %d" % (2 * p)); a("s_and_b32 s33, s33, 7"); a("s_lshl_b32 s33, s33, 17")
        a("s_add_u32 s33, s33, s60")
        off = ((8 if p >= 4 else 0) * 64 + 32 * par) * 2048
        if off: a("s_add_u32 s33, s33, 0x%x" % off)
        a("buffer_load_dwordx4 v10, s[44:47], s33 offen lds")
    def wo_dma(par, first, count):
        for i in range(count): wo_one(par, first // 2 + i)
    ML = 24; MH = 28; ONE = 32; O = 36; L = 44; CC = 48; MC = 50; MX = 52; KF = 56; VF = 72; S = 96
    CT = 48
    KR = 120
    def att_setup(tag):
        a("s_and_b32 s56, s27, 3"); a("s_lshl_b32 s56, s56, 2"); a("s_and_b32 s29, s28, 3"); a("s_add_u32 s56, s56, s29")
        a("s_lshr_b32 s57, s27, 2"); a("s_lshl_b32 s57, s57, 3"); a("s_lshr_b32 s29, s28, 2"); a("s_add_u32 s57, s57, s29")
        a("v_lshrrev_b32 v4, 3, v0"); a("v_and_b32 v5, 7, v0"); a("v_lshrrev_b32 v6, 4, v0")
        a("v_lshlrev_b32 v6, 1, v6"); a("v_xor_b32 v6, v6, v5"); a("v_lshlrev_b32 v6, 4, v6")
        a("v_lshlrev_b32 v10, 11, v4"); a("v_add_u32 v10, v10, v6")
        a("s_lshl_b32 s30, s57, 7")
        a("v_add_u32 v10, s30, v10")
        a("s_lshl_b32 s61, s24, 10")
        a("s_and_b32 s60, s24, 3"); a("s_lshl_b32 s60, s60, 14")
        a("s_and_b32 s101, s57, %d" % ROT2)
        a("s_lshr_b32 s100, s24, 2"); a("s_add_u32 s100, s100, s101")
        a("s_waitcnt lgkmcnt(0)")
        a("v_and_b32 v2, 15, v0")
        a("v_lshrrev_b32 v3, 4, v0"); a("v_lshlrev_b32 v3, 2, v3")
        a("v_sub_u32 v4, v2, v3")
        a("v_mov_b32 v5, 0x%x" % NEG)
        for r in range(4):
            a("v_cmp_le_i32 vcc, %d, v4" % r)
            a("v_cndmask_b32_e64 v%d, v5, 0, vcc" % (MH + r))
            a("v_cndmask_b32_e64 v%d, 0, v5, vcc" % (ML + r))
        for r in range(4): a("v_mov_b32 v%d, 0x3f803f80" % (ONE + r))

        a("s_and_b32 s31, s24, 3"); a("s_lshl_b32 s31, s31, 1"); a("s_lshr_b32 s32, s24, 2"); a("s_add_u32 s31, s31, s32")
        a("s_lshl_b32 s36, s31, 10")
        a("v_add_u32 v6, s36, v1")
        a("v_lshlrev_b32 v7, 3, v0"); a("v_add_u32 v7, s36, v7")
        a("v_add_u32 v6, 0x%x, v6" % KVH[0]); a("v_add_u32 v7, 0x%x, v7" % (KVH[0] + 24576))
        a("v_add_u32 v8, s61, v1")
        a("s_lshl_b32 s37, s25, 3"); a("s_add_u32 s37, s37, s31"); a("s_lshl_b32 s37, s37, 5")
        a("s_lshl_b32 s38, s26, 1"); a("s_add_u32 s37, s37, s38"); a("s_lshl_b32 s37, s37, 10")
        a("s_add_u32 s37, s37, 0x%x" % OG_OFF)
        a("s_lshl_b32 s38, s25, 3"); a("s_add_u32 s38, s38, s31")
        a("s_sub_i32 s38, 16, s38"); a("s_max_i32 s38, s38, 0")
        a("s_lshl_b32 s39, s25, 8"); a("s_lshl_b32 s33, s26, 2"); a("s_add_u32 s39, s39, s33"); a("s_add_u32 s39, s39, 0x%x" % C2_OFF)
        a("s_lshr_b32 s30, s24, 2")
        a("s_lshl_b32 s96, s56, 8"); a("s_lshl_b32 s33, s30, 5"); a("s_add_u32 s96, s96, s33"); a("s_add_u32 s96, s96, 0x%x" % C2_OFF)
        a("v_and_b32 v11, 7, v0"); a("v_lshlrev_b32 v11, 2, v11")
        a("s_and_b32 s33, s24, 3"); a("s_lshl_b32 s33, s33, 1")
        a("s_lshl_b32 s32, s56, 3"); a("s_add_u32 s32, s32, s33")
        a("s_lshl_b32 s97, s32, 15"); a("s_lshl_b32 s33, s30, 14"); a("s_add_u32 s97, s97, s33"); a("s_add_u32 s97, s97, 0x%x" % OG_OFF)
        a("s_lshl_b32 s33, s30, 15")
        a("s_add_u32 s98, s97, 32768"); a("s_sub_u32 s98, s98, s33")
        a("s_add_u32 s97, s97, s33")
        a("s_add_u32 s32, s32, s30")
        a("s_mov_b32 s99, 0")
        a("s_mov_b32 s10, 0")
        a("s_mov_b32 s58, 0")

        a("s_cmp_eq_u32 s38, 0")
        a("s_cbranch_scc1 L_MLOK"+tag+"")
        for r in range(4): a("v_mov_b32 v%d, v5" % (ML + r))
        a.label("L_MLOK"+tag+"")
        a("s_mov_b32 s34, 0x%x" % f32bits(2.0 ** -24)); a("s_mov_b32 s35, 0x%x" % f32bits(2.0 ** 40))
        a("v_mov_b32 v54, s34"); a("v_mov_b32 v55, s35")

    a("s_cmp_ge_u32 s2, 256")
    a("s_cbranch_scc1 L_END")
    a("s_load_dwordx8 s[4:11], s[0:1], 0")
    a("s_load_dwordx4 s[40:43], s[0:1], 32")
    if DIAG:
        for sl in range(1, NSLOT): a("s_mov_b64 s[%d:%d], 0" % (SB + 2 * sl, SB + 2 * sl + 1))
        a("s_memrealtime s[%d:%d]" % (SB, SB + 1))
    a("v_lshrrev_b32 v1, 6, v0")
    a("v_readfirstlane_b32 s24, v1")
    a("v_and_b32 v0, 63, v0")
    a("s_and_b32 s27, s2, 7")
    a("s_lshr_b32 s28, s2, 3")
    a("s_and_b32 s25, s27, 1"); a("s_lshl_b32 s25, s25, 3"); a("s_and_b32 s29, s28, 7"); a("s_add_u32 s25, s25, s29")
    a("s_lshr_b32 s26, s27, 1"); a("s_lshl_b32 s26, s26, 2"); a("s_lshr_b32 s29, s28, 3"); a("s_add_u32 s26, s26, s29")
    a("v_lshlrev_b32 v1, 4, v0")
    a("s_cmp_lt_u32 s24, 4")
    a("s_cbranch_scc1 L_KV")
    a("s_sub_u32 s30, s24, 4")
    a("v_lshrrev_b32 v4, 3, v0")
    a("v_and_b32 v5, 7, v0")
    a("v_lshrrev_b32 v6, 4, v0")
    a("s_and_b32 s31, s30, 1")
    a("s_lshl_b32 s32, s31, 2")
    a("v_or_b32 v7, s32, v6")
    a("v_xor_b32 v7, v7, v5")
    a("v_lshlrev_b32 v7, 4, v7")
    a("v_lshlrev_b32 v2, 11, v4")
    a("v_add_u32 v2, v2, v7")
    a("s_lshl_b32 s32, s25, 7"); a("s_lshl_b32 s33, s30, 3"); a("s_add_u32 s32, s32, s33"); a("s_lshl_b32 s32, s32, 11")
    a("v_add_u32 v2, s32, v2")
    a("v_and_b32 v7, 1, v6")
    a("s_lshl_b32 s32, s31, 1")
    a("v_or_b32 v7, s32, v7")
    a("v_lshlrev_b32 v7, 1, v7")
    a("v_xor_b32 v7, v7, v5")
    a("v_lshlrev_b32 v7, 4, v7")
    a("v_mul_u32_u24 v3, 0x1800, v4")
    a("v_add_u32 v3, v3, v7")
    a("s_mul_i32 s32, s30, %d" % (8 * 6144)); a("s_lshl_b32 s33, s26, 7"); a("s_add_u32 s32, s32, s33")
    a("v_add_u32 v3, s32, v3")
    a("s_lshl_b32 s34, s30, 10")
    if KORD == "xor":
        a("s_and_b32 s59, s28, 7"); a("s_lshl_b32 s59, s59, 1"); a("s_and_b32 s60, s27, 1"); a("s_or_b32 s59, s59, s60"); a("s_xor_b32 s59, s59, s26")
    elif int(os.environ.get("ROTMJ", "1")):
        if os.environ.get("ROTSUB"): a("s_sub_u32 s59, s25, s26"); a("s_add_u32 s59, s59, 16")
        else: a("s_add_u32 s59, s25, s26")
        if os.environ.get("RSH"): a("s_lshl_b32 s59, s59, %s" % os.environ["RSH"])
    else:
        a("s_lshr_b32 s59, s28, 3"); a("s_lshl_b32 s59, s59, 2"); a("s_and_b32 s60, s28, 7"); a("s_lshl_b32 s60, s60, 1")
        a("s_add_u32 s59, s59, s60"); a("s_lshr_b32 s60, s27, 1"); a("s_add_u32 s59, s59, s60"); a("s_and_b32 s60, s27, 1"); a("s_add_u32 s59, s59, s60")
    a("s_waitcnt lgkmcnt(0)")
    srd(a, 12, 4, 5, 2048 * 1024 * 2)
    srd(a, 16, 6, 7, 1024 * 3072 * 2)
    vm = Vm()
    landed = {}
    def kbregs(b):
        if KORD == "xor": a("s_xor_b32 s35, s59, %d" % CSEQ[b])
        elif KORD == "zig":
            off = ((b + 1) // 2 if b & 1 else -(b // 2)) & 15
            a("s_add_u32 s35, s59, %d" % off); a("s_and_b32 s35, s35, 15")
        else:
            a("s_add_u32 s35, s59, %d" % b); a("s_and_b32 s35, s35, 15")
        a("s_lshl_b32 s36, s35, 7"); a("s_mul_i32 s37, s35, 393216")
    cur = {"kb": None}
    def kbr(b):
        if cur["kb"] != b: kbregs(b); cur["kb"] = b
    def stage_ops(b):
        sl = b & 3
        ops = []
        for i in range(4):
            def f(i=i):
                kbr(b)
                a("s_add_u32 m0, s34, %d" % (XR + sl * 16384 + i * 4096))
                a("s_add_u32 s38, s36, %d" % (i * 65536))
                a("buffer_load_dwordx4 v2, s[12:15], s38 offen %slds" % ("nt " if b < NTX else "")); landed[("S", b)] = vm.issue()
            ops.append(f)
        for s in range(2):
            for gg in range(2):
                def f(s=s, gg=gg):
                    kbr(b)
                    a("s_add_u32 m0, s34, %d" % (WR + sl * 16384 + s * 8192 + gg * 4096))
                    a("s_add_u32 s38, s37, %d" % (gg * 196608 + (s + 1) * 2048))
                    a("buffer_load_dwordx4 v3, s[16:19], s38 offen %slds" % ("nt " if b < NTW else "")); landed[("S", b)] = vm.issue()
                ops.append(f)
        return ops
    def issue_wq(b, ldsoff, regs=True):
        kbr(b)
        for gg in range(2):
            a("s_add_u32 m0, s34, %d" % (ldsoff + gg * 4096))
            if gg: a("s_add_u32 s38, s37, 196608")
            a("buffer_load_dwordx4 v3, s[16:19], %s offen lds" % ("s37", "s38")[gg]); landed[("Q", b)] = vm.issue()
    stamp(a, 12)
    fly = list(range(FLY0, FLY0 + 4))
    cap = [b for b in range(12) if b not in fly]
    queue = []
    for b in range(16):
        queue += [(b, f) for f in stage_ops(b)]
        if b in fly: queue.append((b, lambda b=b: issue_wq(b, R4 + (b - FLY0) * 8192)))
    def issue_upto(full, extra):
        while queue and queue[0][0] <= full: queue.pop(0)[1]()
        done = 8 + (1 if full + 1 in fly else 0) - sum(1 for q in queue if q[0] == full + 1)
        while queue and queue[0][0] == full + 1 and done < extra:
            queue.pop(0)[1](); done += 1
    issue_upto(1, 0)
    srd(a, 20, 42, 43, WS_BYTES)
    srd(a, 44, 8, 9, 1024 * 1024 * 2)
    srd(a, 48, 10, 11, 2048 * 1024 * 2)
    srd(a, 52, 40, 41, 256)
    CAP = 64; QA = 192; WF = 32; XF = 224
    vX = [8, 9]; vW = [10, 11, 12, 13]
    a("v_and_b32 v14, 15, v0"); a("v_lshrrev_b32 v15, 4, v0")
    a("v_lshrrev_b32 v16, 1, v14"); a("v_xor_b32 v16, v16, v15")
    a("s_lshl_b32 s32, s30, 12")
    a("v_lshlrev_b32 v17, 7, v14"); a("v_add_u32 v17, s32, v17"); a("v_add_u32 v17, 0x%x, v17" % XR)
    for kq in range(2):
        a("v_xor_b32 v18, %d, v16" % (kq << 2)); a("v_lshlrev_b32 v18, 4, v18"); a("v_add_u32 v%d, v17, v18" % vX[kq])
    a("v_lshrrev_b32 v17, 2, v14"); a("v_and_b32 v18, 3, v14")
    a("v_lshlrev_b32 v19, 3, v15"); a("v_add_u32 v19, v19, v17"); a("v_lshlrev_b32 v19, 7, v19")
    a("v_lshrrev_b32 v20, 1, v17"); a("v_and_b32 v21, 1, v15"); a("v_lshlrev_b32 v21, 1, v21"); a("v_or_b32 v20, v20, v21")
    a("v_lshlrev_b32 v20, 5, v20"); a("v_lshlrev_b32 v18, 3, v18")
    a("v_add3_u32 v19, v19, v20, v18")
    for c in range(4): a("v_xor_b32 v%d, %d, v19" % (vW[c], c * 32))
    vWR = [24, 25, 26, 27]
    for c in range(4): a("v_add_u32 v%d, 0x%x, v%d" % (vWR[c], R4, vW[c]))
    for r in range(32): a("v_mov_b32 v%d, 0" % (QA + r))
    lg = Lgkm()
    def qsteps(blocks):
        steps = []
        for (xs, wv, wo) in blocks:
            for kq in range(2): steps.append((xs, wv, wo, kq))
        return steps
    state = {"st": 0}
    def q_reads(step, st):
        xs, wv, wo, kq = step
        ids = {}; fl = []
        if xs[0] == "lds":
            for t in range(2):
                def f(t=t):
                    a("ds_read_b128 %s, v%d offset:%d" % (vr(XF + st * 8 + t * 4, 4), vX[kq], xs[1] * 16384 + t * 2048)); ids["X"] = lg.issue()
                fl.append(f)
        for c in range(4):
            for hf in range(2):
                def f(c=c, hf=hf):
                    a("ds_read_b64_tr_b16 %s, v%d offset:%d" % (vr(WF + st * 16 + c * 4 + hf * 2, 2), wv[c], wo + kq * 4096 + hf * 512)); ids[c] = lg.issue()
                fl.append(f)
        return fl, ids
    def q_run(steps, hooks=None):
        hooks = hooks or {}
        st = 0
        if 0 in hooks: hooks[0]()
        rl, ids = q_reads(steps[0], st)
        for f in rl: f()
        for n, step in enumerate(steps):
            xs, wv, wo, kq = step
            nxt = n + 1 < len(steps)
            nrl = []
            k = 0
            for c in range(4):
                for t in range(2):
                    lg.need(a, ids[c])
                    if xs[0] == "lds": xr = XF + st * 8 + t * 4
                    else: xr = xs[1] + kq * 8 + t * 4
                    d = vr(QA + (t * 4 + c) * 4, 4)
                    a("v_mfma_f32_16x16x32_bf16 %s, %s, %s, %s" % (d, vr(WF + st * 16 + c * 4, 4), vr(xr, 4), d))
                    if k == 0 and nxt:
                        if n + 1 in hooks: hooks[n + 1]()
                        nrl, nids = q_reads(steps[n + 1], st ^ 1)
                    take = 2 if len(nrl) > (7 - k) else 1
                    for _ in range(take):
                        if nrl: nrl.pop(0)()
                    k += 1
            if nxt:
                while nrl: nrl.pop(0)()
                ids = nids; st ^= 1
    def capture(b):
        base = CAP + cap.index(b) * 16
        for kq in range(2):
            for t in range(2):
                a("ds_read_b128 %s, v%d offset:%d" % (vr(base + kq * 8 + t * 4, 4), vX[kq], (b & 3) * 16384 + t * 2048)); lg.issue()
    def wqpos(q): return WR + (q & 3) * 16384 + (q >> 2) * 8192
    def need_stage(b):
        vm.need(a, landed[("Q", b)] if b in fly else landed[("S", b)])
    need_stage(0)
    stamp(a, 1)
    a("s_barrier")
    for b in range(16):
        issue_upto(b + 2, RAMP[min(b, len(RAMP) - 1)])
        for x in range(4):
            if b == max(WQR[x], FLY0 + x + 1): issue_wq(12 + x, R4 + x * 8192)
        if b >= 13:
            issue_wq(cap[b - 13], wqpos(b - 13))
        if b == WOPF:
            a("v_and_b32 v28, 15, v0"); a("v_lshlrev_b32 v28, 7, v28")
            a("s_lshl_b32 s38, s2, 13"); a("s_lshl_b32 s29, s30, 11"); a("s_add_u32 s38, s38, s29")
            a("buffer_load_dword v29, v28, s[44:47], s38 offen"); vm.issue()
        if b in fly:
            q_run(qsteps([(("lds", b & 3), vWR, (b - FLY0) * 8192)]))
            lg.all(a)
        elif b < 12:
            capture(b)
            lg.all(a)
        if b == 12:
            a("s_load_dwordx4 s[4:7], s[40:41], 0")
        if b == 15:
            a("s_waitcnt lgkmcnt(0)")
            a("s_and_b64 s[4:5], s[4:5], s[6:7]"); a("s_and_b32 s4, s4, s5")
            a("s_cmp_eq_u32 s4, 0x01010101")
            a("s_cbranch_scc1 L_INITOK")
            a("v_and_b32 v28, 3, v0"); a("v_lshlrev_b32 v28, 2, v28")
            a("s_mov_b32 s35, %d" % SPIN_MAX)
            a("s_mov_b32 s29, 0x01010101")
            a.label("L_INITCHK")
            a("buffer_load_dword v29, v28, s[52:55], 0 offen sc1")
            a("s_waitcnt vmcnt(0)")
            a("v_cmp_ne_u32 vcc, s29, v29")
            a("s_cmp_eq_u64 vcc, 0")
            a("s_cbranch_scc1 L_INITOK")
            a("s_sub_u32 s35, s35, 1"); a("s_cmp_lg_u32 s35, 0")
            a("s_cbranch_scc1 L_INITCHK")
            a.label("L_INITOK")
        if b + 1 < 16: need_stage(b + 1)
        a("s_barrier")
    issue_wq(cap[3], wqpos(3))
    vm.all(a)
    a("s_barrier")
    stamp(a, 2)
    for q in range(4, 8): issue_wq(cap[q], wqpos(q))
    def wopf2():
        a("v_lshrrev_b32 v28, 3, v0"); a("v_lshlrev_b32 v28, 11, v28"); a("v_and_b32 v29, 7, v0"); a("v_lshlrev_b32 v29, 7, v29"); a("v_add_u32 v28, v28, v29")
        a("s_lshl_b32 s38, s28, 5"); a("s_lshl_b32 s29, s30, 3"); a("s_add_u32 s38, s38, s29"); a("s_lshl_b32 s38, s38, 11")
        a("s_lshr_b32 s29, s27, 2"); a("s_lshl_b32 s29, s29, 10"); a("s_add_u32 s38, s38, s29")
        a("buffer_load_dword v30, v28, s[44:47], s38 offen"); vm.issue()
    if WOPF2 == 16: wopf2()
    if QBP: a("s_setprio %d" % QBP)
    blocks = [(("lds", s), vWR, s * 8192) for s in range(4)] + [(("reg", CAP + q * 16), vW, wqpos(q)) for q in range(8)]
    def hookP():
        lg.all(a); stamp(a, 13); vm.need(a, landed[("Q", cap[7])]); a("s_barrier"); stamp(a, 15)
        if WOPF2 == 17: wopf2()
    q_run(qsteps(blocks), {PSTEP: hookP})
    if QBP: a("s_setprio 0")
    stamp(a, 3)
    a("s_lshl_b32 s32, s30, 10")
    a("v_add_u32 v14, s32, v1")
    if WOPF2: a("s_waitcnt vmcnt(0)")
    a("v_mov_b32 v28, 0x%x" % f32bits(CSC)); a("v_mov_b32 v29, 0x%x" % f32bits(CSC))
    a("s_nop 2")
    for r in range(0, 32, 2):
        a("v_pk_mul_f32 %s, %s, v[28:29]" % (vr(QA + r, 2), vr(QA + r, 2)))
    for h in range(2):
        for t in range(2):
            dst = (WF + h * 4) if t == 0 else (QF + h * 4)
            for nt in range(2):
                s0 = QA + (t * 4 + 2 * h + nt) * 4
                a("v_cvt_pk_bf16_f32 v%d, v%d, v%d" % (dst + nt * 2, s0, s0 + 1))
                a("v_cvt_pk_bf16_f32 v%d, v%d, v%d" % (dst + nt * 2 + 1, s0 + 2, s0 + 3))
        a("ds_write_b128 v14, %s offset:%d" % (vr(WF + h * 4, 4), QL + h * 4096))
    att_setup("q")
    a("s_branch L_ATT")
    a.label("L_KV")
    ACC = 64; FR = 128; PK = 192
    vXb = [4, 5]; vWb = [6, 7]; vX = [8, 9]; vW2 = [10, 11]
    def fX(st, t): return FR + st * 32 + t * 4
    def fW(st, c): return FR + st * 32 + 16 + c * 4
    def acc(t, c): return ACC + (t * 4 + c) * 4
    a("s_lshr_b32 s30, s24, 1")
    a("s_and_b32 s31, s24, 1")
    a("s_waitcnt lgkmcnt(0)")
    srd(a, 20, 42, 43, WS_BYTES)
    srd(a, 44, 8, 9, 1024 * 1024 * 2)
    srd(a, 48, 10, 11, 2048 * 1024 * 2)
    srd(a, 52, 40, 41, 256)
    if CPF:
        a("s_getpc_b64 s[96:97]")
        a.label("L_PC")
        a("s_sub_u32 s96, s96, L_PC-%s" % NM)
        a("s_subb_u32 s97, s97, 0")
        a("v_lshlrev_b32 v12, 7, v0")
        a("s_lshl_b32 s32, s24, 13")
        a("v_add_u32 v12, s32, v12")
        a("v_min_u32 v12, L_END-%s, v12" % NM)
        a("global_load_dword v30, v12, s[96:97]")
    a("s_or_b32 s32, s24, s26")
    a("s_cmp_lg_u32 s32, 0")
    a("s_cbranch_scc1 L_NOINIT")
    for r in range(4): a("v_mov_b32 v%d, 0" % (12 + r))
    a("v_and_b32 v16, 15, v0"); a("v_lshlrev_b32 v17, 7, v16")
    a("v_lshlrev_b32 v16, 4, v16")
    a("s_lshl_b32 s32, s25, 11"); a("s_add_u32 s32, s32, 0x%x" % FL_OFF)
    a("s_lshl_b32 s33, s25, 8"); a("s_add_u32 s33, s33, 0x%x" % C2_OFF)
    a("s_mov_b64 exec, 0xffff")
    a("buffer_store_dwordx4 v[12:15], v17, s[20:23], s32 offen sc1")
    a("buffer_store_dwordx4 v[12:15], v16, s[20:23], s33 offen sc1")
    a("s_mov_b64 exec, 1")
    a("v_mov_b32 v18, 1")
    a("s_waitcnt vmcnt(0)")
    a("buffer_store_byte v18, v12, s[52:55], s25 offen sc1")
    a("s_mov_b64 exec, -1")
    a.label("L_NOINIT")
    a("v_and_b32 v12, 15, v0"); a("v_lshrrev_b32 v13, 4, v0")
    a("v_lshrrev_b32 v14, 1, v12"); a("v_xor_b32 v14, v14, v13")
    a("s_lshl_b32 s32, s30, 13")
    a("v_lshlrev_b32 v15, 7, v12"); a("v_add_u32 v15, s32, v15"); a("v_add_u32 v15, 0x%x, v15" % XR)
    for kq in range(2):
        a("v_xor_b32 v16, %d, v14" % (kq << 2)); a("v_lshlrev_b32 v16, 4, v16"); a("v_add_u32 v%d, v15, v16" % vXb[kq])
    a("v_lshrrev_b32 v17, 2, v12"); a("v_and_b32 v18, 3, v12")
    a("v_lshlrev_b32 v20, 3, v13"); a("v_add_u32 v20, v20, v17"); a("v_lshlrev_b32 v20, 7, v20")
    a("v_lshrrev_b32 v21, 1, v17"); a("v_and_b32 v22, 1, v13"); a("v_lshlrev_b32 v22, 1, v22"); a("v_or_b32 v21, v21, v22")
    a("s_lshl_b32 s33, s31, 1")
    a("v_xor_b32 v21, s33, v21"); a("v_lshlrev_b32 v21, 5, v21"); a("v_lshlrev_b32 v22, 3, v18")
    a("v_add3_u32 v%d, v21, v22, v20" % vWb[0])
    a("v_xor_b32 v%d, 32, v%d" % (vWb[1], vWb[0]))
    for q in range(2):
        a("v_mov_b32 v%d, v%d" % (vX[q], vXb[q])); a("v_mov_b32 v%d, v%d" % (vW2[q], vWb[q]))
    for r in range(64): a("v_mov_b32 v%d, 0" % (ACC + r))
    a("s_mov_b32 s34, 16384")
    a("s_mov_b32 s35, 0")
    if LOOPSTAMP:
        a("s_lshl_b32 s61, s2, 3"); a("s_add_u32 s61, s61, s24"); a("s_lshl_b32 s61, s61, 7"); a("s_add_u32 s61, s61, 0x%x" % (DIAG_OFF + 256 * 8 * 128))
    lg = Lgkm()
    def reads(kq, st):
        ids = {}
        def rX(t):
            def f():
                a("ds_read_b128 %s, v%d offset:%d" % (vr(fX(st, t), 4), vX[kq], t * 2048)); ids["X%d" % t] = lg.issue()
            return f
        def rW(c, hf):
            def f():
                a("ds_read_b64_tr_b16 %s, v%d offset:%d" % (vr(fW(st, c) + 2 * hf, 2), vW2[c & 1], (c >> 1) * 8192 + kq * 4096 + hf * 512)); ids["W%d" % c] = lg.issue()
            return f
        l = [rX(0), rW(0, 0), rW(0, 1), rX(1), rX(2), rX(3)]
        for c in range(1, 4): l += [rW(c, 0), rW(c, 1)]
        return l, ids
    def mfma(t, c, st, ids):
        lg.need(a, max(ids["X%d" % t], ids["W%d" % c]))
        d = vr(acc(t, c), 4)
        if c < 2: a("v_mfma_f32_16x16x32_bf16 %s, %s, %s, %s" % (d, vr(fW(st, c), 4), vr(fX(st, t), 4), d))
        else:     a("v_mfma_f32_16x16x32_bf16 %s, %s, %s, %s" % (d, vr(fX(st, t), 4), vr(fW(st, c), 4), d))
    order = [(t, c) for c in range(4) for t in range(4)]
    if KVP: a("s_setprio %d" % KVP)
    a("s_barrier")
    stamp(a, 1)
    rl, ids = reads(0, 0)
    for f in rl: f()
    a.label("L_G1LOOP")
    for kq in range(2):
        st = kq
        nrl, nids = reads(kq ^ 1, st ^ 1)
        start = 0 if kq == 0 else BARN + 1
        for n, (t, c) in enumerate(order):
            mfma(t, c, st, ids)
            if kq == 1 and n < 2:
                a("v_add_u32 v%d, s34, v%d" % (vX[n], vXb[n])); a("v_add_u32 v%d, s34, v%d" % (vW2[n], vWb[n]))
            if kq == 1 and n == BARN:
                lg.all(a); a("s_barrier")
                if LOOPSTAMP:
                    a("%s s[98:99]" % ("s_memrealtime" if LOOPSTAMP == 1 else "s_memtime"))
                    a("s_waitcnt lgkmcnt(0)")
                    a("v_mov_b32 v24, s98"); a("v_mov_b32 v25, s99"); a("v_mov_b32 v26, 0")
                    a("buffer_store_dwordx2 v[24:25], v26, s[20:23], s61 offen")
                    a("s_add_u32 s61, s61, 8")
            if kq == 0 or BARN <= 3:
                if start <= n < start + 12: nrl[n - start]()
            elif n >= start:
                rem = 16 - start
                k0 = (n - start) * 12 // rem; k1 = (n - start + 1) * 12 // rem
                for q in range(k0, k1): nrl[q]()
            if kq == 0 and n == 13:
                a("s_add_u32 s35, s35, 1")
            if kq == 1 and n == 14:
                a("s_add_u32 s34, s34, 16384")
                a("s_and_b32 s34, s34, 0xffff")
                a("s_cmp_lt_u32 s35, 12")
        ids = nids
    assert lg.n - lg.done == 12, (lg.n, lg.done)
    a("s_cbranch_scc1 L_G1LOOP")
    a("s_lshl_b32 s36, s26, 1"); a("s_add_u32 s36, s36, s31"); a("s_lshl_b32 s36, s36, 7")
    a("s_lshl_b32 s37, s25, 3"); a("s_lshl_b32 s38, s30, 2"); a("s_add_u32 s37, s37, s38")
    a("s_add_u32 s36, s36, s37"); a("s_lshl_b32 s36, s36, 10")
    a("s_add_u32 s37, s36, 0x%x" % VG_OFF)
    def pk(t, s): return PK + t * 8 + s * 4
    def cvt_store(s, t):
        for nt in range(2):
            c = s * 2 + nt
            for hf in range(2):
                a("v_cvt_pk_bf16_f32 v%d, v%d, v%d" % (pk(t, s) + nt * 2 + hf, acc(t, c) + 2 * hf, acc(t, c) + 2 * hf + 1))
        a("buffer_store_dwordx4 %s, v1, s[20:23], %s offen offset:%d sc1" % (vr(pk(t, s), 4), ("s36", "s37")[s], t * 1024))
    def treads(step, st):
        sl, kq, cp = step
        ids = {}
        def rX(t):
            def f():
                a("ds_read_b128 %s, v%d offset:%d" % (vr(fX(st, t), 4), vXb[kq], sl * 16384 + t * 2048)); ids["X%d" % t] = lg.issue()
            return f
        def rW(c, hf):
            def f():
                a("ds_read_b64_tr_b16 %s, v%d offset:%d" % (vr(fW(st, c) + 2 * hf, 2), vWb[c & 1], sl * 16384 + (c >> 1) * 8192 + kq * 4096 + hf * 512)); ids["W%d" % c] = lg.issue()
            return f
        c0 = 2 * cp
        return [rX(0), rW(c0, 0), rW(c0, 1), rX(1), rX(2), rX(3), rW(c0 + 1, 0), rW(c0 + 1, 1)], ids
    steps = [(sl, kq, 0) for sl in range(4) for kq in range(2)] + [(sl, kq, 1) for sl in range(4) for kq in range(2)][1:]
    st = 0
    for n, step in enumerate(steps):
        sl, kq, cp = step
        nxt = n + 1 < len(steps)
        cs = [0, 1, 2, 3] if n == 0 else [2 * cp, 2 * cp + 1]
        nrl = []
        k = 0
        for c in cs:
            for t in range(4):
                mfma(t, c, st, ids)
                if k == 0:
                    if (nxt and n + 1 <= 8 and (n + 1) % 2 == 0) or not nxt:
                        lg.all(a); a("s_barrier")
                    if nxt: nrl, nids = treads(steps[n + 1], st ^ 1)
                take = 2 if len(nrl) > (len(cs) * 4 - 1 - k) else 1
                for _ in range(take):
                    if nrl: nrl.pop(0)()
                if n in (9, 10) and k in (1, 5): cvt_store(0, (n - 9) * 2 + (k >> 2))
                k += 1
        if nxt:
            while nrl: nrl.pop(0)()
            ids = nids; st ^= 1
    stamp(a, 2)
    a("s_lshl_b32 s32, s25, 4"); a("s_add_u32 s32, s32, s26"); a("s_lshl_b32 s32, s32, 7"); a("s_add_u32 s32, s32, 0x%x" % FL_OFF)
    a("s_lshl_b32 s33, s24, 2"); a("s_add_u32 s32, s32, s33")
    a("v_and_b32 v17, 1, v0"); a("v_add_u32 v17, 1, v17")
    a("v_cmp_ge_u32 s[60:61], s25, v17")
    a("v_lshlrev_b32 v17, 11, v17")
    a("v_cndmask_b32_e64 v17, 0, v17, s[60:61]")
    a("v_sub_u32 v17, s32, v17")
    a("buffer_load_dword v20, v17, s[20:23], 0 offen sc1")
    for t in range(4): cvt_store(1, t)
    a("s_mul_i32 s38, s31, %d" % (KVH[1] - KVH[0]))
    a("s_add_u32 s38, s38, %d" % KVH[0])
    a("s_lshl_b32 s39, s30, 12")
    a("s_add_u32 s38, s38, s39")
    a("v_add_u32 v12, s38, v1")
    a("v_lshlrev_b32 v13, 3, v0"); a("v_add_u32 v13, s38, v13")
    a("v_mov_b32 v15, 1"); a("v_mov_b32 v16, 0")
    a("s_barrier")
    for t in range(4):
        a("ds_write_b128 v12, %s offset:%d" % (vr(pk(t, 0), 4), (16 + t) * 1024))
        a("ds_write_b64 v13, %s offset:%d" % (vr(pk(t, 1), 2), 24576 + (16 + t) * 1024))
        a("ds_write_b64 v13, %s offset:%d" % (vr(pk(t, 1) + 2, 2), 24576 + (16 + t) * 1024 + 512))
    a("s_waitcnt vmcnt(0)")
    a("s_mov_b64 exec, 1")
    a("buffer_store_dword v15, v16, s[20:23], s32 offen sc1")
    a("s_mov_b64 exec, -1")
    stamp(a, 3)
    HB = 64
    def chk(lbl_ok):
        a("v_cmp_ne_u32 vcc, 1, v20")
        a("s_and_b64 s[58:59], vcc, s[60:61]")
        a("s_cmp_eq_u64 s[58:59], 0")
        a("s_cbranch_scc1 %s" % lbl_ok)
    def halo_loads(tag):
        for d in (1, 2):
            skip = "L_HSKIP%s%d" % (tag, d)
            a("s_cmp_lt_u32 s25, %d" % d)
            a("s_cbranch_scc1 %s" % skip)
            a("s_sub_u32 s38, s36, %d" % (d * 8192)); a("s_sub_u32 s39, s37, %d" % (d * 8192))
            hb = HB + (d - 1) * 32
            for t in range(4):
                a("buffer_load_dwordx4 %s, v1, s[20:23], s38 offen offset:%d sc1" % (vr(hb + t * 8, 4), t * 1024))
                a("buffer_load_dwordx4 %s, v1, s[20:23], s39 offen offset:%d sc1" % (vr(hb + t * 8 + 4, 4), t * 1024))
            a.label(skip)
    def own_writes():
        a("s_barrier")
        for t in range(4):
            a("ds_write_b128 v12, %s offset:%d" % (vr(pk(t, 0), 4), (16 + t) * 1024))
            a("ds_write_b64 v13, %s offset:%d" % (vr(pk(t, 1), 2), 24576 + (16 + t) * 1024))
            a("ds_write_b64 v13, %s offset:%d" % (vr(pk(t, 1) + 2, 2), 24576 + (16 + t) * 1024 + 512))
    chk("L_HOK")
    a("s_mov_b32 s35, %d" % SPIN_MAX)
    a.label("L_HPOLL")
    a("buffer_load_dword v20, v17, s[20:23], 0 offen sc1")
    a("s_waitcnt vmcnt(0)")
    chk("L_HOK")
    a("s_sub_u32 s35, s35, 1"); a("s_cmp_lg_u32 s35, 0")
    a("s_cbranch_scc1 L_HPOLL")
    a.label("L_HOK")
    halo_loads("a")
    att_setup("k")
    stamp(a, 13)
    a("s_cmp_lt_u32 s25, 2")
    a("s_cbranch_scc1 L_HSMALL")
    def halo_write(d, t):
        hb = HB + (d - 1) * 32; tb = (2 - d) * 8
        a("ds_write_b128 v12, %s offset:%d" % (vr(hb + t * 8, 4), (tb + t) * 1024))
        a("ds_write_b64 v13, %s offset:%d" % (vr(hb + t * 8 + 4, 2), 24576 + (tb + t) * 1024))
        a("ds_write_b64 v13, %s offset:%d" % (vr(hb + t * 8 + 6, 2), 24576 + (tb + t) * 1024 + 512))
    n = 0
    for d in (1, 2):
        for t in range(4):
            n += 2
            a("s_waitcnt vmcnt(%d)" % (16 - n))
            halo_write(d, t)
    a("s_branch L_ATT")
    a.label("L_HSMALL")
    a("s_cmp_lt_u32 s25, 1")
    a("s_cbranch_scc1 L_ATT")
    a("s_waitcnt vmcnt(0)")
    for t in range(4): halo_write(1, t)
    a.label("L_ATT")
    a("s_waitcnt lgkmcnt(0)")
    a("s_barrier")
    stamp(a, 4)
    a("s_cmp_ge_u32 s24, 4")
    a("s_cbranch_scc1 L_NOQRD")
    a("ds_read_b128 %s, v8 offset:%d" % (vr(QF, 4), QL))
    a("ds_read_b128 %s, v8 offset:%d" % (vr(QF + 4, 4), QL + 4096))
    a("v_mov_b32 v2, 0"); a("v_mov_b32 v3, 0x%x" % CNT)
    a("ds_write_b32 v3, v2")
    a("s_waitcnt lgkmcnt(0)")
    a.label("L_NOQRD")
    a("s_barrier")
    def wo_slot(p): wo_one(0, p)
    OFA = 164; OFB = 96
    def oloads(par, sl=range(8)):
        ob = (OFA, OFB)[par]
        for sx in sl:
            a("s_add_u32 s34, s101, %d" % sx); a("s_and_b32 s34, s34, 7"); a("s_lshl_b32 s34, s34, 11")
            for t in range(2):
                a("s_add_u32 s33, %s, s34" % ("s97", "s98")[t])
                a("buffer_load_dwordx4 %s, v1, s[20:23], s33 offen offset:%d sc1" % (vr(ob + sx * 8 + t * 4, 4), par * 1024))
    def signal(tag, w=True):
        if w: a("s_waitcnt vmcnt(0)")
        a("s_barrier")
        a("s_cmp_lg_u32 s24, 0")
        a("s_cbranch_scc1 L_NOSIG%s" % tag)
        a("s_mov_b64 exec, 1")
        a("v_mov_b32 v2, 1"); a("v_mov_b32 v3, 0")
        a("buffer_store_dword v2, v3, s[20:23], s39 offen sc1")
        a("s_mov_b64 exec, -1")
        a.label("L_NOSIG%s" % tag)
        a("s_add_u32 s39, s39, 128")
    if PRIO:
        a("s_cmp_lt_u32 s24, 4")
        a("s_cbranch_scc1 L_NOPRIO")
        a("s_setprio 1")
        a.label("L_NOPRIO")
    a.label("L_ROUND")
    lg = Lgkm()
    kid = {}; vid = {}
    def rdK(i):
        if i < 17:
            a("ds_read_b128 %s, v6 offset:%d" % (vr(KR + (i % 6) * 4, 4), i * 1024)); kid[i] = lg.issue()
    def rdV1(p, dt, h):
        st = VF + (p % 3) * 8
        if 2 * p + h < 17:
            a("ds_read_b64 %s, v7 offset:%d" % (vr(st + dt * 4 + h * 2, 2), (2 * p + h) * 1024 + dt * 512)); vid[(p, dt)] = lg.issue()
    def rdV(p):
        for dt in range(2):
            for h in range(2): rdV1(p, dt, h)
    def sb(p): return S + (p % 3) * 8
    def qk(i):
        if i >= 17: return
        if 1 <= i <= 15:
            a("s_cmp_eq_u32 s38, %d" % i)
            a("s_cbranch_scc1 L_CTR%d" % i)
            a.label("L_CT%d" % i)
        c0 = vr(ML, 4) if i == 0 else (vr(MH, 4) if i == 16 else vr(CT, 4))
        lg.need(a, kid[i])
        a("v_mfma_f32_16x16x32_bf16 %s, %s, %s, %s" % (vr(sb(i >> 1) + (i & 1) * 4, 4), vr(KR + (i % 6) * 4, 4), vr(QF, 4), c0))
    def exps(p, b):
        nv = 8 if p < 8 else 4
        return ["v_exp_f32 v%d, v%d" % (b + r, b + r) for r in range(nv)]
    def cvts(p, b):
        nv = 8 if p < 8 else 4
        return ["v_cvt_pk_bf16_f32 v%d, v%d, v%d" % (b + r, b + 2 * r, b + 2 * r + 1) for r in range(nv // 2)]
    def pv(p, k, b):
        st = VF + (p % 3) * 8
        if k < 2:
            lg.need(a, vid[(p, k)])
            d = vr(O + 4 * k, 4); A = st + 4 * k
        else:
            d = vr(L, 4); A = ONE
        c = "0" if p == 0 else d
        if p < 8: a("v_mfma_f32_16x16x32_bf16 %s, %s, %s, %s" % (d, vr(A, 4), vr(b, 4), c))
        else:     a("v_mfma_f32_16x16x16_bf16 %s, %s, %s, %s" % (d, vr(A, 2), vr(b, 2), c))
    for i in range(6): rdK(i)
    a("s_cmp_gt_u32 s38, 1")
    a("s_cselect_b32 s33, 0x%x, 0" % NEG)
    for r in range(4): a("v_mov_b32 v%d, s33" % (CT + r))
    rdV(0)
    for i in range(4):
        qk(i); rdK(i + 6)
    rdV(1)
    for x in exps(0, sb(0)): a(x)
    for p in range(9):
        if p < 4:
            a("s_cmp_lg_u32 s58, 0")
            a("s_cbranch_scc1 L_SK%d" % p)
            wo_slot(2 * p)
            if p < 3: wo_slot(2 * p + 1)
            else:
                a("s_cmp_eq_u32 s24, 7")
                a("s_cbranch_scc1 L_SK%d" % p)
                wo_slot(7)
            a.label("L_SK%d" % p)
        if E5 and p >= 1:
            a("s_cmp_eq_u32 s10, 1")
            a("s_cbranch_scc1 L_E5_%d" % p)
            a.label("L_E5R_%d" % p)
        if EARLY == 2 and p == EP:
            a("buffer_load_dword v9, v11, s[20:23], s96 offen sc1")
        if p == SIGP or (EARLY == 1 and p >= 6):
            a("s_cmp_lg_u32 s58, 0")
            a("s_cbranch_scc1 L_OOL%d" % p)
            a.label("L_OOLR%d" % p)
        cv = cvts(p, sb(p))
        ne = exps(p + 1, sb(p + 1)) if p < 8 else []
        qk(2 * p + 4); rdK(2 * p + 10)
        for x in cv[:2]: a(x)
        qk(2 * p + 5); rdK(2 * p + 11)
        for x in cv[2:]: a(x)
        for k in range(3):
            for x in ne[:2]: a(x)
            ne = ne[2:]
            pv(p, k, sb(p))
        if p + 2 < 9: rdV(p + 2)
        for x in ne: a(x)
    if PRIO: a("s_setprio 0")
    a("s_nop 6")
    a("v_add_f32_e64 v%d, |v%d|, |v%d|" % (MX, O, O + 1))
    a("v_add_f32_e64 v%d, |v%d|, |v%d|" % (MX + 1, O + 2, O + 3))
    for r in range(4, 8): a("v_add_f32_e64 v%d, |v%d|, v%d" % (MX + (r & 1), O + r, MX + (r & 1)))
    a("v_cmp_nle_f32 vcc, v54, v%d" % L)
    a("v_cmp_nge_f32 s[34:35], v55, v%d" % L)
    a("v_add_f32 v%d, v%d, v%d" % (MX, MX, MX + 1))
    a("s_or_b64 s[34:35], s[34:35], vcc")
    a("v_cmp_nge_f32 vcc, 0x7f000000, v%d" % MX)
    a("s_or_b64 s[34:35], s[34:35], vcc")
    if FORCE_EXACT: a("s_mov_b64 s[34:35], 1")
    a("s_cmp_eq_u64 s[34:35], 0")
    a("s_cbranch_scc1 L_FASTOK")
    lg = Lgkm(); kid = {}; vid = {}
    def rdKx(i):
        a("ds_read_b128 %s, v6 offset:%d" % (vr(KF + (i % 4) * 4, 4), i * 1024)); kid[i] = lg.issue()
    for i in range(4): rdKx(i)
    for i in range(17):
        c0 = vr(ML, 4) if i == 0 else (vr(MH, 4) if i == 16 else "0")
        lg.need(a, kid[i])
        a("v_mfma_f32_16x16x32_bf16 %s, %s, %s, %s" % (vr(S + 4 * i, 4), vr(KF + (i % 4) * 4, 4), vr(QF, 4), c0))
        if i + 4 < 17: rdKx(i + 4)
    rdV(0); rdV(1)
    a("s_nop 7")
    a("s_cmp_eq_u32 s38, 0")
    a("s_cbranch_scc1 L_NOFIX")
    for i in range(16):
        for r in range(4): a("v_mov_b32 v%d, v5" % (S + 4 * i + r))
        if i < 15:
            a("s_cmp_eq_u32 s38, %d" % (i + 1))
            a("s_cbranch_scc1 L_NOFIX")
    a.label("L_NOFIX")
    for i in range(17):
        for q in range(2):
            m = MX + q; s0 = S + 4 * i + 2 * q
            if i == 0: a("v_max_f32 v%d, v%d, v%d" % (m, s0, s0 + 1))
            else: a("v_max3_f32 v%d, v%d, v%d, v%d" % (m, m, s0, s0 + 1))
    a("v_max_f32 v%d, v%d, v%d" % (MX, MX, MX + 1))
    a("v_mov_b32 v%d, v%d" % (MX + 1, MX))
    a("v_permlane32_swap_b32 v%d, v%d" % (MX, MX + 1))
    a("v_max_f32 v%d, v%d, v%d" % (MX, MX, MX + 1))
    a("v_mov_b32 v%d, v%d" % (MX + 1, MX))
    a("v_permlane16_swap_b32 v%d, v%d" % (MX, MX + 1))
    a("v_max_f32 v%d, v%d, v%d" % (MX, MX, MX + 1))
    for p in range(9):
        b = S + 8 * p; nv = 8 if p < 8 else 4
        for r in range(nv): a("v_sub_f32 v%d, v%d, v%d" % (b + r, b + r, MX))
        for x in exps(p, b): a(x)
        for x in cvts(p, b): a(x)
        for k in range(3): pv(p, k, b)
        if p + 2 < 9: rdV(p + 2)
    a("s_nop 7")
    a.label("L_FASTOK")
    a("v_rcp_f32 v%d, v%d" % (MX, L))
    for r in range(8): a("v_mul_f32 v%d, v%d, v%d" % (O + r, O + r, MX))
    for r in range(4): a("v_cvt_pk_bf16_f32 v%d, v%d, v%d" % (S + r, O + 2 * r, O + 2 * r + 1))
    a("buffer_store_dwordx4 %s, v1, s[20:23], s37 offen sc1" % vr(S, 4))
    a("s_add_u32 s37, s37, 1024")
    a("v_add_u32 v6, %d, v6" % (KVH[1] - KVH[0])); a("v_add_u32 v7, %d, v7" % (KVH[1] - KVH[0]))
    for r in range(4): a("v_mov_b32 v%d, v%d" % (QF + r, QF + 4 + r))

    if DIAG:
        a("s_cmp_lg_u32 s58, 0")
        a("s_cbranch_scc1 L_NOST14")
        stamp(a, 14)
        a.label("L_NOST14")
    a("s_cmp_lg_u32 s58, 0")
    a("s_cbranch_scc1 L_RDONE")
    if E5:
        a("s_waitcnt vmcnt(1)")
        a("v_cmp_ne_u32 vcc, 1, v9")
        a("s_cmp_eq_u64 vcc, 0")
        a("s_cselect_b32 s10, 1, 0")
    a("s_mov_b32 s58, 1")
    a("s_branch L_ROUND")
    a.label("L_RDONE")
    stamp(a, 5)
    if EARLY == 2:
        a("s_cmp_eq_u32 s10, 1")
        a("s_cbranch_scc1 L_E2NO")
        a("s_waitcnt vmcnt(1)")
        a("v_cmp_ne_u32 vcc, 1, v9")
        a("s_cmp_lg_u64 vcc, 0")
        a("s_cbranch_scc1 L_E2NO")
        oloads(0, range(EK))
        a("s_mov_b32 s99, 1")
        a("s_waitcnt vmcnt(%d)" % (2 * EK))
        a("s_branch L_E2J")
        a.label("L_E2NO")
        a("s_waitcnt vmcnt(0)")
        a.label("L_E2J")
        signal("1", False)
    else:
        signal("1")
    stamp(a, 6)
    A2 = 16; F2 = 48
    a("v_mov_b32 v15, v11")
    a("v_and_b32 v12, 15, v0"); a("v_lshrrev_b32 v13, 4, v0")
    a("v_lshrrev_b32 v17, 2, v12"); a("v_and_b32 v18, 3, v12")
    a("v_lshlrev_b32 v19, 2, v13"); a("v_add_u32 v19, v19, v17")
    a("v_lshrrev_b32 v20, 1, v19"); a("v_and_b32 v20, 3, v20")
    a("v_lshlrev_b32 v19, 7, v19"); a("v_lshlrev_b32 v20, 5, v20"); a("v_lshlrev_b32 v18, 3, v18")
    a("v_add3_u32 v19, v19, v20, v18")
    a("s_lshl_b32 s31, s30, 15")
    a("v_add_u32 v19, s31, v19")
    AE = [4, 5, 6, 7]; AO = [8, 9, 11, 14]
    for nt in range(4):
        a("v_xor_b32 v20, %d, v19" % (nt * 32))
        a("v_add_u32 v%d, %d, v20" % (AE[nt], WOE)); a("v_add_u32 v%d, 0x%x, v20" % (AO[nt], WOO))
    for r in range(32): a("v_mov_b32 v%d, 0" % (A2 + r))
    if WF1ST:
        a("s_cmp_lg_u32 s24, 7")
        a("s_cbranch_scc1 L_NOC63")
        wo_slot(7)
        a.label("L_NOC63")
        wo_dma(1, 0, 8)
    a("s_cmp_eq_u32 s10, 1")
    a("s_cbranch_scc1 L_HAVEALL")
    a("s_cmp_eq_u32 s99, 1")
    a("s_cbranch_scc1 L_HAVEA")
    pollf(a, "s96", "L_PC0")
    oloads(0, range(EK))
    a.label("L_HAVEA")
    oloads(0, range(EK, 8))
    a.label("L_HAVEALL")
    if not WF1ST:
        a("s_cmp_lg_u32 s24, 7")
        a("s_cbranch_scc1 L_NOC63")
        wo_slot(7)
        a.label("L_NOC63")
    stamp(a, 7)
    a("v_and_b32 v15, 15, v0"); a("v_lshlrev_b32 v15, 2, v15")
    a("s_add_u32 s96, s96, 128")
    lg = Lgkm()
    def wreads(par, s):
        st = s & 1
        ids = {}
        fl = []
        for nt in range(4):
            for hf in range(2):
                def f(nt=nt, hf=hf):
                    a("ds_read_b64_tr_b16 %s, v%d offset:%d" % (vr(F2 + st * 16 + nt * 4 + hf * 2, 2), (AE, AO)[par][nt], s * 4096 + hf * 2048))
                    ids[nt] = lg.issue()
                fl.append(f)
        return fl, ids
    PSL = int(os.environ.get("PSL", "5"))
    for par in range(2):
        ob = (OFA, OFB)[par]
        if par == 1:
            stamp(a, 9)
            if not NOBH:
                a("s_waitcnt vmcnt(16)")
                a("s_barrier")
        rl, ids = wreads(par, 0)
        for f in rl: f()
        for s in range(8):
            st = s & 1
            if s + 1 < 8: nrl, nids = wreads(par, s + 1)
            extra = []
            if par == 0 and s == PB0:
                a("s_cmp_lg_u32 s24, 0")
                a("s_cbranch_scc1 L_NOPB0")
                a("buffer_load_dword v2, v15, s[20:23], s96 offen sc1")
                a.label("L_NOPB0")
            if par == 0:
                if s < BGS:
                    if WF1ST:
                        a("s_waitcnt vmcnt(%d)" % (14 - 2 * s))
                    else:
                        a("s_waitcnt vmcnt(%d)" % (14 - 2 * s + 2 * s))
                        extra = [lambda q=2 * s: wo_one(1, q), lambda q=2 * s + 1: wo_one(1, q)]
                if s == BGS:
                    a("s_cmp_lg_u32 s24, 0")
                    a("s_cbranch_scc1 L_NOPOLL")
                    if PB0 >= 0:
                        a("s_waitcnt vmcnt(%d)" % (2 * (BGS - PB0)))
                        a("v_cmp_ne_u32 vcc, 1, v2")
                        a("s_cmp_eq_u64 vcc, 0")
                        a("s_cbranch_scc1 L_NOPOLL")
                    if WARMB:
                        a("v_lshrrev_b32 v3, 3, v0"); a("v_lshlrev_b32 v3, 15, v3"); a("v_and_b32 v80, 7, v0"); a("v_lshlrev_b32 v80, 7, v80"); a("v_add_u32 v3, v3, v80")
                        a("s_lshl_b32 s4, s56, 18"); a("s_add_u32 s4, s4, 0x%x" % (OG_OFF + 1024))
                        a("s_mov_b32 s5, 0")
                        a("s_mov_b32 s35, %d" % SPIN_MAX)
                        a.label("L_PC1")
                        a("buffer_load_dword v2, v15, s[20:23], s96 offen sc1")
                        a("s_waitcnt vmcnt(0)")
                        a("v_cmp_eq_u32 vcc, 1, v2")
                        a("s_and_b32 s6, vcc_lo, 0xffff")
                        a("s_cmp_eq_u32 s6, 0xffff")
                        a("s_cbranch_scc1 L_NOPOLL")
                        a("s_andn2_b32 s7, s6, s5")
                        a("s_mov_b32 s5, s6")
                        a.label("L_WB")
                        a("s_cmp_eq_u32 s7, 0")
                        a("s_cbranch_scc1 L_WBD")
                        a("s_ff1_i32_b32 s8, s7")
                        a("s_bitset0_b32 s7, s8")
                        a("s_lshl_b32 s8, s8, 11"); a("s_add_u32 s8, s8, s4")
                        a("buffer_load_dword v80, v3, s[20:23], s8 offen sc1")
                        a("s_branch L_WB")
                        a.label("L_WBD")
                        a("s_sub_u32 s35, s35, 1")
                        a("s_cmp_lg_u32 s35, 0")
                        a("s_cbranch_scc1 L_PC1")
                    else:
                        pollf(a, "s96", "L_PC1")
                    a.label("L_NOPOLL")
                    if not WF1ST: a("s_waitcnt vmcnt(%d)" % (0 if NOBH else 8))
                    a("s_barrier")
                    stamp(a, 8)
                if s >= BGS:
                    k0 = min(8, (s - BGS) * BLN); k1 = min(8, (s - BGS + 1) * BLN)
                    if WF1ST: a("s_waitcnt vmcnt(%d)" % (14 - 2 * s + 2 * k0))
                    extra = [lambda q=q: oloads(1, [q]) for q in range(k0, k1)]
            else:
                a("s_waitcnt vmcnt(%d)" % (14 - 2 * s))
            n = 0
            for nt in range(4):
                lg.need(a, ids[nt])
                for t in range(2):
                    d = vr(A2 + (t * 4 + nt) * 4, 4)
                    a("v_mfma_f32_16x16x32_bf16 %s, %s, %s, %s" % (d, vr(F2 + st * 16 + nt * 4, 4), vr(ob + s * 8 + t * 4, 4), d))
                    if s + 1 < 8: nrl[n]()
                    if n in ((0, 3) if BLN == 2 else (0, 2, 4, 6)) and extra: extra.pop(0)()
                    n += 1
            assert not extra
            if s + 1 < 8: ids = nids
    stamp(a, 10)
    a("s_lshl_b32 s33, s24, 12"); a("s_add_u32 s33, s33, 0x%x" % RED)
    a("v_add_u32 v2, s33, v1")
    a("v_xor_b32 v3, 0x4000, v2")
    a("v_lshlrev_b32 v12, 11, v12")
    a("v_and_b32 v15, 1, v13"); a("v_lshlrev_b32 v15, 5, v15")
    a("v_lshrrev_b32 v13, 1, v13"); a("v_lshlrev_b32 v13, 4, v13")
    a("v_add3_u32 v12, v12, v15, v13")
    a("s_lshl_b32 s32, s32, 15")
    a("s_lshl_b32 s33, s57, 7"); a("s_add_u32 s32, s32, s33")
    for q in range(4): a("ds_write_b128 v2, %s offset:%d" % (vr(A2 + 16 + q * 4, 4), q * 1024))
    a("s_waitcnt lgkmcnt(0)")
    a("s_barrier")
    for q in range(4): a("ds_read_b128 %s, v3 offset:%d" % (vr(OFB + q * 4, 4), q * 1024))
    for pr in range(2):
        b = F2 + pr * 4
        for h in range(2):
            nt = pr * 2 + h
            s0 = A2 + nt * 4
            a("s_waitcnt lgkmcnt(%d)" % (3 - nt))
            for r in range(0, 4, 2):
                a("v_pk_add_f32 %s, %s, %s" % (vr(s0 + r, 2), vr(s0 + r, 2), vr(OFB + nt * 4 + r, 2)))
            a("v_cvt_pk_bf16_f32 v%d, v%d, v%d" % (b + 2 * h, s0, s0 + 1))
            a("v_cvt_pk_bf16_f32 v%d, v%d, v%d" % (b + 2 * h + 1, s0 + 2, s0 + 3))
        a("v_permlane16_swap_b32 v%d, v%d" % (b, b + 2))
        a("v_permlane16_swap_b32 v%d, v%d" % (b + 1, b + 3))
        a("buffer_store_dwordx4 %s, v12, s[48:51], s32 offen offset:%d" % (vr(b, 4), pr * 64))
    if DIAG:
        a("s_waitcnt vmcnt(0)")
        stamp(a, 11)
        stamp_flush(a)
    a("s_endpgm")
    a.label("L_OOL%d" % SIGP)
    a("s_waitcnt vmcnt(0)")
    a("s_mov_b64 exec, 1")
    a("v_mov_b32 v2, 1"); a("v_mov_b32 v3, 0x%x" % CNT)
    a("ds_add_rtn_u32 v3, v3, v2")
    a("s_waitcnt lgkmcnt(0)")
    a("v_readfirstlane_b32 s33, v3")
    a("s_cmp_lg_u32 s33, 7")
    a("s_cbranch_scc1 L_NOSIG0")
    a("v_mov_b32 v3, 0")
    a("buffer_store_dword v2, v3, s[20:23], s39 offen sc1")
    a.label("L_NOSIG0")
    a("s_mov_b64 exec, -1")
    a("s_add_u32 s39, s39, 128")
    if EARLY == 1: a("buffer_load_dword v9, v11, s[20:23], s96 offen sc1")
    a("s_branch L_OOLR%d" % SIGP)
    if EARLY == 1:
        for p in (6, 7, 8):
            a.label("L_OOL%d" % p)
            if p == 6:
                a("s_waitcnt vmcnt(0)")
                a("v_cmp_ne_u32 vcc, 1, v9")
                a("s_cmp_eq_u64 vcc, 0")
                a("s_cselect_b32 s99, 1, 0")
            a("s_cmp_eq_u32 s99, 0")
            a("s_cbranch_scc1 L_OOLR%d" % p)
            oloads(0, {6: range(0, 3), 7: range(3, 6), 8: range(6, 8)}[p])
            a("s_branch L_OOLR%d" % p)
    if E5:
        for p in range(1, 9):
            a.label("L_E5_%d" % p)
            oloads(0, [p - 1])
            a("s_branch L_E5R_%d" % p)
    for i in range(1, 16):
        a.label("L_CTR%d" % i)
        a("s_nop 3")
        for r in range(4): a("v_mov_b32 v%d, 0" % (CT + r))
        a("s_nop 1")
        a("s_branch L_CT%d" % i)
    a.label("L_END")
    a("s_endpgm")
    a.fix_hazards()
    return a.text()

DOC = """;
;
"""
def main():
    nm = "standalone__sliding_block__prompt_kernel"
    hdr = open("standalone__sliding_block__prompt.s.ref").read().split("; Override")[0]
    out = hdr
    out += "; @launch grid=(256,1,1) block=(512,1,1) lds=163840\n"
    out += DOC
    out += '.amdgcn_target "amdgcn-amd-amdhsa--gfx950"\n.text\n'
    out += kernel_header(nm) + build()
    out += '.section .rodata,"a"\n.p2align 6\n' + kernel_desc(nm, 240, 102, 240)
    open(sys.argv[1] if len(sys.argv) > 1 else "standalone__sliding_block__prompt.s", "w").write(out)
main()
```

```python
import sys, os, struct
from asmlib import *

DIAG = int(os.environ.get("DIAG", "0"))
KG_OFF = 0
VG_OFF = 4 << 20
OG_OFF = 8 << 20
FL_OFF = 12 << 20
C2_OFF = FL_OFF + 65536
WS_BYTES = 64 << 20
DIAG_OFF = 32 << 20
SPIN_MAX = 200000
WSOFF = int(os.environ.get("WSOFF", "0")) << 20
WQR = [int(x) for x in os.environ.get("WQR", "8,9,10,11").split(",")]
WARMB = int(os.environ.get("WARMB", "0"))
PB0 = int(os.environ.get("PB0", "-1"))
BLN = int(os.environ.get("BLN", "2"))
NOBH = int(os.environ.get("NOBH", "0"))
PSTEP = int(os.environ.get("PSTEP", "10"))
XPOLL = int(os.environ.get("XPOLL", "1"))
KORD = os.environ.get("KORD", "")
CSEQ = [int(x) for x in os.environ.get("CSEQ", "0,2,1,3,4,6,5,7,8,10,9,11,12,14,13,15").split(",")]
assert sorted(CSEQ) == list(range(16))
NTX = int(os.environ.get("NTX", "0"))
NTW = int(os.environ.get("NTW", "0"))
WOPF2 = int(os.environ.get("WOPF2", "0"))
WF1ST = int(os.environ.get("WF1ST", "0"))
BGS = int(os.environ.get("BGS", "4"))
E5 = int(os.environ.get("E5", "0"))
EK = int(os.environ.get("EK", "2"))
KVP = int(os.environ.get("KVP", "0"))
QBP = int(os.environ.get("QBP", "0"))
BARN = int(os.environ.get("BARN", "2"))
EP = int(os.environ.get("EP", "6"))
RAMP = [int(x) for x in os.environ.get("RAMP", "2,4,6,9").split(",")]
NOATOM = int(os.environ.get("NOATOM", "0"))
ROT2 = int(os.environ.get("ROT2", "7"))
SIGP = int(os.environ.get("SIGP", "2"))
CNT = 65536 - 1024
FORCE_EXACT = int(os.environ.get("FORCE_EXACT", "0"))
FLY0 = int(os.environ.get("FLY0", "4"))
EARLY = int(os.environ.get("EARLY", "2"))
LA3 = int(os.environ.get("LA3", "3"))
LOOPSTAMP = int(os.environ.get("LOOPSTAMP", "0"))
PRIO = int(os.environ.get("PRIO", "1"))
WOPF = int(os.environ.get("WOPF", "99"))
CPF = int(os.environ.get("CPF", "1"))
NM = "standalone__sliding_block__prompt_kernel"

def f32bits(x): return struct.unpack("<I", struct.pack("<f", x))[0]
CSC = (32 ** -0.5) * 1.4426950408889634
NEG = f32bits(-1.0e30)

class Cnt:
    def __init__(self, name, mx): self.n = 0; self.done = 0; self.name = name; self.mx = mx
    def issue(self): self.n += 1; return self.n
    def need(self, a, idn):
        if idn <= self.done: return
        cnt = min(self.n - idn, self.mx)
        a("s_waitcnt %s(%d)" % (self.name, cnt)); self.done = self.n - cnt
    def all(self, a):
        a("s_waitcnt %s(0)" % self.name); self.done = self.n
def Lgkm(): return Cnt("lgkmcnt", 15)
def Vm(): return Cnt("vmcnt", 63)

def vr(b, n): return "v[%d:%d]" % (b, b + n - 1)
def srd(a, d, lo, hi, nbytes):
    a("s_mov_b32 s%d, s%d" % (d, lo)); a("s_mov_b32 s%d, s%d" % (d + 1, hi))
    a("s_mov_b32 s%d, 0x%x" % (d + 2, nbytes)); a("s_mov_b32 s%d, 0x00020000" % (d + 3))

SB = 64
NSLOT = 16
def stamp(a, slot):
    if not DIAG: return
    a("s_memrealtime s[%d:%d]" % (SB + 2 * slot, SB + 2 * slot + 1))
    a("s_waitcnt lgkmcnt(0)")
AMP = int(os.environ.get("AMP", "-1"))
def stamp_flush(a):
    if not DIAG: return
    if AMP >= 0:
        a("s_sub_u32 s62, s%d, s%d" % (SB + 2 * AMP, SB))
        a("s_add_u32 s62, s62, s%d" % (SB + 2 * 11))
        a.label("L_AMP")
        a("s_memrealtime s[60:61]")
        a("s_waitcnt lgkmcnt(0)")
        a("s_sub_u32 s60, s60, s62")
        a("s_cmp_lt_i32 s60, 0")
        a("s_cbranch_scc1 L_AMP")
        return
    t = 62
    a("s_lshl_b32 s%d, s2, 3" % t); a("s_add_u32 s%d, s%d, s24" % (t, t)); a("s_lshl_b32 s%d, s%d, 7" % (t, t))
    a("s_add_u32 s%d, s%d, 0x%x" % (t, t, DIAG_OFF))
    a("v_mov_b32 v4, 0")
    for sl in range(NSLOT):
        a("v_mov_b32 v2, s%d" % (SB + 2 * sl)); a("v_mov_b32 v3, s%d" % (SB + 2 * sl + 1))
        a("buffer_store_dwordx2 v[2:3], v4, s[20:23], s%d offen offset:%d" % (t, sl * 8))
        a("s_nop 1")

def pollf(a, soff, name, va=15, vt=2, sc=35):
    a("s_mov_b32 s%d, %d" % (sc, SPIN_MAX))
    a.label(name)
    a("buffer_load_dword v%d, v%d, s[20:23], %s offen sc1" % (vt, va, soff))
    a("s_waitcnt vmcnt(0)")
    a("v_cmp_ne_u32 vcc, 1, v%d" % vt)
    a("s_cmp_eq_u64 vcc, 0")
    a("s_cbranch_scc1 %s_ok" % name)
    a("s_sub_u32 s%d, s%d, 1" % (sc, sc))
    a("s_cmp_lg_u32 s%d, 0" % sc)
    a("s_cbranch_scc1 %s" % name)
    a.label(name + "_ok")

def poll(a, soff, cmp_op, val, name, srdn=20, vt=2, vz=3, st=34, sc=35):
    a("v_mov_b32 v%d, 0" % vz)
    a("s_mov_b32 s%d, %d" % (sc, SPIN_MAX))
    a.label(name)
    a("buffer_load_dword v%d, v%d, s[%d:%d], %s offen sc1" % (vt, vz, srdn, srdn + 3, soff))
    a("s_waitcnt vmcnt(0)")
    a("v_readfirstlane_b32 s%d, v%d" % (st, vt))
    a("s_cmp_%s_u32 s%d, %s" % (cmp_op, st, val))
    a("s_cbranch_scc1 %s_ok" % name)
    a("s_sub_u32 s%d, s%d, 1" % (sc, sc))
    a("s_cmp_lg_u32 s%d, 0" % sc)
    a("s_cbranch_scc1 %s" % name)
    a.label(name + "_ok")

WR = 0
XR = 65536
R4 = 131072
KVH = [65536, 114688]
QL = 0
WOE = 0
WOO = 65536
RED = 131072
QF = 16

def build():
    a = Asm()
    def wo_one(par, p):
        a("s_add_u32 m0, s61, %d" % ((WOE, WOO)[par] + p * 8192))
        a("s_add_u32 s33, s100, %d" % (2 * p)); a("s_and_b32 s33, s33, 7"); a("s_lshl_b32 s33, s33, 17")
        a("s_add_u32 s33, s33, s60")
        off = ((8 if p >= 4 else 0) * 64 + 32 * par) * 2048
        if off: a("s_add_u32 s33, s33, 0x%x" % off)
        a("buffer_load_dwordx4 v10, s[44:47], s33 offen lds")
    def wo_dma(par, first, count):
        for i in range(count): wo_one(par, first // 2 + i)
    ML = 24; MH = 28; ONE = 32; O = 36; L = 44; CC = 48; MC = 50; MX = 52; KF = 56; VF = 72; S = 96
    CT = 48
    KR = 120
    def att_setup(tag):
        a("s_and_b32 s56, s27, 3"); a("s_lshl_b32 s56, s56, 2"); a("s_and_b32 s29, s28, 3"); a("s_add_u32 s56, s56, s29")
        a("s_lshr_b32 s57, s27, 2"); a("s_lshl_b32 s57, s57, 3"); a("s_lshr_b32 s29, s28, 2"); a("s_add_u32 s57, s57, s29")
        a("v_lshrrev_b32 v4, 3, v0"); a("v_and_b32 v5, 7, v0"); a("v_lshrrev_b32 v6, 4, v0")
        a("v_lshlrev_b32 v6, 1, v6"); a("v_xor_b32 v6, v6, v5"); a("v_lshlrev_b32 v6, 4, v6")
        a("v_lshlrev_b32 v10, 11, v4"); a("v_add_u32 v10, v10, v6")
        a("s_lshl_b32 s30, s57, 7")
        a("v_add_u32 v10, s30, v10")
        a("s_lshl_b32 s61, s24, 10")
        a("s_and_b32 s60, s24, 3"); a("s_lshl_b32 s60, s60, 14")
        a("s_and_b32 s101, s57, %d" % ROT2)
        a("s_lshr_b32 s100, s24, 2"); a("s_add_u32 s100, s100, s101")
        a("s_waitcnt lgkmcnt(0)")
        a("v_and_b32 v2, 15, v0")
        a("v_lshrrev_b32 v3, 4, v0"); a("v_lshlrev_b32 v3, 2, v3")
        a("v_sub_u32 v4, v2, v3")
        a("v_mov_b32 v5, 0x%x" % NEG)
        for r in range(4):
            a("v_cmp_le_i32 vcc, %d, v4" % r)
            a("v_cndmask_b32_e64 v%d, v5, 0, vcc" % (MH + r))
            a("v_cndmask_b32_e64 v%d, 0, v5, vcc" % (ML + r))
        for r in range(4): a("v_mov_b32 v%d, 0x3f803f80" % (ONE + r))

        a("s_and_b32 s31, s24, 3"); a("s_lshl_b32 s31, s31, 1"); a("s_lshr_b32 s32, s24, 2"); a("s_add_u32 s31, s31, s32")
        a("s_lshl_b32 s36, s31, 10")
        a("v_add_u32 v6, s36, v1")
        a("v_lshlrev_b32 v7, 3, v0"); a("v_add_u32 v7, s36, v7")
        a("v_add_u32 v6, 0x%x, v6" % KVH[0]); a("v_add_u32 v7, 0x%x, v7" % (KVH[0] + 24576))
        a("v_add_u32 v8, s61, v1")
        a("s_lshl_b32 s37, s25, 3"); a("s_add_u32 s37, s37, s31"); a("s_lshl_b32 s37, s37, 5")
        a("s_lshl_b32 s38, s26, 1"); a("s_add_u32 s37, s37, s38"); a("s_lshl_b32 s37, s37, 10")
        a("s_add_u32 s37, s37, 0x%x" % OG_OFF)
        a("s_lshl_b32 s38, s25, 3"); a("s_add_u32 s38, s38, s31")
        a("s_sub_i32 s38, 16, s38"); a("s_max_i32 s38, s38, 0")
        a("s_lshl_b32 s39, s25, 8"); a("s_lshl_b32 s33, s26, 2"); a("s_add_u32 s39, s39, s33"); a("s_add_u32 s39, s39, 0x%x" % C2_OFF)
        a("s_lshr_b32 s30, s24, 2")
        a("s_lshl_b32 s96, s56, 8"); a("s_lshl_b32 s33, s30, 5"); a("s_add_u32 s96, s96, s33"); a("s_add_u32 s96, s96, 0x%x" % C2_OFF)
        a("v_and_b32 v11, 7, v0"); a("v_lshlrev_b32 v11, 2, v11")
        a("s_and_b32 s33, s24, 3"); a("s_lshl_b32 s33, s33, 1")
        a("s_lshl_b32 s32, s56, 3"); a("s_add_u32 s32, s32, s33")
        a("s_lshl_b32 s97, s32, 15"); a("s_lshl_b32 s33, s30, 14"); a("s_add_u32 s97, s97, s33"); a("s_add_u32 s97, s97, 0x%x" % OG_OFF)
        a("s_lshl_b32 s33, s30, 15")
        a("s_add_u32 s98, s97, 32768"); a("s_sub_u32 s98, s98, s33")
        a("s_add_u32 s97, s97, s33")
        a("s_add_u32 s32, s32, s30")
        a("s_mov_b32 s99, 0")
        a("s_mov_b32 s10, 0")
        a("s_mov_b32 s58, 0")

        a("s_cmp_eq_u32 s38, 0")
        a("s_cbranch_scc1 L_MLOK"+tag+"")
        for r in range(4): a("v_mov_b32 v%d, v5" % (ML + r))
        a.label("L_MLOK"+tag+"")
        a("s_mov_b32 s34, 0x%x" % f32bits(2.0 ** -24)); a("s_mov_b32 s35, 0x%x" % f32bits(2.0 ** 40))
        a("v_mov_b32 v54, s34"); a("v_mov_b32 v55, s35")

    a("s_cmp_ge_u32 s2, 256")
    a("s_cbranch_scc1 L_END")
    a("s_load_dwordx8 s[4:11], s[0:1], 0")
    a("s_load_dwordx4 s[40:43], s[0:1], 32")
    if DIAG:
        for sl in range(1, NSLOT): a("s_mov_b64 s[%d:%d], 0" % (SB + 2 * sl, SB + 2 * sl + 1))
        a("s_memrealtime s[%d:%d]" % (SB, SB + 1))
    a("v_lshrrev_b32 v1, 6, v0")
    a("v_readfirstlane_b32 s24, v1")
    a("v_and_b32 v0, 63, v0")
    a("s_and_b32 s27, s2, 7")
    a("s_lshr_b32 s28, s2, 3")
    a("s_and_b32 s25, s27, 1"); a("s_lshl_b32 s25, s25, 3"); a("s_and_b32 s29, s28, 7"); a("s_add_u32 s25, s25, s29")
    a("s_lshr_b32 s26, s27, 1"); a("s_lshl_b32 s26, s26, 2"); a("s_lshr_b32 s29, s28, 3"); a("s_add_u32 s26, s26, s29")
    a("v_lshlrev_b32 v1, 4, v0")
    a("s_cmp_lt_u32 s24, 4")
    a("s_cbranch_scc1 L_KV")
    a("s_sub_u32 s30, s24, 4")
    a("v_lshrrev_b32 v4, 3, v0")
    a("v_and_b32 v5, 7, v0")
    a("v_lshrrev_b32 v6, 4, v0")
    a("s_and_b32 s31, s30, 1")
    a("s_lshl_b32 s32, s31, 2")
    a("v_or_b32 v7, s32, v6")
    a("v_xor_b32 v7, v7, v5")
    a("v_lshlrev_b32 v7, 4, v7")
    a("v_lshlrev_b32 v2, 11, v4")
    a("v_add_u32 v2, v2, v7")
    a("s_lshl_b32 s32, s25, 7"); a("s_lshl_b32 s33, s30, 3"); a("s_add_u32 s32, s32, s33"); a("s_lshl_b32 s32, s32, 11")
    a("v_add_u32 v2, s32, v2")
    a("v_and_b32 v7, 1, v6")
    a("s_lshl_b32 s32, s31, 1")
    a("v_or_b32 v7, s32, v7")
    a("v_lshlrev_b32 v7, 1, v7")
    a("v_xor_b32 v7, v7, v5")
    a("v_lshlrev_b32 v7, 4, v7")
    a("v_mul_u32_u24 v3, 0x1800, v4")
    a("v_add_u32 v3, v3, v7")
    a("s_mul_i32 s32, s30, %d" % (8 * 6144)); a("s_lshl_b32 s33, s26, 7"); a("s_add_u32 s32, s32, s33")
    a("v_add_u32 v3, s32, v3")
    a("s_lshl_b32 s34, s30, 10")
    if KORD == "xor":
        a("s_and_b32 s59, s28, 7"); a("s_lshl_b32 s59, s59, 1"); a("s_and_b32 s60, s27, 1"); a("s_or_b32 s59, s59, s60"); a("s_xor_b32 s59, s59, s26")
    elif int(os.environ.get("ROTMJ", "1")):
        if os.environ.get("ROTSUB"): a("s_sub_u32 s59, s25, s26"); a("s_add_u32 s59, s59, 16")
        else: a("s_add_u32 s59, s25, s26")
        if os.environ.get("RSH"): a("s_lshl_b32 s59, s59, %s" % os.environ["RSH"])
    else:
        a("s_lshr_b32 s59, s28, 3"); a("s_lshl_b32 s59, s59, 2"); a("s_and_b32 s60, s28, 7"); a("s_lshl_b32 s60, s60, 1")
        a("s_add_u32 s59, s59, s60"); a("s_lshr_b32 s60, s27, 1"); a("s_add_u32 s59, s59, s60"); a("s_and_b32 s60, s27, 1"); a("s_add_u32 s59, s59, s60")
    a("s_waitcnt lgkmcnt(0)")
    srd(a, 12, 4, 5, 2048 * 1024 * 2)
    srd(a, 16, 6, 7, 1024 * 3072 * 2)
    vm = Vm()
    landed = {}
    def kbregs(b):
        if KORD == "xor": a("s_xor_b32 s35, s59, %d" % CSEQ[b])
        elif KORD == "zig":
            off = ((b + 1) // 2 if b & 1 else -(b // 2)) & 15
            a("s_add_u32 s35, s59, %d" % off); a("s_and_b32 s35, s35, 15")
        else:
            a("s_add_u32 s35, s59, %d" % b); a("s_and_b32 s35, s35, 15")
        a("s_lshl_b32 s36, s35, 7"); a("s_mul_i32 s37, s35, 393216")
    cur = {"kb": None}
    def kbr(b):
        if cur["kb"] != b: kbregs(b); cur["kb"] = b
    def stage_ops(b):
        sl = b & 3
        ops = []
        for i in range(4):
            def f(i=i):
                kbr(b)
                a("s_add_u32 m0, s34, %d" % (XR + sl * 16384 + i * 4096))
                a("s_add_u32 s38, s36, %d" % (i * 65536))
                a("buffer_load_dwordx4 v2, s[12:15], s38 offen %slds" % ("nt " if b < NTX else "")); landed[("S", b)] = vm.issue()
            ops.append(f)
        for s in range(2):
            for gg in range(2):
                def f(s=s, gg=gg):
                    kbr(b)
                    a("s_add_u32 m0, s34, %d" % (WR + sl * 16384 + s * 8192 + gg * 4096))
                    a("s_add_u32 s38, s37, %d" % (gg * 196608 + (s + 1) * 2048))
                    a("buffer_load_dwordx4 v3, s[16:19], s38 offen %slds" % ("nt " if b < NTW else "")); landed[("S", b)] = vm.issue()
                ops.append(f)
        return ops
    def issue_wq(b, ldsoff, regs=True):
        kbr(b)
        for gg in range(2):
            a("s_add_u32 m0, s34, %d" % (ldsoff + gg * 4096))
            if gg: a("s_add_u32 s38, s37, 196608")
            a("buffer_load_dwordx4 v3, s[16:19], %s offen lds" % ("s37", "s38")[gg]); landed[("Q", b)] = vm.issue()
    stamp(a, 12)
    fly = list(range(FLY0, FLY0 + 4))
    cap = [b for b in range(12) if b not in fly]
    queue = []
    for b in range(16):
        queue += [(b, f) for f in stage_ops(b)]
        if b in fly: queue.append((b, lambda b=b: issue_wq(b, R4 + (b - FLY0) * 8192)))
    def issue_upto(full, extra):
        while queue and queue[0][0] <= full: queue.pop(0)[1]()
        done = 8 + (1 if full + 1 in fly else 0) - sum(1 for q in queue if q[0] == full + 1)
        while queue and queue[0][0] == full + 1 and done < extra:
            queue.pop(0)[1](); done += 1
    issue_upto(1, 0)
    if WSOFF:
        a("s_add_u32 s42, s42, 0x%x" % WSOFF); a("s_addc_u32 s43, s43, 0")
    srd(a, 20, 42, 43, min(WS_BYTES, (256 << 20) - WSOFF))
    srd(a, 44, 8, 9, 1024 * 1024 * 2)
    srd(a, 48, 10, 11, 2048 * 1024 * 2)
    srd(a, 52, 40, 41, 256)
    CAP = 64; QA = 192; WF = 32; XF = 224
    vX = [8, 9]; vW = [10, 11, 12, 13]
    a("v_and_b32 v14, 15, v0"); a("v_lshrrev_b32 v15, 4, v0")
    a("v_lshrrev_b32 v16, 1, v14"); a("v_xor_b32 v16, v16, v15")
    a("s_lshl_b32 s32, s30, 12")
    a("v_lshlrev_b32 v17, 7, v14"); a("v_add_u32 v17, s32, v17"); a("v_add_u32 v17, 0x%x, v17" % XR)
    for kq in range(2):
        a("v_xor_b32 v18, %d, v16" % (kq << 2)); a("v_lshlrev_b32 v18, 4, v18"); a("v_add_u32 v%d, v17, v18" % vX[kq])
    a("v_lshrrev_b32 v17, 2, v14"); a("v_and_b32 v18, 3, v14")
    a("v_lshlrev_b32 v19, 3, v15"); a("v_add_u32 v19, v19, v17"); a("v_lshlrev_b32 v19, 7, v19")
    a("v_lshrrev_b32 v20, 1, v17"); a("v_and_b32 v21, 1, v15"); a("v_lshlrev_b32 v21, 1, v21"); a("v_or_b32 v20, v20, v21")
    a("v_lshlrev_b32 v20, 5, v20"); a("v_lshlrev_b32 v18, 3, v18")
    a("v_add3_u32 v19, v19, v20, v18")
    for c in range(4): a("v_xor_b32 v%d, %d, v19" % (vW[c], c * 32))
    vWR = [24, 25, 26, 27]
    for c in range(4): a("v_add_u32 v%d, 0x%x, v%d" % (vWR[c], R4, vW[c]))
    for r in range(32): a("v_mov_b32 v%d, 0" % (QA + r))
    lg = Lgkm()
    def qsteps(blocks):
        steps = []
        for (xs, wv, wo) in blocks:
            for kq in range(2): steps.append((xs, wv, wo, kq))
        return steps
    state = {"st": 0}
    def q_reads(step, st):
        xs, wv, wo, kq = step
        ids = {}; fl = []
        if xs[0] == "lds":
            for t in range(2):
                def f(t=t):
                    a("ds_read_b128 %s, v%d offset:%d" % (vr(XF + st * 8 + t * 4, 4), vX[kq], xs[1] * 16384 + t * 2048)); ids["X"] = lg.issue()
                fl.append(f)
        for c in range(4):
            for hf in range(2):
                def f(c=c, hf=hf):
                    a("ds_read_b64_tr_b16 %s, v%d offset:%d" % (vr(WF + st * 16 + c * 4 + hf * 2, 2), wv[c], wo + kq * 4096 + hf * 512)); ids[c] = lg.issue()
                fl.append(f)
        return fl, ids
    def q_run(steps, hooks=None):
        hooks = hooks or {}
        st = 0
        if 0 in hooks: hooks[0]()
        rl, ids = q_reads(steps[0], st)
        for f in rl: f()
        for n, step in enumerate(steps):
            xs, wv, wo, kq = step
            nxt = n + 1 < len(steps)
            nrl = []
            k = 0
            for c in range(4):
                for t in range(2):
                    lg.need(a, ids[c])
                    if xs[0] == "lds": xr = XF + st * 8 + t * 4
                    else: xr = xs[1] + kq * 8 + t * 4
                    d = vr(QA + (t * 4 + c) * 4, 4)
                    a("v_mfma_f32_16x16x32_bf16 %s, %s, %s, %s" % (d, vr(WF + st * 16 + c * 4, 4), vr(xr, 4), d))
                    if k == 0 and nxt:
                        if n + 1 in hooks: hooks[n + 1]()
                        nrl, nids = q_reads(steps[n + 1], st ^ 1)
                    take = 2 if len(nrl) > (7 - k) else 1
                    for _ in range(take):
                        if nrl: nrl.pop(0)()
                    k += 1
            if nxt:
                while nrl: nrl.pop(0)()
                ids = nids; st ^= 1
    def capture(b):
        base = CAP + cap.index(b) * 16
        for kq in range(2):
            for t in range(2):
                a("ds_read_b128 %s, v%d offset:%d" % (vr(base + kq * 8 + t * 4, 4), vX[kq], (b & 3) * 16384 + t * 2048)); lg.issue()
    def wqpos(q): return WR + (q & 3) * 16384 + (q >> 2) * 8192
    def need_stage(b):
        vm.need(a, landed[("Q", b)] if b in fly else landed[("S", b)])
    need_stage(0)
    stamp(a, 1)
    a("s_barrier")
    for b in range(16):
        issue_upto(b + 2, RAMP[min(b, len(RAMP) - 1)])
        for x in range(4):
            if b == max(WQR[x], FLY0 + x + 1): issue_wq(12 + x, R4 + x * 8192)
        if b >= 13:
            issue_wq(cap[b - 13], wqpos(b - 13))
        if b == WOPF:
            a("v_and_b32 v28, 15, v0"); a("v_lshlrev_b32 v28, 7, v28")
            a("s_lshl_b32 s38, s2, 13"); a("s_lshl_b32 s29, s30, 11"); a("s_add_u32 s38, s38, s29")
            a("buffer_load_dword v29, v28, s[44:47], s38 offen"); vm.issue()
        if b in fly:
            q_run(qsteps([(("lds", b & 3), vWR, (b - FLY0) * 8192)]))
            lg.all(a)
        elif b < 12:
            capture(b)
            lg.all(a)
        if b == 12:
            a("s_load_dwordx4 s[4:7], s[40:41], 0")
        if b == 15:
            a("s_waitcnt lgkmcnt(0)")
            a("s_and_b64 s[4:5], s[4:5], s[6:7]"); a("s_and_b32 s4, s4, s5")
            a("s_cmp_eq_u32 s4, 0x01010101")
            a("s_cbranch_scc1 L_INITOK")
            a("v_and_b32 v28, 3, v0"); a("v_lshlrev_b32 v28, 2, v28")
            a("s_mov_b32 s35, %d" % SPIN_MAX)
            a("s_mov_b32 s29, 0x01010101")
            a.label("L_INITCHK")
            a("buffer_load_dword v29, v28, s[52:55], 0 offen sc1")
            a("s_waitcnt vmcnt(0)")
            a("v_cmp_ne_u32 vcc, s29, v29")
            a("s_cmp_eq_u64 vcc, 0")
            a("s_cbranch_scc1 L_INITOK")
            a("s_sub_u32 s35, s35, 1"); a("s_cmp_lg_u32 s35, 0")
            a("s_cbranch_scc1 L_INITCHK")
            a.label("L_INITOK")
        if b + 1 < 16: need_stage(b + 1)
        a("s_barrier")
    issue_wq(cap[3], wqpos(3))
    vm.all(a)
    a("s_barrier")
    stamp(a, 2)
    for q in range(4, 8): issue_wq(cap[q], wqpos(q))
    def wopf2():
        a("v_lshrrev_b32 v28, 3, v0"); a("v_lshlrev_b32 v28, 11, v28"); a("v_and_b32 v29, 7, v0"); a("v_lshlrev_b32 v29, 7, v29"); a("v_add_u32 v28, v28, v29")
        a("s_lshl_b32 s38, s28, 5"); a("s_lshl_b32 s29, s30, 3"); a("s_add_u32 s38, s38, s29"); a("s_lshl_b32 s38, s38, 11")
        a("s_lshr_b32 s29, s27, 2"); a("s_lshl_b32 s29, s29, 10"); a("s_add_u32 s38, s38, s29")
        a("buffer_load_dword v30, v28, s[44:47], s38 offen"); vm.issue()
    if WOPF2 == 16: wopf2()
    if QBP: a("s_setprio %d" % QBP)
    blocks = [(("lds", s), vWR, s * 8192) for s in range(4)] + [(("reg", CAP + q * 16), vW, wqpos(q)) for q in range(8)]
    def hookP():
        lg.all(a); stamp(a, 13); vm.need(a, landed[("Q", cap[7])]); a("s_barrier"); stamp(a, 15)
        if WOPF2 == 17: wopf2()
    q_run(qsteps(blocks), {PSTEP: hookP})
    if QBP: a("s_setprio 0")
    stamp(a, 3)
    a("s_lshl_b32 s32, s30, 10")
    a("v_add_u32 v14, s32, v1")
    if WOPF2: a("s_waitcnt vmcnt(0)")
    a("v_mov_b32 v28, 0x%x" % f32bits(CSC)); a("v_mov_b32 v29, 0x%x" % f32bits(CSC))
    a("s_nop 2")
    for r in range(0, 32, 2):
        a("v_pk_mul_f32 %s, %s, v[28:29]" % (vr(QA + r, 2), vr(QA + r, 2)))
    for h in range(2):
        for t in range(2):
            dst = (WF + h * 4) if t == 0 else (QF + h * 4)
            for nt in range(2):
                s0 = QA + (t * 4 + 2 * h + nt) * 4
                a("v_cvt_pk_bf16_f32 v%d, v%d, v%d" % (dst + nt * 2, s0, s0 + 1))
                a("v_cvt_pk_bf16_f32 v%d, v%d, v%d" % (dst + nt * 2 + 1, s0 + 2, s0 + 3))
        a("ds_write_b128 v14, %s offset:%d" % (vr(WF + h * 4, 4), QL + h * 4096))
    att_setup("q")
    a("s_branch L_ATT")
    a.label("L_KV")
    ACC = 64; FR = 128; PK = 192
    vXb = [4, 5]; vWb = [6, 7]; vX = [8, 9]; vW2 = [10, 11]
    def fX(st, t): return FR + st * 32 + t * 4
    def fW(st, c): return FR + st * 32 + 16 + c * 4
    def acc(t, c): return ACC + (t * 4 + c) * 4
    a("s_lshr_b32 s30, s24, 1")
    a("s_and_b32 s31, s24, 1")
    a("s_waitcnt lgkmcnt(0)")
    if WSOFF:
        a("s_add_u32 s42, s42, 0x%x" % WSOFF); a("s_addc_u32 s43, s43, 0")
    srd(a, 20, 42, 43, min(WS_BYTES, (256 << 20) - WSOFF))
    srd(a, 44, 8, 9, 1024 * 1024 * 2)
    srd(a, 48, 10, 11, 2048 * 1024 * 2)
    srd(a, 52, 40, 41, 256)
    if CPF:
        a("s_getpc_b64 s[96:97]")
        a.label("L_PC")
        a("s_sub_u32 s96, s96, L_PC-%s" % NM)
        a("s_subb_u32 s97, s97, 0")
        a("v_lshlrev_b32 v12, 7, v0")
        a("s_lshl_b32 s32, s24, 13")
        a("v_add_u32 v12, s32, v12")
        a("v_min_u32 v12, L_END-%s, v12" % NM)
        a("global_load_dword v30, v12, s[96:97]")
    a("s_or_b32 s32, s24, s26")
    a("s_cmp_lg_u32 s32, 0")
    a("s_cbranch_scc1 L_NOINIT")
    for r in range(4): a("v_mov_b32 v%d, 0" % (12 + r))
    a("v_and_b32 v16, 15, v0"); a("v_lshlrev_b32 v17, 7, v16")
    a("v_lshlrev_b32 v16, 4, v16")
    a("s_lshl_b32 s32, s25, 11"); a("s_add_u32 s32, s32, 0x%x" % FL_OFF)
    a("s_lshl_b32 s33, s25, 8"); a("s_add_u32 s33, s33, 0x%x" % C2_OFF)
    a("s_mov_b64 exec, 0xffff")
    a("buffer_store_dwordx4 v[12:15], v17, s[20:23], s32 offen sc1")
    a("buffer_store_dwordx4 v[12:15], v16, s[20:23], s33 offen sc1")
    a("s_mov_b64 exec, 1")
    a("v_mov_b32 v18, 1")
    a("s_waitcnt vmcnt(0)")
    a("buffer_store_byte v18, v12, s[52:55], s25 offen sc1")
    a("s_mov_b64 exec, -1")
    a.label("L_NOINIT")
    a("v_and_b32 v12, 15, v0"); a("v_lshrrev_b32 v13, 4, v0")
    a("v_lshrrev_b32 v14, 1, v12"); a("v_xor_b32 v14, v14, v13")
    a("s_lshl_b32 s32, s30, 13")
    a("v_lshlrev_b32 v15, 7, v12"); a("v_add_u32 v15, s32, v15"); a("v_add_u32 v15, 0x%x, v15" % XR)
    for kq in range(2):
        a("v_xor_b32 v16, %d, v14" % (kq << 2)); a("v_lshlrev_b32 v16, 4, v16"); a("v_add_u32 v%d, v15, v16" % vXb[kq])
    a("v_lshrrev_b32 v17, 2, v12"); a("v_and_b32 v18, 3, v12")
    a("v_lshlrev_b32 v20, 3, v13"); a("v_add_u32 v20, v20, v17"); a("v_lshlrev_b32 v20, 7, v20")
    a("v_lshrrev_b32 v21, 1, v17"); a("v_and_b32 v22, 1, v13"); a("v_lshlrev_b32 v22, 1, v22"); a("v_or_b32 v21, v21, v22")
    a("s_lshl_b32 s33, s31, 1")
    a("v_xor_b32 v21, s33, v21"); a("v_lshlrev_b32 v21, 5, v21"); a("v_lshlrev_b32 v22, 3, v18")
    a("v_add3_u32 v%d, v21, v22, v20" % vWb[0])
    a("v_xor_b32 v%d, 32, v%d" % (vWb[1], vWb[0]))
    for q in range(2):
        a("v_mov_b32 v%d, v%d" % (vX[q], vXb[q])); a("v_mov_b32 v%d, v%d" % (vW2[q], vWb[q]))
    for r in range(64): a("v_mov_b32 v%d, 0" % (ACC + r))
    a("s_mov_b32 s34, 16384")
    a("s_mov_b32 s35, 0")
    if LOOPSTAMP:
        a("s_lshl_b32 s61, s2, 3"); a("s_add_u32 s61, s61, s24"); a("s_lshl_b32 s61, s61, 7"); a("s_add_u32 s61, s61, 0x%x" % (DIAG_OFF + 256 * 8 * 128))
    lg = Lgkm()
    def reads(kq, st):
        ids = {}
        def rX(t):
            def f():
                a("ds_read_b128 %s, v%d offset:%d" % (vr(fX(st, t), 4), vX[kq], t * 2048)); ids["X%d" % t] = lg.issue()
            return f
        def rW(c, hf):
            def f():
                a("ds_read_b64_tr_b16 %s, v%d offset:%d" % (vr(fW(st, c) + 2 * hf, 2), vW2[c & 1], (c >> 1) * 8192 + kq * 4096 + hf * 512)); ids["W%d" % c] = lg.issue()
            return f
        l = [rX(0), rW(0, 0), rW(0, 1), rX(1), rX(2), rX(3)]
        for c in range(1, 4): l += [rW(c, 0), rW(c, 1)]
        return l, ids
    def mfma(t, c, st, ids):
        lg.need(a, max(ids["X%d" % t], ids["W%d" % c]))
        d = vr(acc(t, c), 4)
        if c < 2: a("v_mfma_f32_16x16x32_bf16 %s, %s, %s, %s" % (d, vr(fW(st, c), 4), vr(fX(st, t), 4), d))
        else:     a("v_mfma_f32_16x16x32_bf16 %s, %s, %s, %s" % (d, vr(fX(st, t), 4), vr(fW(st, c), 4), d))
    order = [(t, c) for c in range(4) for t in range(4)]
    if KVP: a("s_setprio %d" % KVP)
    a("s_barrier")
    stamp(a, 1)
    rl, ids = reads(0, 0)
    for f in rl: f()
    a.label("L_G1LOOP")
    for kq in range(2):
        st = kq
        nrl, nids = reads(kq ^ 1, st ^ 1)
        start = 0 if kq == 0 else BARN + 1
        for n, (t, c) in enumerate(order):
            mfma(t, c, st, ids)
            if kq == 1 and n < 2:
                a("v_add_u32 v%d, s34, v%d" % (vX[n], vXb[n])); a("v_add_u32 v%d, s34, v%d" % (vW2[n], vWb[n]))
            if kq == 1 and n == BARN:
                lg.all(a); a("s_barrier")
                if LOOPSTAMP:
                    a("%s s[98:99]" % ("s_memrealtime" if LOOPSTAMP == 1 else "s_memtime"))
                    a("s_waitcnt lgkmcnt(0)")
                    a("v_mov_b32 v24, s98"); a("v_mov_b32 v25, s99"); a("v_mov_b32 v26, 0")
                    a("buffer_store_dwordx2 v[24:25], v26, s[20:23], s61 offen")
                    a("s_add_u32 s61, s61, 8")
            if kq == 0 or BARN <= 3:
                if start <= n < start + 12: nrl[n - start]()
            elif n >= start:
                rem = 16 - start
                k0 = (n - start) * 12 // rem; k1 = (n - start + 1) * 12 // rem
                for q in range(k0, k1): nrl[q]()
            if kq == 0 and n == 13:
                a("s_add_u32 s35, s35, 1")
            if kq == 1 and n == 14:
                a("s_add_u32 s34, s34, 16384")
                a("s_and_b32 s34, s34, 0xffff")
                a("s_cmp_lt_u32 s35, 12")
        ids = nids
    assert lg.n - lg.done == 12, (lg.n, lg.done)
    a("s_cbranch_scc1 L_G1LOOP")
    a("s_lshl_b32 s36, s26, 1"); a("s_add_u32 s36, s36, s31"); a("s_lshl_b32 s36, s36, 7")
    a("s_lshl_b32 s37, s25, 3"); a("s_lshl_b32 s38, s30, 2"); a("s_add_u32 s37, s37, s38")
    a("s_add_u32 s36, s36, s37"); a("s_lshl_b32 s36, s36, 10")
    a("s_add_u32 s37, s36, 0x%x" % VG_OFF)
    def pk(t, s): return PK + t * 8 + s * 4
    def cvt_store(s, t):
        for nt in range(2):
            c = s * 2 + nt
            for hf in range(2):
                a("v_cvt_pk_bf16_f32 v%d, v%d, v%d" % (pk(t, s) + nt * 2 + hf, acc(t, c) + 2 * hf, acc(t, c) + 2 * hf + 1))
        a("buffer_store_dwordx4 %s, v1, s[20:23], %s offen offset:%d sc1" % (vr(pk(t, s), 4), ("s36", "s37")[s], t * 1024))
    def treads(step, st):
        sl, kq, cp = step
        ids = {}
        def rX(t):
            def f():
                a("ds_read_b128 %s, v%d offset:%d" % (vr(fX(st, t), 4), vXb[kq], sl * 16384 + t * 2048)); ids["X%d" % t] = lg.issue()
            return f
        def rW(c, hf):
            def f():
                a("ds_read_b64_tr_b16 %s, v%d offset:%d" % (vr(fW(st, c) + 2 * hf, 2), vWb[c & 1], sl * 16384 + (c >> 1) * 8192 + kq * 4096 + hf * 512)); ids["W%d" % c] = lg.issue()
            return f
        c0 = 2 * cp
        return [rX(0), rW(c0, 0), rW(c0, 1), rX(1), rX(2), rX(3), rW(c0 + 1, 0), rW(c0 + 1, 1)], ids
    steps = [(sl, kq, 0) for sl in range(4) for kq in range(2)] + [(sl, kq, 1) for sl in range(4) for kq in range(2)][1:]
    st = 0
    for n, step in enumerate(steps):
        sl, kq, cp = step
        nxt = n + 1 < len(steps)
        cs = [0, 1, 2, 3] if n == 0 else [2 * cp, 2 * cp + 1]
        nrl = []
        k = 0
        for c in cs:
            for t in range(4):
                mfma(t, c, st, ids)
                if k == 0:
                    if (nxt and n + 1 <= 8 and (n + 1) % 2 == 0) or not nxt:
                        lg.all(a); a("s_barrier")
                    if nxt: nrl, nids = treads(steps[n + 1], st ^ 1)
                take = 2 if len(nrl) > (len(cs) * 4 - 1 - k) else 1
                for _ in range(take):
                    if nrl: nrl.pop(0)()
                if n in (9, 10) and k in (1, 5): cvt_store(0, (n - 9) * 2 + (k >> 2))
                k += 1
        if nxt:
            while nrl: nrl.pop(0)()
            ids = nids; st ^= 1
    stamp(a, 2)
    a("s_lshl_b32 s32, s25, 4"); a("s_add_u32 s32, s32, s26"); a("s_lshl_b32 s32, s32, 7"); a("s_add_u32 s32, s32, 0x%x" % FL_OFF)
    a("s_lshl_b32 s33, s24, 2"); a("s_add_u32 s32, s32, s33")
    a("v_and_b32 v17, 1, v0"); a("v_add_u32 v17, 1, v17")
    a("v_cmp_ge_u32 s[60:61], s25, v17")
    a("v_lshlrev_b32 v17, 11, v17")
    a("v_cndmask_b32_e64 v17, 0, v17, s[60:61]")
    a("v_sub_u32 v17, s32, v17")
    a("buffer_load_dword v20, v17, s[20:23], 0 offen sc1")
    for t in range(4): cvt_store(1, t)
    a("s_mul_i32 s38, s31, %d" % (KVH[1] - KVH[0]))
    a("s_add_u32 s38, s38, %d" % KVH[0])
    a("s_lshl_b32 s39, s30, 12")
    a("s_add_u32 s38, s38, s39")
    a("v_add_u32 v12, s38, v1")
    a("v_lshlrev_b32 v13, 3, v0"); a("v_add_u32 v13, s38, v13")
    a("v_mov_b32 v15, 1"); a("v_mov_b32 v16, 0")
    a("s_barrier")
    for t in range(4):
        a("ds_write_b128 v12, %s offset:%d" % (vr(pk(t, 0), 4), (16 + t) * 1024))
        a("ds_write_b64 v13, %s offset:%d" % (vr(pk(t, 1), 2), 24576 + (16 + t) * 1024))
        a("ds_write_b64 v13, %s offset:%d" % (vr(pk(t, 1) + 2, 2), 24576 + (16 + t) * 1024 + 512))
    a("s_waitcnt vmcnt(0)")
    a("s_mov_b64 exec, 1")
    a("buffer_store_dword v15, v16, s[20:23], s32 offen sc1")
    a("s_mov_b64 exec, -1")
    stamp(a, 3)
    HB = 64
    def chk(lbl_ok):
        a("v_cmp_ne_u32 vcc, 1, v20")
        a("s_and_b64 s[58:59], vcc, s[60:61]")
        a("s_cmp_eq_u64 s[58:59], 0")
        a("s_cbranch_scc1 %s" % lbl_ok)
    def halo_loads(tag):
        for d in (1, 2):
            skip = "L_HSKIP%s%d" % (tag, d)
            a("s_cmp_lt_u32 s25, %d" % d)
            a("s_cbranch_scc1 %s" % skip)
            a("s_sub_u32 s38, s36, %d" % (d * 8192)); a("s_sub_u32 s39, s37, %d" % (d * 8192))
            hb = HB + (d - 1) * 32
            for t in range(4):
                a("buffer_load_dwordx4 %s, v1, s[20:23], s38 offen offset:%d sc1" % (vr(hb + t * 8, 4), t * 1024))
                a("buffer_load_dwordx4 %s, v1, s[20:23], s39 offen offset:%d sc1" % (vr(hb + t * 8 + 4, 4), t * 1024))
            a.label(skip)
    def own_writes():
        a("s_barrier")
        for t in range(4):
            a("ds_write_b128 v12, %s offset:%d" % (vr(pk(t, 0), 4), (16 + t) * 1024))
            a("ds_write_b64 v13, %s offset:%d" % (vr(pk(t, 1), 2), 24576 + (16 + t) * 1024))
            a("ds_write_b64 v13, %s offset:%d" % (vr(pk(t, 1) + 2, 2), 24576 + (16 + t) * 1024 + 512))
    chk("L_HOK")
    a("s_mov_b32 s35, %d" % SPIN_MAX)
    a.label("L_HPOLL")
    a("buffer_load_dword v20, v17, s[20:23], 0 offen sc1")
    a("s_waitcnt vmcnt(0)")
    chk("L_HOK")
    a("s_sub_u32 s35, s35, 1"); a("s_cmp_lg_u32 s35, 0")
    a("s_cbranch_scc1 L_HPOLL")
    a.label("L_HOK")
    halo_loads("a")
    att_setup("k")
    stamp(a, 13)
    a("s_cmp_lt_u32 s25, 2")
    a("s_cbranch_scc1 L_HSMALL")
    def halo_write(d, t):
        hb = HB + (d - 1) * 32; tb = (2 - d) * 8
        a("ds_write_b128 v12, %s offset:%d" % (vr(hb + t * 8, 4), (tb + t) * 1024))
        a("ds_write_b64 v13, %s offset:%d" % (vr(hb + t * 8 + 4, 2), 24576 + (tb + t) * 1024))
        a("ds_write_b64 v13, %s offset:%d" % (vr(hb + t * 8 + 6, 2), 24576 + (tb + t) * 1024 + 512))
    n = 0
    for d in (1, 2):
        for t in range(4):
            n += 2
            a("s_waitcnt vmcnt(%d)" % (16 - n))
            halo_write(d, t)
    a("s_branch L_ATT")
    a.label("L_HSMALL")
    a("s_cmp_lt_u32 s25, 1")
    a("s_cbranch_scc1 L_ATT")
    a("s_waitcnt vmcnt(0)")
    for t in range(4): halo_write(1, t)
    a.label("L_ATT")
    a("s_waitcnt lgkmcnt(0)")
    a("s_barrier")
    stamp(a, 4)
    a("s_cmp_ge_u32 s24, 4")
    a("s_cbranch_scc1 L_NOQRD")
    a("ds_read_b128 %s, v8 offset:%d" % (vr(QF, 4), QL))
    a("ds_read_b128 %s, v8 offset:%d" % (vr(QF + 4, 4), QL + 4096))
    a("v_mov_b32 v2, 0"); a("v_mov_b32 v3, 0x%x" % CNT)
    a("ds_write_b32 v3, v2")
    a("s_waitcnt lgkmcnt(0)")
    a.label("L_NOQRD")
    a("s_barrier")
    def wo_slot(p): wo_one(0, p)
    OFA = 164; OFB = 96
    def oloads(par, sl=range(8)):
        ob = (OFA, OFB)[par]
        for sx in sl:
            a("s_add_u32 s34, s101, %d" % sx); a("s_and_b32 s34, s34, 7"); a("s_lshl_b32 s34, s34, 11")
            for t in range(2):
                a("s_add_u32 s33, %s, s34" % ("s97", "s98")[t])
                a("buffer_load_dwordx4 %s, v1, s[20:23], s33 offen offset:%d sc1" % (vr(ob + sx * 8 + t * 4, 4), par * 1024))
    def signal(tag, w=True):
        if w: a("s_waitcnt vmcnt(0)")
        a("s_barrier")
        a("s_cmp_lg_u32 s24, 0")
        a("s_cbranch_scc1 L_NOSIG%s" % tag)
        a("s_mov_b64 exec, 1")
        a("v_mov_b32 v2, 1"); a("v_mov_b32 v3, 0")
        a("buffer_store_dword v2, v3, s[20:23], s39 offen sc1")
        a("s_mov_b64 exec, -1")
        a.label("L_NOSIG%s" % tag)
        a("s_add_u32 s39, s39, 128")
    if PRIO:
        a("s_cmp_lt_u32 s24, 4")
        a("s_cbranch_scc1 L_NOPRIO")
        a("s_setprio 1")
        a.label("L_NOPRIO")
    a.label("L_ROUND")
    lg = Lgkm()
    kid = {}; vid = {}
    def rdK(i):
        if i < 17:
            a("ds_read_b128 %s, v6 offset:%d" % (vr(KR + (i % 6) * 4, 4), i * 1024)); kid[i] = lg.issue()
    def rdV1(p, dt, h):
        st = VF + (p % 3) * 8
        if 2 * p + h < 17:
            a("ds_read_b64 %s, v7 offset:%d" % (vr(st + dt * 4 + h * 2, 2), (2 * p + h) * 1024 + dt * 512)); vid[(p, dt)] = lg.issue()
    def rdV(p):
        for dt in range(2):
            for h in range(2): rdV1(p, dt, h)
    def sb(p): return S + (p % 3) * 8
    def qk(i):
        if i >= 17: return
        if 1 <= i <= 15:
            a("s_cmp_eq_u32 s38, %d" % i)
            a("s_cbranch_scc1 L_CTR%d" % i)
            a.label("L_CT%d" % i)
        c0 = vr(ML, 4) if i == 0 else (vr(MH, 4) if i == 16 else vr(CT, 4))
        lg.need(a, kid[i])
        a("v_mfma_f32_16x16x32_bf16 %s, %s, %s, %s" % (vr(sb(i >> 1) + (i & 1) * 4, 4), vr(KR + (i % 6) * 4, 4), vr(QF, 4), c0))
    def exps(p, b):
        nv = 8 if p < 8 else 4
        return ["v_exp_f32 v%d, v%d" % (b + r, b + r) for r in range(nv)]
    def cvts(p, b):
        nv = 8 if p < 8 else 4
        return ["v_cvt_pk_bf16_f32 v%d, v%d, v%d" % (b + r, b + 2 * r, b + 2 * r + 1) for r in range(nv // 2)]
    def pv(p, k, b):
        st = VF + (p % 3) * 8
        if k < 2:
            lg.need(a, vid[(p, k)])
            d = vr(O + 4 * k, 4); A = st + 4 * k
        else:
            d = vr(L, 4); A = ONE
        c = "0" if p == 0 else d
        if p < 8: a("v_mfma_f32_16x16x32_bf16 %s, %s, %s, %s" % (d, vr(A, 4), vr(b, 4), c))
        else:     a("v_mfma_f32_16x16x16_bf16 %s, %s, %s, %s" % (d, vr(A, 2), vr(b, 2), c))
    for i in range(6): rdK(i)
    a("s_cmp_gt_u32 s38, 1")
    a("s_cselect_b32 s33, 0x%x, 0" % NEG)
    for r in range(4): a("v_mov_b32 v%d, s33" % (CT + r))
    rdV(0)
    for i in range(4):
        qk(i); rdK(i + 6)
    rdV(1)
    for x in exps(0, sb(0)): a(x)
    for p in range(9):
        if p < 4:
            a("s_cmp_lg_u32 s58, 0")
            a("s_cbranch_scc1 L_SK%d" % p)
            wo_slot(2 * p)
            if p < 3: wo_slot(2 * p + 1)
            else:
                a("s_cmp_eq_u32 s24, 7")
                a("s_cbranch_scc1 L_SK%d" % p)
                wo_slot(7)
            a.label("L_SK%d" % p)
        if E5 and p >= 1:
            a("s_cmp_eq_u32 s10, 1")
            a("s_cbranch_scc1 L_E5_%d" % p)
            a.label("L_E5R_%d" % p)
        if EARLY == 2 and p == EP:
            a("buffer_load_dword v9, v11, s[20:23], s96 offen sc1")
        if p == SIGP or (EARLY == 1 and p >= 6):
            a("s_cmp_lg_u32 s58, 0")
            a("s_cbranch_scc1 L_OOL%d" % p)
            a.label("L_OOLR%d" % p)
        cv = cvts(p, sb(p))
        ne = exps(p + 1, sb(p + 1)) if p < 8 else []
        qk(2 * p + 4); rdK(2 * p + 10)
        for x in cv[:2]: a(x)
        qk(2 * p + 5); rdK(2 * p + 11)
        for x in cv[2:]: a(x)
        for k in range(3):
            for x in ne[:2]: a(x)
            ne = ne[2:]
            pv(p, k, sb(p))
        if p + 2 < 9: rdV(p + 2)
        for x in ne: a(x)
    if PRIO: a("s_setprio 0")
    a("s_nop 6")
    a("v_add_f32_e64 v%d, |v%d|, |v%d|" % (MX, O, O + 1))
    a("v_add_f32_e64 v%d, |v%d|, |v%d|" % (MX + 1, O + 2, O + 3))
    for r in range(4, 8): a("v_add_f32_e64 v%d, |v%d|, v%d" % (MX + (r & 1), O + r, MX + (r & 1)))
    a("v_cmp_nle_f32 vcc, v54, v%d" % L)
    a("v_cmp_nge_f32 s[34:35], v55, v%d" % L)
    a("v_add_f32 v%d, v%d, v%d" % (MX, MX, MX + 1))
    a("s_or_b64 s[34:35], s[34:35], vcc")
    a("v_cmp_nge_f32 vcc, 0x7f000000, v%d" % MX)
    a("s_or_b64 s[34:35], s[34:35], vcc")
    if FORCE_EXACT: a("s_mov_b64 s[34:35], 1")
    a("s_cmp_eq_u64 s[34:35], 0")
    a("s_cbranch_scc1 L_FASTOK")
    lg = Lgkm(); kid = {}; vid = {}
    def rdKx(i):
        a("ds_read_b128 %s, v6 offset:%d" % (vr(KF + (i % 4) * 4, 4), i * 1024)); kid[i] = lg.issue()
    for i in range(4): rdKx(i)
    for i in range(17):
        c0 = vr(ML, 4) if i == 0 else (vr(MH, 4) if i == 16 else "0")
        lg.need(a, kid[i])
        a("v_mfma_f32_16x16x32_bf16 %s, %s, %s, %s" % (vr(S + 4 * i, 4), vr(KF + (i % 4) * 4, 4), vr(QF, 4), c0))
        if i + 4 < 17: rdKx(i + 4)
    rdV(0); rdV(1)
    a("s_nop 7")
    a("s_cmp_eq_u32 s38, 0")
    a("s_cbranch_scc1 L_NOFIX")
    for i in range(16):
        for r in range(4): a("v_mov_b32 v%d, v5" % (S + 4 * i + r))
        if i < 15:
            a("s_cmp_eq_u32 s38, %d" % (i + 1))
            a("s_cbranch_scc1 L_NOFIX")
    a.label("L_NOFIX")
    for i in range(17):
        for q in range(2):
            m = MX + q; s0 = S + 4 * i + 2 * q
            if i == 0: a("v_max_f32 v%d, v%d, v%d" % (m, s0, s0 + 1))
            else: a("v_max3_f32 v%d, v%d, v%d, v%d" % (m, m, s0, s0 + 1))
    a("v_max_f32 v%d, v%d, v%d" % (MX, MX, MX + 1))
    a("v_mov_b32 v%d, v%d" % (MX + 1, MX))
    a("v_permlane32_swap_b32 v%d, v%d" % (MX, MX + 1))
    a("v_max_f32 v%d, v%d, v%d" % (MX, MX, MX + 1))
    a("v_mov_b32 v%d, v%d" % (MX + 1, MX))
    a("v_permlane16_swap_b32 v%d, v%d" % (MX, MX + 1))
    a("v_max_f32 v%d, v%d, v%d" % (MX, MX, MX + 1))
    for p in range(9):
        b = S + 8 * p; nv = 8 if p < 8 else 4
        for r in range(nv): a("v_sub_f32 v%d, v%d, v%d" % (b + r, b + r, MX))
        for x in exps(p, b): a(x)
        for x in cvts(p, b): a(x)
        for k in range(3): pv(p, k, b)
        if p + 2 < 9: rdV(p + 2)
    a("s_nop 7")
    a.label("L_FASTOK")
    a("v_rcp_f32 v%d, v%d" % (MX, L))
    for r in range(8): a("v_mul_f32 v%d, v%d, v%d" % (O + r, O + r, MX))
    for r in range(4): a("v_cvt_pk_bf16_f32 v%d, v%d, v%d" % (S + r, O + 2 * r, O + 2 * r + 1))
    a("buffer_store_dwordx4 %s, v1, s[20:23], s37 offen sc1" % vr(S, 4))
    a("s_add_u32 s37, s37, 1024")
    a("v_add_u32 v6, %d, v6" % (KVH[1] - KVH[0])); a("v_add_u32 v7, %d, v7" % (KVH[1] - KVH[0]))
    for r in range(4): a("v_mov_b32 v%d, v%d" % (QF + r, QF + 4 + r))

    if DIAG:
        a("s_cmp_lg_u32 s58, 0")
        a("s_cbranch_scc1 L_NOST14")
        stamp(a, 14)
        a.label("L_NOST14")
    a("s_cmp_lg_u32 s58, 0")
    a("s_cbranch_scc1 L_RDONE")
    if E5:
        a("s_waitcnt vmcnt(1)")
        a("v_cmp_ne_u32 vcc, 1, v9")
        a("s_cmp_eq_u64 vcc, 0")
        a("s_cselect_b32 s10, 1, 0")
    a("s_mov_b32 s58, 1")
    a("s_branch L_ROUND")
    a.label("L_RDONE")
    stamp(a, 5)
    if EARLY == 2:
        a("s_cmp_eq_u32 s10, 1")
        a("s_cbranch_scc1 L_E2NO")
        a("s_waitcnt vmcnt(1)")
        a("v_cmp_ne_u32 vcc, 1, v9")
        a("s_cmp_lg_u64 vcc, 0")
        a("s_cbranch_scc1 L_E2NO")
        oloads(0, range(EK))
        a("s_mov_b32 s99, 1")
        a("s_waitcnt vmcnt(%d)" % (2 * EK))
        a("s_branch L_E2J")
        a.label("L_E2NO")
        a("s_waitcnt vmcnt(0)")
        a.label("L_E2J")
        signal("1", False)
    else:
        signal("1")
    stamp(a, 6)
    A2 = 16; F2 = 48
    a("v_mov_b32 v15, v11")
    a("v_and_b32 v12, 15, v0"); a("v_lshrrev_b32 v13, 4, v0")
    a("v_lshrrev_b32 v17, 2, v12"); a("v_and_b32 v18, 3, v12")
    a("v_lshlrev_b32 v19, 2, v13"); a("v_add_u32 v19, v19, v17")
    a("v_lshrrev_b32 v20, 1, v19"); a("v_and_b32 v20, 3, v20")
    a("v_lshlrev_b32 v19, 7, v19"); a("v_lshlrev_b32 v20, 5, v20"); a("v_lshlrev_b32 v18, 3, v18")
    a("v_add3_u32 v19, v19, v20, v18")
    a("s_lshl_b32 s31, s30, 15")
    a("v_add_u32 v19, s31, v19")
    AE = [4, 5, 6, 7]; AO = [8, 9, 11, 14]
    for nt in range(4):
        a("v_xor_b32 v20, %d, v19" % (nt * 32))
        a("v_add_u32 v%d, %d, v20" % (AE[nt], WOE)); a("v_add_u32 v%d, 0x%x, v20" % (AO[nt], WOO))
    for r in range(32): a("v_mov_b32 v%d, 0" % (A2 + r))
    if WF1ST:
        a("s_cmp_lg_u32 s24, 7")
        a("s_cbranch_scc1 L_NOC63")
        wo_slot(7)
        a.label("L_NOC63")
        wo_dma(1, 0, 8)
    a("s_cmp_eq_u32 s10, 1")
    a("s_cbranch_scc1 L_HAVEALL")
    a("s_cmp_eq_u32 s99, 1")
    a("s_cbranch_scc1 L_HAVEA")
    pollf(a, "s96", "L_PC0")
    oloads(0, range(EK))
    a.label("L_HAVEA")
    oloads(0, range(EK, 8))
    a.label("L_HAVEALL")
    if not WF1ST:
        a("s_cmp_lg_u32 s24, 7")
        a("s_cbranch_scc1 L_NOC63")
        wo_slot(7)
        a.label("L_NOC63")
    stamp(a, 7)
    a("v_and_b32 v15, 15, v0"); a("v_lshlrev_b32 v15, 2, v15")
    a("s_add_u32 s96, s96, 128")
    lg = Lgkm()
    def wreads(par, s):
        st = s & 1
        ids = {}
        fl = []
        for nt in range(4):
            for hf in range(2):
                def f(nt=nt, hf=hf):
                    a("ds_read_b64_tr_b16 %s, v%d offset:%d" % (vr(F2 + st * 16 + nt * 4 + hf * 2, 2), (AE, AO)[par][nt], s * 4096 + hf * 2048))
                    ids[nt] = lg.issue()
                fl.append(f)
        return fl, ids
    PSL = int(os.environ.get("PSL", "5"))
    for par in range(2):
        ob = (OFA, OFB)[par]
        if par == 1:
            stamp(a, 9)
            if not NOBH:
                a("s_waitcnt vmcnt(16)")
                a("s_barrier")
        rl, ids = wreads(par, 0)
        for f in rl: f()
        for s in range(8):
            st = s & 1
            if s + 1 < 8: nrl, nids = wreads(par, s + 1)
            extra = []
            if par == 0 and s == PB0:
                a("s_cmp_lg_u32 s24, 0")
                a("s_cbranch_scc1 L_NOPB0")
                a("buffer_load_dword v2, v15, s[20:23], s96 offen sc1")
                a.label("L_NOPB0")
            if par == 0:
                if s < BGS:
                    if WF1ST:
                        a("s_waitcnt vmcnt(%d)" % (14 - 2 * s))
                    else:
                        a("s_waitcnt vmcnt(%d)" % (14 - 2 * s + 2 * s))
                        extra = [lambda q=2 * s: wo_one(1, q), lambda q=2 * s + 1: wo_one(1, q)]
                if s == BGS:
                    a("s_cmp_lg_u32 s24, 0")
                    a("s_cbranch_scc1 L_NOPOLL")
                    if PB0 >= 0:
                        a("s_waitcnt vmcnt(%d)" % (2 * (BGS - PB0)))
                        a("v_cmp_ne_u32 vcc, 1, v2")
                        a("s_cmp_eq_u64 vcc, 0")
                        a("s_cbranch_scc1 L_NOPOLL")
                    if WARMB:
                        a("v_lshrrev_b32 v3, 3, v0"); a("v_lshlrev_b32 v3, 15, v3"); a("v_and_b32 v80, 7, v0"); a("v_lshlrev_b32 v80, 7, v80"); a("v_add_u32 v3, v3, v80")
                        a("s_lshl_b32 s4, s56, 18"); a("s_add_u32 s4, s4, 0x%x" % (OG_OFF + 1024))
                        a("s_mov_b32 s5, 0")
                        a("s_mov_b32 s35, %d" % SPIN_MAX)
                        a.label("L_PC1")
                        a("buffer_load_dword v2, v15, s[20:23], s96 offen sc1")
                        a("s_waitcnt vmcnt(0)")
                        a("v_cmp_eq_u32 vcc, 1, v2")
                        a("s_and_b32 s6, vcc_lo, 0xffff")
                        a("s_cmp_eq_u32 s6, 0xffff")
                        a("s_cbranch_scc1 L_NOPOLL")
                        a("s_andn2_b32 s7, s6, s5")
                        a("s_mov_b32 s5, s6")
                        a.label("L_WB")
                        a("s_cmp_eq_u32 s7, 0")
                        a("s_cbranch_scc1 L_WBD")
                        a("s_ff1_i32_b32 s8, s7")
                        a("s_bitset0_b32 s7, s8")
                        a("s_lshl_b32 s8, s8, 11"); a("s_add_u32 s8, s8, s4")
                        a("buffer_load_dword v80, v3, s[20:23], s8 offen sc1")
                        a("s_branch L_WB")
                        a.label("L_WBD")
                        a("s_sub_u32 s35, s35, 1")
                        a("s_cmp_lg_u32 s35, 0")
                        a("s_cbranch_scc1 L_PC1")
                    else:
                        pollf(a, "s96", "L_PC1")
                    a.label("L_NOPOLL")
                    if not WF1ST: a("s_waitcnt vmcnt(%d)" % (0 if NOBH else 8))
                    a("s_barrier")
                    stamp(a, 8)
                if s >= BGS:
                    k0 = min(8, (s - BGS) * BLN); k1 = min(8, (s - BGS + 1) * BLN)
                    if WF1ST: a("s_waitcnt vmcnt(%d)" % (14 - 2 * s + 2 * k0))
                    extra = [lambda q=q: oloads(1, [q]) for q in range(k0, k1)]
            else:
                a("s_waitcnt vmcnt(%d)" % (14 - 2 * s))
            n = 0
            for nt in range(4):
                lg.need(a, ids[nt])
                for t in range(2):
                    d = vr(A2 + (t * 4 + nt) * 4, 4)
                    a("v_mfma_f32_16x16x32_bf16 %s, %s, %s, %s" % (d, vr(F2 + st * 16 + nt * 4, 4), vr(ob + s * 8 + t * 4, 4), d))
                    if s + 1 < 8: nrl[n]()
                    if n in ((0, 3) if BLN == 2 else (0, 2, 4, 6)) and extra: extra.pop(0)()
                    n += 1
            assert not extra
            if s + 1 < 8: ids = nids
    stamp(a, 10)
    a("s_lshl_b32 s33, s24, 12"); a("s_add_u32 s33, s33, 0x%x" % RED)
    a("v_add_u32 v2, s33, v1")
    a("v_xor_b32 v3, 0x4000, v2")
    a("v_lshlrev_b32 v12, 11, v12")
    a("v_and_b32 v15, 1, v13"); a("v_lshlrev_b32 v15, 5, v15")
    a("v_lshrrev_b32 v13, 1, v13"); a("v_lshlrev_b32 v13, 4, v13")
    a("v_add3_u32 v12, v12, v15, v13")
    a("s_lshl_b32 s32, s32, 15")
    a("s_lshl_b32 s33, s57, 7"); a("s_add_u32 s32, s32, s33")
    for q in range(4): a("ds_write_b128 v2, %s offset:%d" % (vr(A2 + 16 + q * 4, 4), q * 1024))
    a("s_waitcnt lgkmcnt(0)")
    a("s_barrier")
    for q in range(4): a("ds_read_b128 %s, v3 offset:%d" % (vr(OFB + q * 4, 4), q * 1024))
    for pr in range(2):
        b = F2 + pr * 4
        for h in range(2):
            nt = pr * 2 + h
            s0 = A2 + nt * 4
            a("s_waitcnt lgkmcnt(%d)" % (3 - nt))
            for r in range(0, 4, 2):
                a("v_pk_add_f32 %s, %s, %s" % (vr(s0 + r, 2), vr(s0 + r, 2), vr(OFB + nt * 4 + r, 2)))
            a("v_cvt_pk_bf16_f32 v%d, v%d, v%d" % (b + 2 * h, s0, s0 + 1))
            a("v_cvt_pk_bf16_f32 v%d, v%d, v%d" % (b + 2 * h + 1, s0 + 2, s0 + 3))
        a("v_permlane16_swap_b32 v%d, v%d" % (b, b + 2))
        a("v_permlane16_swap_b32 v%d, v%d" % (b + 1, b + 3))
        a("buffer_store_dwordx4 %s, v12, s[48:51], s32 offen offset:%d" % (vr(b, 4), pr * 64))
    if DIAG:
        a("s_waitcnt vmcnt(0)")
        stamp(a, 11)
        stamp_flush(a)
    a("s_endpgm")
    a.label("L_OOL%d" % SIGP)
    a("s_waitcnt vmcnt(0)")
    a("s_mov_b64 exec, 1")
    a("v_mov_b32 v2, 1"); a("v_mov_b32 v3, 0x%x" % CNT)
    a("ds_add_rtn_u32 v3, v3, v2")
    a("s_waitcnt lgkmcnt(0)")
    a("v_readfirstlane_b32 s33, v3")
    a("s_cmp_lg_u32 s33, 7")
    a("s_cbranch_scc1 L_NOSIG0")
    a("v_mov_b32 v3, 0")
    a("buffer_store_dword v2, v3, s[20:23], s39 offen sc1")
    a.label("L_NOSIG0")
    a("s_mov_b64 exec, -1")
    a("s_add_u32 s39, s39, 128")
    if EARLY == 1: a("buffer_load_dword v9, v11, s[20:23], s96 offen sc1")
    a("s_branch L_OOLR%d" % SIGP)
    if EARLY == 1:
        for p in (6, 7, 8):
            a.label("L_OOL%d" % p)
            if p == 6:
                a("s_waitcnt vmcnt(0)")
                a("v_cmp_ne_u32 vcc, 1, v9")
                a("s_cmp_eq_u64 vcc, 0")
                a("s_cselect_b32 s99, 1, 0")
            a("s_cmp_eq_u32 s99, 0")
            a("s_cbranch_scc1 L_OOLR%d" % p)
            oloads(0, {6: range(0, 3), 7: range(3, 6), 8: range(6, 8)}[p])
            a("s_branch L_OOLR%d" % p)
    if E5:
        for p in range(1, 9):
            a.label("L_E5_%d" % p)
            oloads(0, [p - 1])
            a("s_branch L_E5R_%d" % p)
    for i in range(1, 16):
        a.label("L_CTR%d" % i)
        a("s_nop 3")
        for r in range(4): a("v_mov_b32 v%d, 0" % (CT + r))
        a("s_nop 1")
        a("s_branch L_CT%d" % i)
    a.label("L_END")
    a("s_endpgm")
    a.fix_hazards()
    return a.text()

DOC = """;
;
"""
def main():
    nm = "standalone__sliding_block__prompt_kernel"
    hdr = open("standalone__sliding_block__prompt.s.ref").read().split("; Override")[0]
    out = hdr
    out += "; @launch grid=(256,1,1) block=(512,1,1) lds=163840\n"
    out += DOC
    out += '.amdgcn_target "amdgcn-amd-amdhsa--gfx950"\n.text\n'
    out += kernel_header(nm) + build()
    out += '.section .rodata,"a"\n.p2align 6\n' + kernel_desc(nm, 240, 102, 240)
    open(sys.argv[1] if len(sys.argv) > 1 else "standalone__sliding_block__prompt.s", "w").write(out)
main()
```

```python
import sys, os, struct
from asmlib import *

DIAG = int(os.environ.get("DIAG", "0"))
KG_OFF = 0
VG_OFF = 4 << 20
OG_OFF = 8 << 20
FL_OFF = 12 << 20
C2_OFF = FL_OFF + 65536
WS_BYTES = 64 << 20
DIAG_OFF = 32 << 20
SPIN_MAX = 200000
WSOFF = int(os.environ.get("WSOFF", "0")) << 20
WQR = [int(x) for x in os.environ.get("WQR", "8,9,10,11").split(",")]
WARMB = int(os.environ.get("WARMB", "0"))
PB0 = int(os.environ.get("PB0", "-1"))
BLN = int(os.environ.get("BLN", "2"))
NOBH = int(os.environ.get("NOBH", "0"))
PSTEP = int(os.environ.get("PSTEP", "10"))
XPOLL = int(os.environ.get("XPOLL", "1"))
KORD = os.environ.get("KORD", "")
CSEQ = [int(x) for x in os.environ.get("CSEQ", "0,2,1,3,4,6,5,7,8,10,9,11,12,14,13,15").split(",")]
assert sorted(CSEQ) == list(range(16))
NTX = int(os.environ.get("NTX", "0"))
NTW = int(os.environ.get("NTW", "0"))
WOPF2 = int(os.environ.get("WOPF2", "0"))
WF1ST = int(os.environ.get("WF1ST", "0"))
BGS = int(os.environ.get("BGS", "4"))
E5 = int(os.environ.get("E5", "0"))
EK = int(os.environ.get("EK", "2"))
KVP = int(os.environ.get("KVP", "0"))
QBP = int(os.environ.get("QBP", "0"))
BARN = int(os.environ.get("BARN", "2"))
EP = int(os.environ.get("EP", "6"))
RAMP = [int(x) for x in os.environ.get("RAMP", "2,4,6,9").split(",")]
NOATOM = int(os.environ.get("NOATOM", "0"))
ROT2 = int(os.environ.get("ROT2", "7"))
SIGP = int(os.environ.get("SIGP", "2"))
CNT = 65536 - 1024
FORCE_EXACT = int(os.environ.get("FORCE_EXACT", "0"))
FLY0 = int(os.environ.get("FLY0", "4"))
EARLY = int(os.environ.get("EARLY", "2"))
LA3 = int(os.environ.get("LA3", "3"))
LOOPSTAMP = int(os.environ.get("LOOPSTAMP", "0"))
PRIO = int(os.environ.get("PRIO", "1"))
WOPF = int(os.environ.get("WOPF", "99"))
CPF = int(os.environ.get("CPF", "1"))
NM = "standalone__sliding_block__prompt_kernel"

def f32bits(x): return struct.unpack("<I", struct.pack("<f", x))[0]
CSC = (32 ** -0.5) * 1.4426950408889634
NEG = f32bits(-1.0e30)

class Cnt:
    def __init__(self, name, mx): self.n = 0; self.done = 0; self.name = name; self.mx = mx
    def issue(self): self.n += 1; return self.n
    def need(self, a, idn):
        if idn <= self.done: return
        cnt = min(self.n - idn, self.mx)
        a("s_waitcnt %s(%d)" % (self.name, cnt)); self.done = self.n - cnt
    def all(self, a):
        a("s_waitcnt %s(0)" % self.name); self.done = self.n
def Lgkm(): return Cnt("lgkmcnt", 15)
def Vm(): return Cnt("vmcnt", 63)

def vr(b, n): return "v[%d:%d]" % (b, b + n - 1)
def srd(a, d, lo, hi, nbytes):
    a("s_mov_b32 s%d, s%d" % (d, lo)); a("s_mov_b32 s%d, s%d" % (d + 1, hi))
    a("s_mov_b32 s%d, 0x%x" % (d + 2, nbytes)); a("s_mov_b32 s%d, 0x00020000" % (d + 3))

SB = 64
NSLOT = 16
def stamp(a, slot):
    if not DIAG: return
    a("s_memrealtime s[%d:%d]" % (SB + 2 * slot, SB + 2 * slot + 1))
    a("s_waitcnt lgkmcnt(0)")
AMP = int(os.environ.get("AMP", "-1"))
def stamp_flush(a):
    if not DIAG: return
    if AMP >= 0:
        a("s_sub_u32 s62, s%d, s%d" % (SB + 2 * AMP, SB))
        a("s_add_u32 s62, s62, s%d" % (SB + 2 * 11))
        a.label("L_AMP")
        a("s_memrealtime s[60:61]")
        a("s_waitcnt lgkmcnt(0)")
        a("s_sub_u32 s60, s60, s62")
        a("s_cmp_lt_i32 s60, 0")
        a("s_cbranch_scc1 L_AMP")
        return
    t = 62
    a("s_lshl_b32 s%d, s2, 3" % t); a("s_add_u32 s%d, s%d, s24" % (t, t)); a("s_lshl_b32 s%d, s%d, 7" % (t, t))
    a("s_add_u32 s%d, s%d, 0x%x" % (t, t, DIAG_OFF))
    a("v_mov_b32 v4, 0")
    for sl in range(NSLOT):
        a("v_mov_b32 v2, s%d" % (SB + 2 * sl)); a("v_mov_b32 v3, s%d" % (SB + 2 * sl + 1))
        a("buffer_store_dwordx2 v[2:3], v4, s[20:23], s%d offen offset:%d" % (t, sl * 8))
        a("s_nop 1")

def pollf(a, soff, name, va=15, vt=2, sc=35):
    a("s_mov_b32 s%d, %d" % (sc, SPIN_MAX))
    a.label(name)
    a("buffer_load_dword v%d, v%d, s[20:23], %s offen sc1" % (vt, va, soff))
    a("s_waitcnt vmcnt(0)")
    a("v_cmp_ne_u32 vcc, 1, v%d" % vt)
    a("s_cmp_eq_u64 vcc, 0")
    a("s_cbranch_scc1 %s_ok" % name)
    a("s_sub_u32 s%d, s%d, 1" % (sc, sc))
    a("s_cmp_lg_u32 s%d, 0" % sc)
    a("s_cbranch_scc1 %s" % name)
    a.label(name + "_ok")

def poll(a, soff, cmp_op, val, name, srdn=20, vt=2, vz=3, st=34, sc=35):
    a("v_mov_b32 v%d, 0" % vz)
    a("s_mov_b32 s%d, %d" % (sc, SPIN_MAX))
    a.label(name)
    a("buffer_load_dword v%d, v%d, s[%d:%d], %s offen sc1" % (vt, vz, srdn, srdn + 3, soff))
    a("s_waitcnt vmcnt(0)")
    a("v_readfirstlane_b32 s%d, v%d" % (st, vt))
    a("s_cmp_%s_u32 s%d, %s" % (cmp_op, st, val))
    a("s_cbranch_scc1 %s_ok" % name)
    a("s_sub_u32 s%d, s%d, 1" % (sc, sc))
    a("s_cmp_lg_u32 s%d, 0" % sc)
    a("s_cbranch_scc1 %s" % name)
    a.label(name + "_ok")

WR = 0
XR = 65536
R4 = 131072
KVH = [65536, 114688]
QL = 0
WOE = 0
WOO = 65536
RED = 131072
QF = 16

def build():
    a = Asm()
    def wo_one(par, p):
        a("s_add_u32 m0, s61, %d" % ((WOE, WOO)[par] + p * 8192))
        a("s_add_u32 s33, s100, %d" % (2 * p)); a("s_and_b32 s33, s33, 7"); a("s_lshl_b32 s33, s33, 17")
        a("s_add_u32 s33, s33, s60")
        off = ((8 if p >= 4 else 0) * 64 + 32 * par) * 2048
        if off: a("s_add_u32 s33, s33, 0x%x" % off)
        a("buffer_load_dwordx4 v10, s[44:47], s33 offen lds")
    def wo_dma(par, first, count):
        for i in range(count): wo_one(par, first // 2 + i)
    ML = 24; MH = 28; ONE = 32; O = 36; L = 44; CC = 48; MC = 50; MX = 52; KF = 56; VF = 72; S = 96
    CT = 48
    KR = 120
    def att_setup(tag):
        a("s_and_b32 s56, s27, 3"); a("s_lshl_b32 s56, s56, 2"); a("s_and_b32 s29, s28, 3"); a("s_add_u32 s56, s56, s29")
        a("s_lshr_b32 s57, s27, 2"); a("s_lshl_b32 s57, s57, 3"); a("s_lshr_b32 s29, s28, 2"); a("s_add_u32 s57, s57, s29")
        a("v_lshrrev_b32 v4, 3, v0"); a("v_and_b32 v5, 7, v0"); a("v_lshrrev_b32 v6, 4, v0")
        a("v_lshlrev_b32 v6, 1, v6"); a("v_xor_b32 v6, v6, v5"); a("v_lshlrev_b32 v6, 4, v6")
        a("v_lshlrev_b32 v10, 11, v4"); a("v_add_u32 v10, v10, v6")
        a("s_lshl_b32 s30, s57, 7")
        a("v_add_u32 v10, s30, v10")
        a("s_lshl_b32 s61, s24, 10")
        a("s_and_b32 s60, s24, 3"); a("s_lshl_b32 s60, s60, 14")
        a("s_and_b32 s101, s57, %d" % ROT2)
        a("s_lshr_b32 s100, s24, 2"); a("s_add_u32 s100, s100, s101")
        a("s_waitcnt lgkmcnt(0)")
        a("v_and_b32 v2, 15, v0")
        a("v_lshrrev_b32 v3, 4, v0"); a("v_lshlrev_b32 v3, 2, v3")
        a("v_sub_u32 v4, v2, v3")
        a("v_mov_b32 v5, 0x%x" % NEG)
        for r in range(4):
            a("v_cmp_le_i32 vcc, %d, v4" % r)
            a("v_cndmask_b32_e64 v%d, v5, 0, vcc" % (MH + r))
            a("v_cndmask_b32_e64 v%d, 0, v5, vcc" % (ML + r))
        for r in range(4): a("v_mov_b32 v%d, 0x3f803f80" % (ONE + r))

        a("s_and_b32 s31, s24, 3"); a("s_lshl_b32 s31, s31, 1"); a("s_lshr_b32 s32, s24, 2"); a("s_add_u32 s31, s31, s32")
        a("s_lshl_b32 s36, s31, 10")
        a("v_add_u32 v6, s36, v1")
        a("v_lshlrev_b32 v7, 3, v0"); a("v_add_u32 v7, s36, v7")
        a("v_add_u32 v6, 0x%x, v6" % KVH[0]); a("v_add_u32 v7, 0x%x, v7" % (KVH[0] + 24576))
        a("v_add_u32 v8, s61, v1")
        a("s_lshl_b32 s37, s25, 3"); a("s_add_u32 s37, s37, s31"); a("s_lshl_b32 s37, s37, 5")
        a("s_lshl_b32 s38, s26, 1"); a("s_add_u32 s37, s37, s38"); a("s_lshl_b32 s37, s37, 10")
        a("s_add_u32 s37, s37, 0x%x" % OG_OFF)
        a("s_lshl_b32 s38, s25, 3"); a("s_add_u32 s38, s38, s31")
        a("s_sub_i32 s38, 16, s38"); a("s_max_i32 s38, s38, 0")
        a("s_lshl_b32 s39, s25, 8"); a("s_lshl_b32 s33, s26, 2"); a("s_add_u32 s39, s39, s33"); a("s_add_u32 s39, s39, 0x%x" % C2_OFF)
        a("s_lshr_b32 s30, s24, 2")
        a("s_lshl_b32 s96, s56, 8"); a("s_lshl_b32 s33, s30, 5"); a("s_add_u32 s96, s96, s33"); a("s_add_u32 s96, s96, 0x%x" % C2_OFF)
        a("v_and_b32 v11, 7, v0"); a("v_lshlrev_b32 v11, 2, v11")
        a("s_and_b32 s33, s24, 3"); a("s_lshl_b32 s33, s33, 1")
        a("s_lshl_b32 s32, s56, 3"); a("s_add_u32 s32, s32, s33")
        a("s_lshl_b32 s97, s32, 15"); a("s_lshl_b32 s33, s30, 14"); a("s_add_u32 s97, s97, s33"); a("s_add_u32 s97, s97, 0x%x" % OG_OFF)
        a("s_lshl_b32 s33, s30, 15")
        a("s_add_u32 s98, s97, 32768"); a("s_sub_u32 s98, s98, s33")
        a("s_add_u32 s97, s97, s33")
        a("s_add_u32 s32, s32, s30")
        a("s_mov_b32 s99, 0")
        a("s_mov_b32 s10, 0")
        a("s_mov_b32 s58, 0")

        a("s_cmp_eq_u32 s38, 0")
        a("s_cbranch_scc1 L_MLOK"+tag+"")
        for r in range(4): a("v_mov_b32 v%d, v5" % (ML + r))
        a.label("L_MLOK"+tag+"")
        a("s_mov_b32 s34, 0x%x" % f32bits(2.0 ** -24)); a("s_mov_b32 s35, 0x%x" % f32bits(2.0 ** 40))
        a("v_mov_b32 v54, s34"); a("v_mov_b32 v55, s35")

    a("s_cmp_ge_u32 s2, 256")
    a("s_cbranch_scc1 L_END")
    a("s_load_dwordx8 s[4:11], s[0:1], 0")
    a("s_load_dwordx4 s[40:43], s[0:1], 32")
    if CPF == 2:
        a("s_getpc_b64 s[96:97]")
        a.label("L_PC")
        a("v_lshlrev_b32 v2, 6, v0")
        a("v_min_u32 v2, L_END-L_PC, v2")
        a("global_load_dword v31, v2, s[96:97]")
    if DIAG:
        for sl in range(1, NSLOT): a("s_mov_b64 s[%d:%d], 0" % (SB + 2 * sl, SB + 2 * sl + 1))
        a("s_memrealtime s[%d:%d]" % (SB, SB + 1))
    a("v_lshrrev_b32 v1, 6, v0")
    a("v_readfirstlane_b32 s24, v1")
    a("v_and_b32 v0, 63, v0")
    a("s_and_b32 s27, s2, 7")
    a("s_lshr_b32 s28, s2, 3")
    a("s_and_b32 s25, s27, 1"); a("s_lshl_b32 s25, s25, 3"); a("s_and_b32 s29, s28, 7"); a("s_add_u32 s25, s25, s29")
    a("s_lshr_b32 s26, s27, 1"); a("s_lshl_b32 s26, s26, 2"); a("s_lshr_b32 s29, s28, 3"); a("s_add_u32 s26, s26, s29")
    a("v_lshlrev_b32 v1, 4, v0")
    a("s_cmp_lt_u32 s24, 4")
    a("s_cbranch_scc1 L_KV")
    a("s_sub_u32 s30, s24, 4")
    a("v_lshrrev_b32 v4, 3, v0")
    a("v_and_b32 v5, 7, v0")
    a("v_lshrrev_b32 v6, 4, v0")
    a("s_and_b32 s31, s30, 1")
    a("s_lshl_b32 s32, s31, 2")
    a("v_or_b32 v7, s32, v6")
    a("v_xor_b32 v7, v7, v5")
    a("v_lshlrev_b32 v7, 4, v7")
    a("v_lshlrev_b32 v2, 11, v4")
    a("v_add_u32 v2, v2, v7")
    a("s_lshl_b32 s32, s25, 7"); a("s_lshl_b32 s33, s30, 3"); a("s_add_u32 s32, s32, s33"); a("s_lshl_b32 s32, s32, 11")
    a("v_add_u32 v2, s32, v2")
    a("v_and_b32 v7, 1, v6")
    a("s_lshl_b32 s32, s31, 1")
    a("v_or_b32 v7, s32, v7")
    a("v_lshlrev_b32 v7, 1, v7")
    a("v_xor_b32 v7, v7, v5")
    a("v_lshlrev_b32 v7, 4, v7")
    a("v_mul_u32_u24 v3, 0x1800, v4")
    a("v_add_u32 v3, v3, v7")
    a("s_mul_i32 s32, s30, %d" % (8 * 6144)); a("s_lshl_b32 s33, s26, 7"); a("s_add_u32 s32, s32, s33")
    a("v_add_u32 v3, s32, v3")
    a("s_lshl_b32 s34, s30, 10")
    if KORD == "xor":
        a("s_and_b32 s59, s28, 7"); a("s_lshl_b32 s59, s59, 1"); a("s_and_b32 s60, s27, 1"); a("s_or_b32 s59, s59, s60"); a("s_xor_b32 s59, s59, s26")
    elif int(os.environ.get("ROTMJ", "1")):
        if os.environ.get("ROTSUB"): a("s_sub_u32 s59, s25, s26"); a("s_add_u32 s59, s59, 16")
        else: a("s_add_u32 s59, s25, s26")
        if os.environ.get("RSH"): a("s_lshl_b32 s59, s59, %s" % os.environ["RSH"])
    else:
        a("s_lshr_b32 s59, s28, 3"); a("s_lshl_b32 s59, s59, 2"); a("s_and_b32 s60, s28, 7"); a("s_lshl_b32 s60, s60, 1")
        a("s_add_u32 s59, s59, s60"); a("s_lshr_b32 s60, s27, 1"); a("s_add_u32 s59, s59, s60"); a("s_and_b32 s60, s27, 1"); a("s_add_u32 s59, s59, s60")
    a("s_waitcnt lgkmcnt(0)")
    srd(a, 12, 4, 5, 2048 * 1024 * 2)
    srd(a, 16, 6, 7, 1024 * 3072 * 2)
    vm = Vm()
    landed = {}
    def kbregs(b):
        if KORD == "xor": a("s_xor_b32 s35, s59, %d" % CSEQ[b])
        elif KORD == "zig":
            off = ((b + 1) // 2 if b & 1 else -(b // 2)) & 15
            a("s_add_u32 s35, s59, %d" % off); a("s_and_b32 s35, s35, 15")
        else:
            a("s_add_u32 s35, s59, %d" % b); a("s_and_b32 s35, s35, 15")
        a("s_lshl_b32 s36, s35, 7"); a("s_mul_i32 s37, s35, 393216")
    cur = {"kb": None}
    def kbr(b):
        if cur["kb"] != b: kbregs(b); cur["kb"] = b
    def stage_ops(b):
        sl = b & 3
        ops = []
        for i in range(4):
            def f(i=i):
                kbr(b)
                a("s_add_u32 m0, s34, %d" % (XR + sl * 16384 + i * 4096))
                a("s_add_u32 s38, s36, %d" % (i * 65536))
                a("buffer_load_dwordx4 v2, s[12:15], s38 offen %slds" % ("nt " if b < NTX else "")); landed[("S", b)] = vm.issue()
            ops.append(f)
        for s in range(2):
            for gg in range(2):
                def f(s=s, gg=gg):
                    kbr(b)
                    a("s_add_u32 m0, s34, %d" % (WR + sl * 16384 + s * 8192 + gg * 4096))
                    a("s_add_u32 s38, s37, %d" % (gg * 196608 + (s + 1) * 2048))
                    a("buffer_load_dwordx4 v3, s[16:19], s38 offen %slds" % ("nt " if b < NTW else "")); landed[("S", b)] = vm.issue()
                ops.append(f)
        return ops
    def issue_wq(b, ldsoff, regs=True):
        kbr(b)
        for gg in range(2):
            a("s_add_u32 m0, s34, %d" % (ldsoff + gg * 4096))
            if gg: a("s_add_u32 s38, s37, 196608")
            a("buffer_load_dwordx4 v3, s[16:19], %s offen lds" % ("s37", "s38")[gg]); landed[("Q", b)] = vm.issue()
    stamp(a, 12)
    fly = list(range(FLY0, FLY0 + 4))
    cap = [b for b in range(12) if b not in fly]
    queue = []
    for b in range(16):
        queue += [(b, f) for f in stage_ops(b)]
        if b in fly: queue.append((b, lambda b=b: issue_wq(b, R4 + (b - FLY0) * 8192)))
    def issue_upto(full, extra):
        while queue and queue[0][0] <= full: queue.pop(0)[1]()
        done = 8 + (1 if full + 1 in fly else 0) - sum(1 for q in queue if q[0] == full + 1)
        while queue and queue[0][0] == full + 1 and done < extra:
            queue.pop(0)[1](); done += 1
    issue_upto(1, 0)
    if WSOFF:
        a("s_add_u32 s42, s42, 0x%x" % WSOFF); a("s_addc_u32 s43, s43, 0")
    srd(a, 20, 42, 43, min(WS_BYTES, (256 << 20) - WSOFF))
    srd(a, 44, 8, 9, 1024 * 1024 * 2)
    srd(a, 48, 10, 11, 2048 * 1024 * 2)
    srd(a, 52, 40, 41, 256)
    CAP = 64; QA = 192; WF = 32; XF = 224
    vX = [8, 9]; vW = [10, 11, 12, 13]
    a("v_and_b32 v14, 15, v0"); a("v_lshrrev_b32 v15, 4, v0")
    a("v_lshrrev_b32 v16, 1, v14"); a("v_xor_b32 v16, v16, v15")
    a("s_lshl_b32 s32, s30, 12")
    a("v_lshlrev_b32 v17, 7, v14"); a("v_add_u32 v17, s32, v17"); a("v_add_u32 v17, 0x%x, v17" % XR)
    for kq in range(2):
        a("v_xor_b32 v18, %d, v16" % (kq << 2)); a("v_lshlrev_b32 v18, 4, v18"); a("v_add_u32 v%d, v17, v18" % vX[kq])
    a("v_lshrrev_b32 v17, 2, v14"); a("v_and_b32 v18, 3, v14")
    a("v_lshlrev_b32 v19, 3, v15"); a("v_add_u32 v19, v19, v17"); a("v_lshlrev_b32 v19, 7, v19")
    a("v_lshrrev_b32 v20, 1, v17"); a("v_and_b32 v21, 1, v15"); a("v_lshlrev_b32 v21, 1, v21"); a("v_or_b32 v20, v20, v21")
    a("v_lshlrev_b32 v20, 5, v20"); a("v_lshlrev_b32 v18, 3, v18")
    a("v_add3_u32 v19, v19, v20, v18")
    for c in range(4): a("v_xor_b32 v%d, %d, v19" % (vW[c], c * 32))
    vWR = [24, 25, 26, 27]
    for c in range(4): a("v_add_u32 v%d, 0x%x, v%d" % (vWR[c], R4, vW[c]))
    for r in range(32): a("v_mov_b32 v%d, 0" % (QA + r))
    lg = Lgkm()
    def qsteps(blocks):
        steps = []
        for (xs, wv, wo) in blocks:
            for kq in range(2): steps.append((xs, wv, wo, kq))
        return steps
    state = {"st": 0}
    def q_reads(step, st):
        xs, wv, wo, kq = step
        ids = {}; fl = []
        if xs[0] == "lds":
            for t in range(2):
                def f(t=t):
                    a("ds_read_b128 %s, v%d offset:%d" % (vr(XF + st * 8 + t * 4, 4), vX[kq], xs[1] * 16384 + t * 2048)); ids["X"] = lg.issue()
                fl.append(f)
        for c in range(4):
            for hf in range(2):
                def f(c=c, hf=hf):
                    a("ds_read_b64_tr_b16 %s, v%d offset:%d" % (vr(WF + st * 16 + c * 4 + hf * 2, 2), wv[c], wo + kq * 4096 + hf * 512)); ids[c] = lg.issue()
                fl.append(f)
        return fl, ids
    def q_run(steps, hooks=None):
        hooks = hooks or {}
        st = 0
        if 0 in hooks: hooks[0]()
        rl, ids = q_reads(steps[0], st)
        for f in rl: f()
        for n, step in enumerate(steps):
            xs, wv, wo, kq = step
            nxt = n + 1 < len(steps)
            nrl = []
            k = 0
            for c in range(4):
                for t in range(2):
                    lg.need(a, ids[c])
                    if xs[0] == "lds": xr = XF + st * 8 + t * 4
                    else: xr = xs[1] + kq * 8 + t * 4
                    d = vr(QA + (t * 4 + c) * 4, 4)
                    a("v_mfma_f32_16x16x32_bf16 %s, %s, %s, %s" % (d, vr(WF + st * 16 + c * 4, 4), vr(xr, 4), d))
                    if k == 0 and nxt:
                        if n + 1 in hooks: hooks[n + 1]()
                        nrl, nids = q_reads(steps[n + 1], st ^ 1)
                    take = 2 if len(nrl) > (7 - k) else 1
                    for _ in range(take):
                        if nrl: nrl.pop(0)()
                    k += 1
            if nxt:
                while nrl: nrl.pop(0)()
                ids = nids; st ^= 1
    def capture(b):
        base = CAP + cap.index(b) * 16
        for kq in range(2):
            for t in range(2):
                a("ds_read_b128 %s, v%d offset:%d" % (vr(base + kq * 8 + t * 4, 4), vX[kq], (b & 3) * 16384 + t * 2048)); lg.issue()
    def wqpos(q): return WR + (q & 3) * 16384 + (q >> 2) * 8192
    def need_stage(b):
        vm.need(a, landed[("Q", b)] if b in fly else landed[("S", b)])
    need_stage(0)
    stamp(a, 1)
    a("s_barrier")
    for b in range(16):
        issue_upto(b + 2, RAMP[min(b, len(RAMP) - 1)])
        for x in range(4):
            if b == max(WQR[x], FLY0 + x + 1): issue_wq(12 + x, R4 + x * 8192)
        if b >= 13:
            issue_wq(cap[b - 13], wqpos(b - 13))
        if b == WOPF:
            a("v_and_b32 v28, 15, v0"); a("v_lshlrev_b32 v28, 7, v28")
            a("s_lshl_b32 s38, s2, 13"); a("s_lshl_b32 s29, s30, 11"); a("s_add_u32 s38, s38, s29")
            a("buffer_load_dword v29, v28, s[44:47], s38 offen"); vm.issue()
        if b in fly:
            q_run(qsteps([(("lds", b & 3), vWR, (b - FLY0) * 8192)]))
            lg.all(a)
        elif b < 12:
            capture(b)
            lg.all(a)
        if b == 12:
            a("s_load_dwordx4 s[4:7], s[40:41], 0")
        if b == 15:
            a("s_waitcnt lgkmcnt(0)")
            a("s_and_b64 s[4:5], s[4:5], s[6:7]"); a("s_and_b32 s4, s4, s5")
            a("s_cmp_eq_u32 s4, 0x01010101")
            a("s_cbranch_scc1 L_INITOK")
            a("v_and_b32 v28, 3, v0"); a("v_lshlrev_b32 v28, 2, v28")
            a("s_mov_b32 s35, %d" % SPIN_MAX)
            a("s_mov_b32 s29, 0x01010101")
            a.label("L_INITCHK")
            a("buffer_load_dword v29, v28, s[52:55], 0 offen sc1")
            a("s_waitcnt vmcnt(0)")
            a("v_cmp_ne_u32 vcc, s29, v29")
            a("s_cmp_eq_u64 vcc, 0")
            a("s_cbranch_scc1 L_INITOK")
            a("s_sub_u32 s35, s35, 1"); a("s_cmp_lg_u32 s35, 0")
            a("s_cbranch_scc1 L_INITCHK")
            a.label("L_INITOK")
        if b + 1 < 16: need_stage(b + 1)
        a("s_barrier")
    issue_wq(cap[3], wqpos(3))
    vm.all(a)
    a("s_barrier")
    stamp(a, 2)
    for q in range(4, 8): issue_wq(cap[q], wqpos(q))
    def wopf2():
        a("v_lshrrev_b32 v28, 3, v0"); a("v_lshlrev_b32 v28, 11, v28"); a("v_and_b32 v29, 7, v0"); a("v_lshlrev_b32 v29, 7, v29"); a("v_add_u32 v28, v28, v29")
        a("s_lshl_b32 s38, s28, 5"); a("s_lshl_b32 s29, s30, 3"); a("s_add_u32 s38, s38, s29"); a("s_lshl_b32 s38, s38, 11")
        a("s_lshr_b32 s29, s27, 2"); a("s_lshl_b32 s29, s29, 10"); a("s_add_u32 s38, s38, s29")
        a("buffer_load_dword v30, v28, s[44:47], s38 offen"); vm.issue()
    if WOPF2 == 16: wopf2()
    if QBP: a("s_setprio %d" % QBP)
    blocks = [(("lds", s), vWR, s * 8192) for s in range(4)] + [(("reg", CAP + q * 16), vW, wqpos(q)) for q in range(8)]
    def hookP():
        lg.all(a); stamp(a, 13); vm.need(a, landed[("Q", cap[7])]); a("s_barrier"); stamp(a, 15)
        if WOPF2 == 17: wopf2()
    q_run(qsteps(blocks), {PSTEP: hookP})
    if QBP: a("s_setprio 0")
    stamp(a, 3)
    a("s_lshl_b32 s32, s30, 10")
    a("v_add_u32 v14, s32, v1")
    if WOPF2: a("s_waitcnt vmcnt(0)")
    a("v_mov_b32 v28, 0x%x" % f32bits(CSC)); a("v_mov_b32 v29, 0x%x" % f32bits(CSC))
    a("s_nop 2")
    for r in range(0, 32, 2):
        a("v_pk_mul_f32 %s, %s, v[28:29]" % (vr(QA + r, 2), vr(QA + r, 2)))
    for h in range(2):
        for t in range(2):
            dst = (WF + h * 4) if t == 0 else (QF + h * 4)
            for nt in range(2):
                s0 = QA + (t * 4 + 2 * h + nt) * 4
                a("v_cvt_pk_bf16_f32 v%d, v%d, v%d" % (dst + nt * 2, s0, s0 + 1))
                a("v_cvt_pk_bf16_f32 v%d, v%d, v%d" % (dst + nt * 2 + 1, s0 + 2, s0 + 3))
        a("ds_write_b128 v14, %s offset:%d" % (vr(WF + h * 4, 4), QL + h * 4096))
    att_setup("q")
    a("s_branch L_ATT")
    a.label("L_KV")
    ACC = 64; FR = 128; PK = 192
    vXb = [4, 5]; vWb = [6, 7]; vX = [8, 9]; vW2 = [10, 11]
    def fX(st, t): return FR + st * 32 + t * 4
    def fW(st, c): return FR + st * 32 + 16 + c * 4
    def acc(t, c): return ACC + (t * 4 + c) * 4
    a("s_lshr_b32 s30, s24, 1")
    a("s_and_b32 s31, s24, 1")
    a("s_waitcnt lgkmcnt(0)")
    if WSOFF:
        a("s_add_u32 s42, s42, 0x%x" % WSOFF); a("s_addc_u32 s43, s43, 0")
    srd(a, 20, 42, 43, min(WS_BYTES, (256 << 20) - WSOFF))
    srd(a, 44, 8, 9, 1024 * 1024 * 2)
    srd(a, 48, 10, 11, 2048 * 1024 * 2)
    srd(a, 52, 40, 41, 256)
    if CPF == 1:
        a("s_getpc_b64 s[96:97]")
        a.label("L_PC")
        a("s_sub_u32 s96, s96, L_PC-%s" % NM)
        a("s_subb_u32 s97, s97, 0")
        a("v_lshlrev_b32 v12, 7, v0")
        a("s_lshl_b32 s32, s24, 13")
        a("v_add_u32 v12, s32, v12")
        a("v_min_u32 v12, L_END-%s, v12" % NM)
        a("global_load_dword v30, v12, s[96:97]")
    a("s_or_b32 s32, s24, s26")
    a("s_cmp_lg_u32 s32, 0")
    a("s_cbranch_scc1 L_NOINIT")
    for r in range(4): a("v_mov_b32 v%d, 0" % (12 + r))
    a("v_and_b32 v16, 15, v0"); a("v_lshlrev_b32 v17, 7, v16")
    a("v_lshlrev_b32 v16, 4, v16")
    a("s_lshl_b32 s32, s25, 11"); a("s_add_u32 s32, s32, 0x%x" % FL_OFF)
    a("s_lshl_b32 s33, s25, 8"); a("s_add_u32 s33, s33, 0x%x" % C2_OFF)
    a("s_mov_b64 exec, 0xffff")
    a("buffer_store_dwordx4 v[12:15], v17, s[20:23], s32 offen sc1")
    a("buffer_store_dwordx4 v[12:15], v16, s[20:23], s33 offen sc1")
    a("s_mov_b64 exec, 1")
    a("v_mov_b32 v18, 1")
    a("s_waitcnt vmcnt(0)")
    a("buffer_store_byte v18, v12, s[52:55], s25 offen sc1")
    a("s_mov_b64 exec, -1")
    a.label("L_NOINIT")
    a("v_and_b32 v12, 15, v0"); a("v_lshrrev_b32 v13, 4, v0")
    a("v_lshrrev_b32 v14, 1, v12"); a("v_xor_b32 v14, v14, v13")
    a("s_lshl_b32 s32, s30, 13")
    a("v_lshlrev_b32 v15, 7, v12"); a("v_add_u32 v15, s32, v15"); a("v_add_u32 v15, 0x%x, v15" % XR)
    for kq in range(2):
        a("v_xor_b32 v16, %d, v14" % (kq << 2)); a("v_lshlrev_b32 v16, 4, v16"); a("v_add_u32 v%d, v15, v16" % vXb[kq])
    a("v_lshrrev_b32 v17, 2, v12"); a("v_and_b32 v18, 3, v12")
    a("v_lshlrev_b32 v20, 3, v13"); a("v_add_u32 v20, v20, v17"); a("v_lshlrev_b32 v20, 7, v20")
    a("v_lshrrev_b32 v21, 1, v17"); a("v_and_b32 v22, 1, v13"); a("v_lshlrev_b32 v22, 1, v22"); a("v_or_b32 v21, v21, v22")
    a("s_lshl_b32 s33, s31, 1")
    a("v_xor_b32 v21, s33, v21"); a("v_lshlrev_b32 v21, 5, v21"); a("v_lshlrev_b32 v22, 3, v18")
    a("v_add3_u32 v%d, v21, v22, v20" % vWb[0])
    a("v_xor_b32 v%d, 32, v%d" % (vWb[1], vWb[0]))
    for q in range(2):
        a("v_mov_b32 v%d, v%d" % (vX[q], vXb[q])); a("v_mov_b32 v%d, v%d" % (vW2[q], vWb[q]))
    for r in range(64): a("v_mov_b32 v%d, 0" % (ACC + r))
    a("s_mov_b32 s34, 16384")
    a("s_mov_b32 s35, 0")
    if LOOPSTAMP:
        a("s_lshl_b32 s61, s2, 3"); a("s_add_u32 s61, s61, s24"); a("s_lshl_b32 s61, s61, 7"); a("s_add_u32 s61, s61, 0x%x" % (DIAG_OFF + 256 * 8 * 128))
    lg = Lgkm()
    def reads(kq, st):
        ids = {}
        def rX(t):
            def f():
                a("ds_read_b128 %s, v%d offset:%d" % (vr(fX(st, t), 4), vX[kq], t * 2048)); ids["X%d" % t] = lg.issue()
            return f
        def rW(c, hf):
            def f():
                a("ds_read_b64_tr_b16 %s, v%d offset:%d" % (vr(fW(st, c) + 2 * hf, 2), vW2[c & 1], (c >> 1) * 8192 + kq * 4096 + hf * 512)); ids["W%d" % c] = lg.issue()
            return f
        l = [rX(0), rW(0, 0), rW(0, 1), rX(1), rX(2), rX(3)]
        for c in range(1, 4): l += [rW(c, 0), rW(c, 1)]
        return l, ids
    def mfma(t, c, st, ids):
        lg.need(a, max(ids["X%d" % t], ids["W%d" % c]))
        d = vr(acc(t, c), 4)
        if c < 2: a("v_mfma_f32_16x16x32_bf16 %s, %s, %s, %s" % (d, vr(fW(st, c), 4), vr(fX(st, t), 4), d))
        else:     a("v_mfma_f32_16x16x32_bf16 %s, %s, %s, %s" % (d, vr(fX(st, t), 4), vr(fW(st, c), 4), d))
    order = [(t, c) for c in range(4) for t in range(4)]
    if KVP: a("s_setprio %d" % KVP)
    a("s_barrier")
    stamp(a, 1)
    rl, ids = reads(0, 0)
    for f in rl: f()
    a.label("L_G1LOOP")
    for kq in range(2):
        st = kq
        nrl, nids = reads(kq ^ 1, st ^ 1)
        start = 0 if kq == 0 else BARN + 1
        for n, (t, c) in enumerate(order):
            mfma(t, c, st, ids)
            if kq == 1 and n < 2:
                a("v_add_u32 v%d, s34, v%d" % (vX[n], vXb[n])); a("v_add_u32 v%d, s34, v%d" % (vW2[n], vWb[n]))
            if kq == 1 and n == BARN:
                lg.all(a); a("s_barrier")
                if LOOPSTAMP:
                    a("%s s[98:99]" % ("s_memrealtime" if LOOPSTAMP == 1 else "s_memtime"))
                    a("s_waitcnt lgkmcnt(0)")
                    a("v_mov_b32 v24, s98"); a("v_mov_b32 v25, s99"); a("v_mov_b32 v26, 0")
                    a("buffer_store_dwordx2 v[24:25], v26, s[20:23], s61 offen")
                    a("s_add_u32 s61, s61, 8")
            if kq == 0 or BARN <= 3:
                if start <= n < start + 12: nrl[n - start]()
            elif n >= start:
                rem = 16 - start
                k0 = (n - start) * 12 // rem; k1 = (n - start + 1) * 12 // rem
                for q in range(k0, k1): nrl[q]()
            if kq == 0 and n == 13:
                a("s_add_u32 s35, s35, 1")
            if kq == 1 and n == 14:
                a("s_add_u32 s34, s34, 16384")
                a("s_and_b32 s34, s34, 0xffff")
                a("s_cmp_lt_u32 s35, 12")
        ids = nids
    assert lg.n - lg.done == 12, (lg.n, lg.done)
    a("s_cbranch_scc1 L_G1LOOP")
    a("s_lshl_b32 s36, s26, 1"); a("s_add_u32 s36, s36, s31"); a("s_lshl_b32 s36, s36, 7")
    a("s_lshl_b32 s37, s25, 3"); a("s_lshl_b32 s38, s30, 2"); a("s_add_u32 s37, s37, s38")
    a("s_add_u32 s36, s36, s37"); a("s_lshl_b32 s36, s36, 10")
    a("s_add_u32 s37, s36, 0x%x" % VG_OFF)
    def pk(t, s): return PK + t * 8 + s * 4
    def cvt_store(s, t):
        for nt in range(2):
            c = s * 2 + nt
            for hf in range(2):
                a("v_cvt_pk_bf16_f32 v%d, v%d, v%d" % (pk(t, s) + nt * 2 + hf, acc(t, c) + 2 * hf, acc(t, c) + 2 * hf + 1))
        a("buffer_store_dwordx4 %s, v1, s[20:23], %s offen offset:%d sc1" % (vr(pk(t, s), 4), ("s36", "s37")[s], t * 1024))
    def treads(step, st):
        sl, kq, cp = step
        ids = {}
        def rX(t):
            def f():
                a("ds_read_b128 %s, v%d offset:%d" % (vr(fX(st, t), 4), vXb[kq], sl * 16384 + t * 2048)); ids["X%d" % t] = lg.issue()
            return f
        def rW(c, hf):
            def f():
                a("ds_read_b64_tr_b16 %s, v%d offset:%d" % (vr(fW(st, c) + 2 * hf, 2), vWb[c & 1], sl * 16384 + (c >> 1) * 8192 + kq * 4096 + hf * 512)); ids["W%d" % c] = lg.issue()
            return f
        c0 = 2 * cp
        return [rX(0), rW(c0, 0), rW(c0, 1), rX(1), rX(2), rX(3), rW(c0 + 1, 0), rW(c0 + 1, 1)], ids
    steps = [(sl, kq, 0) for sl in range(4) for kq in range(2)] + [(sl, kq, 1) for sl in range(4) for kq in range(2)][1:]
    st = 0
    for n, step in enumerate(steps):
        sl, kq, cp = step
        nxt = n + 1 < len(steps)
        cs = [0, 1, 2, 3] if n == 0 else [2 * cp, 2 * cp + 1]
        nrl = []
        k = 0
        for c in cs:
            for t in range(4):
                mfma(t, c, st, ids)
                if k == 0:
                    if (nxt and n + 1 <= 8 and (n + 1) % 2 == 0) or not nxt:
                        lg.all(a); a("s_barrier")
                    if nxt: nrl, nids = treads(steps[n + 1], st ^ 1)
                take = 2 if len(nrl) > (len(cs) * 4 - 1 - k) else 1
                for _ in range(take):
                    if nrl: nrl.pop(0)()
                if n in (9, 10) and k in (1, 5): cvt_store(0, (n - 9) * 2 + (k >> 2))
                k += 1
        if nxt:
            while nrl: nrl.pop(0)()
            ids = nids; st ^= 1
    stamp(a, 2)
    a("s_lshl_b32 s32, s25, 4"); a("s_add_u32 s32, s32, s26"); a("s_lshl_b32 s32, s32, 7"); a("s_add_u32 s32, s32, 0x%x" % FL_OFF)
    a("s_lshl_b32 s33, s24, 2"); a("s_add_u32 s32, s32, s33")
    a("v_and_b32 v17, 1, v0"); a("v_add_u32 v17, 1, v17")
    a("v_cmp_ge_u32 s[60:61], s25, v17")
    a("v_lshlrev_b32 v17, 11, v17")
    a("v_cndmask_b32_e64 v17, 0, v17, s[60:61]")
    a("v_sub_u32 v17, s32, v17")
    a("buffer_load_dword v20, v17, s[20:23], 0 offen sc1")
    for t in range(4): cvt_store(1, t)
    a("s_mul_i32 s38, s31, %d" % (KVH[1] - KVH[0]))
    a("s_add_u32 s38, s38, %d" % KVH[0])
    a("s_lshl_b32 s39, s30, 12")
    a("s_add_u32 s38, s38, s39")
    a("v_add_u32 v12, s38, v1")
    a("v_lshlrev_b32 v13, 3, v0"); a("v_add_u32 v13, s38, v13")
    a("v_mov_b32 v15, 1"); a("v_mov_b32 v16, 0")
    a("s_barrier")
    for t in range(4):
        a("ds_write_b128 v12, %s offset:%d" % (vr(pk(t, 0), 4), (16 + t) * 1024))
        a("ds_write_b64 v13, %s offset:%d" % (vr(pk(t, 1), 2), 24576 + (16 + t) * 1024))
        a("ds_write_b64 v13, %s offset:%d" % (vr(pk(t, 1) + 2, 2), 24576 + (16 + t) * 1024 + 512))
    a("s_waitcnt vmcnt(0)")
    a("s_mov_b64 exec, 1")
    a("buffer_store_dword v15, v16, s[20:23], s32 offen sc1")
    a("s_mov_b64 exec, -1")
    stamp(a, 3)
    HB = 64
    def chk(lbl_ok):
        a("v_cmp_ne_u32 vcc, 1, v20")
        a("s_and_b64 s[58:59], vcc, s[60:61]")
        a("s_cmp_eq_u64 s[58:59], 0")
        a("s_cbranch_scc1 %s" % lbl_ok)
    def halo_loads(tag):
        for d in (1, 2):
            skip = "L_HSKIP%s%d" % (tag, d)
            a("s_cmp_lt_u32 s25, %d" % d)
            a("s_cbranch_scc1 %s" % skip)
            a("s_sub_u32 s38, s36, %d" % (d * 8192)); a("s_sub_u32 s39, s37, %d" % (d * 8192))
            hb = HB + (d - 1) * 32
            for t in range(4):
                a("buffer_load_dwordx4 %s, v1, s[20:23], s38 offen offset:%d sc1" % (vr(hb + t * 8, 4), t * 1024))
                a("buffer_load_dwordx4 %s, v1, s[20:23], s39 offen offset:%d sc1" % (vr(hb + t * 8 + 4, 4), t * 1024))
            a.label(skip)
    def own_writes():
        a("s_barrier")
        for t in range(4):
            a("ds_write_b128 v12, %s offset:%d" % (vr(pk(t, 0), 4), (16 + t) * 1024))
            a("ds_write_b64 v13, %s offset:%d" % (vr(pk(t, 1), 2), 24576 + (16 + t) * 1024))
            a("ds_write_b64 v13, %s offset:%d" % (vr(pk(t, 1) + 2, 2), 24576 + (16 + t) * 1024 + 512))
    chk("L_HOK")
    a("s_mov_b32 s35, %d" % SPIN_MAX)
    a.label("L_HPOLL")
    a("buffer_load_dword v20, v17, s[20:23], 0 offen sc1")
    a("s_waitcnt vmcnt(0)")
    chk("L_HOK")
    a("s_sub_u32 s35, s35, 1"); a("s_cmp_lg_u32 s35, 0")
    a("s_cbranch_scc1 L_HPOLL")
    a.label("L_HOK")
    halo_loads("a")
    att_setup("k")
    stamp(a, 13)
    a("s_cmp_lt_u32 s25, 2")
    a("s_cbranch_scc1 L_HSMALL")
    def halo_write(d, t):
        hb = HB + (d - 1) * 32; tb = (2 - d) * 8
        a("ds_write_b128 v12, %s offset:%d" % (vr(hb + t * 8, 4), (tb + t) * 1024))
        a("ds_write_b64 v13, %s offset:%d" % (vr(hb + t * 8 + 4, 2), 24576 + (tb + t) * 1024))
        a("ds_write_b64 v13, %s offset:%d" % (vr(hb + t * 8 + 6, 2), 24576 + (tb + t) * 1024 + 512))
    n = 0
    for d in (1, 2):
        for t in range(4):
            n += 2
            a("s_waitcnt vmcnt(%d)" % (16 - n))
            halo_write(d, t)
    a("s_branch L_ATT")
    a.label("L_HSMALL")
    a("s_cmp_lt_u32 s25, 1")
    a("s_cbranch_scc1 L_ATT")
    a("s_waitcnt vmcnt(0)")
    for t in range(4): halo_write(1, t)
    a.label("L_ATT")
    a("s_waitcnt lgkmcnt(0)")
    a("s_barrier")
    stamp(a, 4)
    a("s_cmp_ge_u32 s24, 4")
    a("s_cbranch_scc1 L_NOQRD")
    a("ds_read_b128 %s, v8 offset:%d" % (vr(QF, 4), QL))
    a("ds_read_b128 %s, v8 offset:%d" % (vr(QF + 4, 4), QL + 4096))
    a("v_mov_b32 v2, 0"); a("v_mov_b32 v3, 0x%x" % CNT)
    a("ds_write_b32 v3, v2")
    a("s_waitcnt lgkmcnt(0)")
    a.label("L_NOQRD")
    a("s_barrier")
    def wo_slot(p): wo_one(0, p)
    OFA = 164; OFB = 96
    def oloads(par, sl=range(8)):
        ob = (OFA, OFB)[par]
        for sx in sl:
            a("s_add_u32 s34, s101, %d" % sx); a("s_and_b32 s34, s34, 7"); a("s_lshl_b32 s34, s34, 11")
            for t in range(2):
                a("s_add_u32 s33, %s, s34" % ("s97", "s98")[t])
                a("buffer_load_dwordx4 %s, v1, s[20:23], s33 offen offset:%d sc1" % (vr(ob + sx * 8 + t * 4, 4), par * 1024))
    def signal(tag, w=True):
        if w: a("s_waitcnt vmcnt(0)")
        a("s_barrier")
        a("s_cmp_lg_u32 s24, 0")
        a("s_cbranch_scc1 L_NOSIG%s" % tag)
        a("s_mov_b64 exec, 1")
        a("v_mov_b32 v2, 1"); a("v_mov_b32 v3, 0")
        a("buffer_store_dword v2, v3, s[20:23], s39 offen sc1")
        a("s_mov_b64 exec, -1")
        a.label("L_NOSIG%s" % tag)
        a("s_add_u32 s39, s39, 128")
    if PRIO:
        a("s_cmp_lt_u32 s24, 4")
        a("s_cbranch_scc1 L_NOPRIO")
        a("s_setprio 1")
        a.label("L_NOPRIO")
    a.label("L_ROUND")
    lg = Lgkm()
    kid = {}; vid = {}
    def rdK(i):
        if i < 17:
            a("ds_read_b128 %s, v6 offset:%d" % (vr(KR + (i % 6) * 4, 4), i * 1024)); kid[i] = lg.issue()
    def rdV1(p, dt, h):
        st = VF + (p % 3) * 8
        if 2 * p + h < 17:
            a("ds_read_b64 %s, v7 offset:%d" % (vr(st + dt * 4 + h * 2, 2), (2 * p + h) * 1024 + dt * 512)); vid[(p, dt)] = lg.issue()
    def rdV(p):
        for dt in range(2):
            for h in range(2): rdV1(p, dt, h)
    def sb(p): return S + (p % 3) * 8
    def qk(i):
        if i >= 17: return
        if 1 <= i <= 15:
            a("s_cmp_eq_u32 s38, %d" % i)
            a("s_cbranch_scc1 L_CTR%d" % i)
            a.label("L_CT%d" % i)
        c0 = vr(ML, 4) if i == 0 else (vr(MH, 4) if i == 16 else vr(CT, 4))
        lg.need(a, kid[i])
        a("v_mfma_f32_16x16x32_bf16 %s, %s, %s, %s" % (vr(sb(i >> 1) + (i & 1) * 4, 4), vr(KR + (i % 6) * 4, 4), vr(QF, 4), c0))
    def exps(p, b):
        nv = 8 if p < 8 else 4
        return ["v_exp_f32 v%d, v%d" % (b + r, b + r) for r in range(nv)]
    def cvts(p, b):
        nv = 8 if p < 8 else 4
        return ["v_cvt_pk_bf16_f32 v%d, v%d, v%d" % (b + r, b + 2 * r, b + 2 * r + 1) for r in range(nv // 2)]
    def pv(p, k, b):
        st = VF + (p % 3) * 8
        if k < 2:
            lg.need(a, vid[(p, k)])
            d = vr(O + 4 * k, 4); A = st + 4 * k
        else:
            d = vr(L, 4); A = ONE
        c = "0" if p == 0 else d
        if p < 8: a("v_mfma_f32_16x16x32_bf16 %s, %s, %s, %s" % (d, vr(A, 4), vr(b, 4), c))
        else:     a("v_mfma_f32_16x16x16_bf16 %s, %s, %s, %s" % (d, vr(A, 2), vr(b, 2), c))
    for i in range(6): rdK(i)
    a("s_cmp_gt_u32 s38, 1")
    a("s_cselect_b32 s33, 0x%x, 0" % NEG)
    for r in range(4): a("v_mov_b32 v%d, s33" % (CT + r))
    rdV(0)
    for i in range(4):
        qk(i); rdK(i + 6)
    rdV(1)
    for x in exps(0, sb(0)): a(x)
    for p in range(9):
        if p < 4:
            a("s_cmp_lg_u32 s58, 0")
            a("s_cbranch_scc1 L_SK%d" % p)
            wo_slot(2 * p)
            if p < 3: wo_slot(2 * p + 1)
            else:
                a("s_cmp_eq_u32 s24, 7")
                a("s_cbranch_scc1 L_SK%d" % p)
                wo_slot(7)
            a.label("L_SK%d" % p)
        if E5 and p >= 1:
            a("s_cmp_eq_u32 s10, 1")
            a("s_cbranch_scc1 L_E5_%d" % p)
            a.label("L_E5R_%d" % p)
        if EARLY == 2 and p == EP:
            a("buffer_load_dword v9, v11, s[20:23], s96 offen sc1")
        if p == SIGP or (EARLY == 1 and p >= 6):
            a("s_cmp_lg_u32 s58, 0")
            a("s_cbranch_scc1 L_OOL%d" % p)
            a.label("L_OOLR%d" % p)
        cv = cvts(p, sb(p))
        ne = exps(p + 1, sb(p + 1)) if p < 8 else []
        qk(2 * p + 4); rdK(2 * p + 10)
        for x in cv[:2]: a(x)
        qk(2 * p + 5); rdK(2 * p + 11)
        for x in cv[2:]: a(x)
        for k in range(3):
            for x in ne[:2]: a(x)
            ne = ne[2:]
            pv(p, k, sb(p))
        if p + 2 < 9: rdV(p + 2)
        for x in ne: a(x)
    if PRIO: a("s_setprio 0")
    a("s_nop 6")
    a("v_add_f32_e64 v%d, |v%d|, |v%d|" % (MX, O, O + 1))
    a("v_add_f32_e64 v%d, |v%d|, |v%d|" % (MX + 1, O + 2, O + 3))
    for r in range(4, 8): a("v_add_f32_e64 v%d, |v%d|, v%d" % (MX + (r & 1), O + r, MX + (r & 1)))
    a("v_cmp_nle_f32 vcc, v54, v%d" % L)
    a("v_cmp_nge_f32 s[34:35], v55, v%d" % L)
    a("v_add_f32 v%d, v%d, v%d" % (MX, MX, MX + 1))
    a("s_or_b64 s[34:35], s[34:35], vcc")
    a("v_cmp_nge_f32 vcc, 0x7f000000, v%d" % MX)
    a("s_or_b64 s[34:35], s[34:35], vcc")
    if FORCE_EXACT: a("s_mov_b64 s[34:35], 1")
    a("s_cmp_eq_u64 s[34:35], 0")
    a("s_cbranch_scc1 L_FASTOK")
    lg = Lgkm(); kid = {}; vid = {}
    def rdKx(i):
        a("ds_read_b128 %s, v6 offset:%d" % (vr(KF + (i % 4) * 4, 4), i * 1024)); kid[i] = lg.issue()
    for i in range(4): rdKx(i)
    for i in range(17):
        c0 = vr(ML, 4) if i == 0 else (vr(MH, 4) if i == 16 else "0")
        lg.need(a, kid[i])
        a("v_mfma_f32_16x16x32_bf16 %s, %s, %s, %s" % (vr(S + 4 * i, 4), vr(KF + (i % 4) * 4, 4), vr(QF, 4), c0))
        if i + 4 < 17: rdKx(i + 4)
    rdV(0); rdV(1)
    a("s_nop 7")
    a("s_cmp_eq_u32 s38, 0")
    a("s_cbranch_scc1 L_NOFIX")
    for i in range(16):
        for r in range(4): a("v_mov_b32 v%d, v5" % (S + 4 * i + r))
        if i < 15:
            a("s_cmp_eq_u32 s38, %d" % (i + 1))
            a("s_cbranch_scc1 L_NOFIX")
    a.label("L_NOFIX")
    for i in range(17):
        for q in range(2):
            m = MX + q; s0 = S + 4 * i + 2 * q
            if i == 0: a("v_max_f32 v%d, v%d, v%d" % (m, s0, s0 + 1))
            else: a("v_max3_f32 v%d, v%d, v%d, v%d" % (m, m, s0, s0 + 1))
    a("v_max_f32 v%d, v%d, v%d" % (MX, MX, MX + 1))
    a("v_mov_b32 v%d, v%d" % (MX + 1, MX))
    a("v_permlane32_swap_b32 v%d, v%d" % (MX, MX + 1))
    a("v_max_f32 v%d, v%d, v%d" % (MX, MX, MX + 1))
    a("v_mov_b32 v%d, v%d" % (MX + 1, MX))
    a("v_permlane16_swap_b32 v%d, v%d" % (MX, MX + 1))
    a("v_max_f32 v%d, v%d, v%d" % (MX, MX, MX + 1))
    for p in range(9):
        b = S + 8 * p; nv = 8 if p < 8 else 4
        for r in range(nv): a("v_sub_f32 v%d, v%d, v%d" % (b + r, b + r, MX))
        for x in exps(p, b): a(x)
        for x in cvts(p, b): a(x)
        for k in range(3): pv(p, k, b)
        if p + 2 < 9: rdV(p + 2)
    a("s_nop 7")
    a.label("L_FASTOK")
    a("v_rcp_f32 v%d, v%d" % (MX, L))
    for r in range(8): a("v_mul_f32 v%d, v%d, v%d" % (O + r, O + r, MX))
    for r in range(4): a("v_cvt_pk_bf16_f32 v%d, v%d, v%d" % (S + r, O + 2 * r, O + 2 * r + 1))
    a("buffer_store_dwordx4 %s, v1, s[20:23], s37 offen sc1" % vr(S, 4))
    a("s_add_u32 s37, s37, 1024")
    a("v_add_u32 v6, %d, v6" % (KVH[1] - KVH[0])); a("v_add_u32 v7, %d, v7" % (KVH[1] - KVH[0]))
    for r in range(4): a("v_mov_b32 v%d, v%d" % (QF + r, QF + 4 + r))

    if DIAG:
        a("s_cmp_lg_u32 s58, 0")
        a("s_cbranch_scc1 L_NOST14")
        stamp(a, 14)
        a.label("L_NOST14")
    a("s_cmp_lg_u32 s58, 0")
    a("s_cbranch_scc1 L_RDONE")
    if E5:
        a("s_waitcnt vmcnt(1)")
        a("v_cmp_ne_u32 vcc, 1, v9")
        a("s_cmp_eq_u64 vcc, 0")
        a("s_cselect_b32 s10, 1, 0")
    a("s_mov_b32 s58, 1")
    a("s_branch L_ROUND")
    a.label("L_RDONE")
    stamp(a, 5)
    if EARLY == 2:
        a("s_cmp_eq_u32 s10, 1")
        a("s_cbranch_scc1 L_E2NO")
        a("s_waitcnt vmcnt(1)")
        a("v_cmp_ne_u32 vcc, 1, v9")
        a("s_cmp_lg_u64 vcc, 0")
        a("s_cbranch_scc1 L_E2NO")
        oloads(0, range(EK))
        a("s_mov_b32 s99, 1")
        a("s_waitcnt vmcnt(%d)" % (2 * EK))
        a("s_branch L_E2J")
        a.label("L_E2NO")
        a("s_waitcnt vmcnt(0)")
        a.label("L_E2J")
        signal("1", False)
    else:
        signal("1")
    stamp(a, 6)
    A2 = 16; F2 = 48
    a("v_mov_b32 v15, v11")
    a("v_and_b32 v12, 15, v0"); a("v_lshrrev_b32 v13, 4, v0")
    a("v_lshrrev_b32 v17, 2, v12"); a("v_and_b32 v18, 3, v12")
    a("v_lshlrev_b32 v19, 2, v13"); a("v_add_u32 v19, v19, v17")
    a("v_lshrrev_b32 v20, 1, v19"); a("v_and_b32 v20, 3, v20")
    a("v_lshlrev_b32 v19, 7, v19"); a("v_lshlrev_b32 v20, 5, v20"); a("v_lshlrev_b32 v18, 3, v18")
    a("v_add3_u32 v19, v19, v20, v18")
    a("s_lshl_b32 s31, s30, 15")
    a("v_add_u32 v19, s31, v19")
    AE = [4, 5, 6, 7]; AO = [8, 9, 11, 14]
    for nt in range(4):
        a("v_xor_b32 v20, %d, v19" % (nt * 32))
        a("v_add_u32 v%d, %d, v20" % (AE[nt], WOE)); a("v_add_u32 v%d, 0x%x, v20" % (AO[nt], WOO))
    for r in range(32): a("v_mov_b32 v%d, 0" % (A2 + r))
    if WF1ST:
        a("s_cmp_lg_u32 s24, 7")
        a("s_cbranch_scc1 L_NOC63")
        wo_slot(7)
        a.label("L_NOC63")
        wo_dma(1, 0, 8)
    a("s_cmp_eq_u32 s10, 1")
    a("s_cbranch_scc1 L_HAVEALL")
    a("s_cmp_eq_u32 s99, 1")
    a("s_cbranch_scc1 L_HAVEA")
    pollf(a, "s96", "L_PC0")
    oloads(0, range(EK))
    a.label("L_HAVEA")
    oloads(0, range(EK, 8))
    a.label("L_HAVEALL")
    if not WF1ST:
        a("s_cmp_lg_u32 s24, 7")
        a("s_cbranch_scc1 L_NOC63")
        wo_slot(7)
        a.label("L_NOC63")
    stamp(a, 7)
    a("v_and_b32 v15, 15, v0"); a("v_lshlrev_b32 v15, 2, v15")
    a("s_add_u32 s96, s96, 128")
    lg = Lgkm()
    def wreads(par, s):
        st = s & 1
        ids = {}
        fl = []
        for nt in range(4):
            for hf in range(2):
                def f(nt=nt, hf=hf):
                    a("ds_read_b64_tr_b16 %s, v%d offset:%d" % (vr(F2 + st * 16 + nt * 4 + hf * 2, 2), (AE, AO)[par][nt], s * 4096 + hf * 2048))
                    ids[nt] = lg.issue()
                fl.append(f)
        return fl, ids
    PSL = int(os.environ.get("PSL", "5"))
    for par in range(2):
        ob = (OFA, OFB)[par]
        if par == 1:
            stamp(a, 9)
            if not NOBH:
                a("s_waitcnt vmcnt(16)")
                a("s_barrier")
        rl, ids = wreads(par, 0)
        for f in rl: f()
        for s in range(8):
            st = s & 1
            if s + 1 < 8: nrl, nids = wreads(par, s + 1)
            extra = []
            if par == 0 and s == PB0:
                a("s_cmp_lg_u32 s24, 0")
                a("s_cbranch_scc1 L_NOPB0")
                a("buffer_load_dword v2, v15, s[20:23], s96 offen sc1")
                a.label("L_NOPB0")
            if par == 0:
                if s < BGS:
                    if WF1ST:
                        a("s_waitcnt vmcnt(%d)" % (14 - 2 * s))
                    else:
                        a("s_waitcnt vmcnt(%d)" % (14 - 2 * s + 2 * s))
                        extra = [lambda q=2 * s: wo_one(1, q), lambda q=2 * s + 1: wo_one(1, q)]
                if s == BGS:
                    a("s_cmp_lg_u32 s24, 0")
                    a("s_cbranch_scc1 L_NOPOLL")
                    if PB0 >= 0:
                        a("s_waitcnt vmcnt(%d)" % (2 * (BGS - PB0)))
                        a("v_cmp_ne_u32 vcc, 1, v2")
                        a("s_cmp_eq_u64 vcc, 0")
                        a("s_cbranch_scc1 L_NOPOLL")
                    if WARMB:
                        a("v_lshrrev_b32 v3, 3, v0"); a("v_lshlrev_b32 v3, 15, v3"); a("v_and_b32 v80, 7, v0"); a("v_lshlrev_b32 v80, 7, v80"); a("v_add_u32 v3, v3, v80")
                        a("s_lshl_b32 s4, s56, 18"); a("s_add_u32 s4, s4, 0x%x" % (OG_OFF + 1024))
                        a("s_mov_b32 s5, 0")
                        a("s_mov_b32 s35, %d" % SPIN_MAX)
                        a.label("L_PC1")
                        a("buffer_load_dword v2, v15, s[20:23], s96 offen sc1")
                        a("s_waitcnt vmcnt(0)")
                        a("v_cmp_eq_u32 vcc, 1, v2")
                        a("s_and_b32 s6, vcc_lo, 0xffff")
                        a("s_cmp_eq_u32 s6, 0xffff")
                        a("s_cbranch_scc1 L_NOPOLL")
                        a("s_andn2_b32 s7, s6, s5")
                        a("s_mov_b32 s5, s6")
                        a.label("L_WB")
                        a("s_cmp_eq_u32 s7, 0")
                        a("s_cbranch_scc1 L_WBD")
                        a("s_ff1_i32_b32 s8, s7")
                        a("s_bitset0_b32 s7, s8")
                        a("s_lshl_b32 s8, s8, 11"); a("s_add_u32 s8, s8, s4")
                        a("buffer_load_dword v80, v3, s[20:23], s8 offen sc1")
                        a("s_branch L_WB")
                        a.label("L_WBD")
                        a("s_sub_u32 s35, s35, 1")
                        a("s_cmp_lg_u32 s35, 0")
                        a("s_cbranch_scc1 L_PC1")
                    else:
                        pollf(a, "s96", "L_PC1")
                    a.label("L_NOPOLL")
                    if not WF1ST: a("s_waitcnt vmcnt(%d)" % (0 if NOBH else 8))
                    a("s_barrier")
                    stamp(a, 8)
                if s >= BGS:
                    k0 = min(8, (s - BGS) * BLN); k1 = min(8, (s - BGS + 1) * BLN)
                    if WF1ST: a("s_waitcnt vmcnt(%d)" % (14 - 2 * s + 2 * k0))
                    extra = [lambda q=q: oloads(1, [q]) for q in range(k0, k1)]
            else:
                a("s_waitcnt vmcnt(%d)" % (14 - 2 * s))
            n = 0
            for nt in range(4):
                lg.need(a, ids[nt])
                for t in range(2):
                    d = vr(A2 + (t * 4 + nt) * 4, 4)
                    a("v_mfma_f32_16x16x32_bf16 %s, %s, %s, %s" % (d, vr(F2 + st * 16 + nt * 4, 4), vr(ob + s * 8 + t * 4, 4), d))
                    if s + 1 < 8: nrl[n]()
                    if n in ((0, 3) if BLN == 2 else (0, 2, 4, 6)) and extra: extra.pop(0)()
                    n += 1
            assert not extra
            if s + 1 < 8: ids = nids
    stamp(a, 10)
    a("s_lshl_b32 s33, s24, 12"); a("s_add_u32 s33, s33, 0x%x" % RED)
    a("v_add_u32 v2, s33, v1")
    a("v_xor_b32 v3, 0x4000, v2")
    a("v_lshlrev_b32 v12, 11, v12")
    a("v_and_b32 v15, 1, v13"); a("v_lshlrev_b32 v15, 5, v15")
    a("v_lshrrev_b32 v13, 1, v13"); a("v_lshlrev_b32 v13, 4, v13")
    a("v_add3_u32 v12, v12, v15, v13")
    a("s_lshl_b32 s32, s32, 15")
    a("s_lshl_b32 s33, s57, 7"); a("s_add_u32 s32, s32, s33")
    for q in range(4): a("ds_write_b128 v2, %s offset:%d" % (vr(A2 + 16 + q * 4, 4), q * 1024))
    a("s_waitcnt lgkmcnt(0)")
    a("s_barrier")
    for q in range(4): a("ds_read_b128 %s, v3 offset:%d" % (vr(OFB + q * 4, 4), q * 1024))
    for pr in range(2):
        b = F2 + pr * 4
        for h in range(2):
            nt = pr * 2 + h
            s0 = A2 + nt * 4
            a("s_waitcnt lgkmcnt(%d)" % (3 - nt))
            for r in range(0, 4, 2):
                a("v_pk_add_f32 %s, %s, %s" % (vr(s0 + r, 2), vr(s0 + r, 2), vr(OFB + nt * 4 + r, 2)))
            a("v_cvt_pk_bf16_f32 v%d, v%d, v%d" % (b + 2 * h, s0, s0 + 1))
            a("v_cvt_pk_bf16_f32 v%d, v%d, v%d" % (b + 2 * h + 1, s0 + 2, s0 + 3))
        a("v_permlane16_swap_b32 v%d, v%d" % (b, b + 2))
        a("v_permlane16_swap_b32 v%d, v%d" % (b + 1, b + 3))
        a("buffer_store_dwordx4 %s, v12, s[48:51], s32 offen offset:%d" % (vr(b, 4), pr * 64))
    if DIAG:
        a("s_waitcnt vmcnt(0)")
        stamp(a, 11)
        stamp_flush(a)
    a("s_endpgm")
    a.label("L_OOL%d" % SIGP)
    a("s_waitcnt vmcnt(0)")
    a("s_mov_b64 exec, 1")
    a("v_mov_b32 v2, 1"); a("v_mov_b32 v3, 0x%x" % CNT)
    a("ds_add_rtn_u32 v3, v3, v2")
    a("s_waitcnt lgkmcnt(0)")
    a("v_readfirstlane_b32 s33, v3")
    a("s_cmp_lg_u32 s33, 7")
    a("s_cbranch_scc1 L_NOSIG0")
    a("v_mov_b32 v3, 0")
    a("buffer_store_dword v2, v3, s[20:23], s39 offen sc1")
    a.label("L_NOSIG0")
    a("s_mov_b64 exec, -1")
    a("s_add_u32 s39, s39, 128")
    if EARLY == 1: a("buffer_load_dword v9, v11, s[20:23], s96 offen sc1")
    a("s_branch L_OOLR%d" % SIGP)
    if EARLY == 1:
        for p in (6, 7, 8):
            a.label("L_OOL%d" % p)
            if p == 6:
                a("s_waitcnt vmcnt(0)")
                a("v_cmp_ne_u32 vcc, 1, v9")
                a("s_cmp_eq_u64 vcc, 0")
                a("s_cselect_b32 s99, 1, 0")
            a("s_cmp_eq_u32 s99, 0")
            a("s_cbranch_scc1 L_OOLR%d" % p)
            oloads(0, {6: range(0, 3), 7: range(3, 6), 8: range(6, 8)}[p])
            a("s_branch L_OOLR%d" % p)
    if E5:
        for p in range(1, 9):
            a.label("L_E5_%d" % p)
            oloads(0, [p - 1])
            a("s_branch L_E5R_%d" % p)
    for i in range(1, 16):
        a.label("L_CTR%d" % i)
        a("s_nop 3")
        for r in range(4): a("v_mov_b32 v%d, 0" % (CT + r))
        a("s_nop 1")
        a("s_branch L_CT%d" % i)
    a.label("L_END")
    a("s_endpgm")
    a.fix_hazards()
    return a.text()

DOC = """;
;
"""
def main():
    nm = "standalone__sliding_block__prompt_kernel"
    hdr = open("standalone__sliding_block__prompt.s.ref").read().split("; Override")[0]
    out = hdr
    out += "; @launch grid=(256,1,1) block=(512,1,1) lds=163840\n"
    out += DOC
    out += '.amdgcn_target "amdgcn-amd-amdhsa--gfx950"\n.text\n'
    out += kernel_header(nm) + build()
    out += '.section .rodata,"a"\n.p2align 6\n' + kernel_desc(nm, 240, 102, 240)
    open(sys.argv[1] if len(sys.argv) > 1 else "standalone__sliding_block__prompt.s", "w").write(out)
main()
```
